```python
import torch

def _softmax(x, axis=-1):
    return torch.softmax(x, dim=axis)
def _gelu(x):
    return torch.nn.functional.gelu(x, approximate="tanh")
def _silu(x):
    return torch.nn.functional.silu(x)
def _sigmoid(x):
    return torch.sigmoid(x)
def _layernorm(x, axis=-1, eps=1e-5):
    m = x.mean(dim=axis, keepdim=True)
    v = x.var(dim=axis, keepdim=True, unbiased=False)
    return (x - m) / torch.sqrt(v + eps)
def _scatter_add(tgt, idx, src, axis=0):
    return tgt.clone().index_add_(axis, idx, src)
def _segment_sum(src, seg, n):
    out = torch.zeros((n,) + src.shape[1:], dtype=src.dtype)
    return out.index_add_(0, seg, src)
def _pad(x, pw):
    flat = tuple(v for pair in reversed(pw) for v in pair)
    return torch.nn.functional.pad(x, flat)

kernel_name = 'recurrent_scan__ssm_conv_s4d__swiglu_ffn__prompt'

def setup_inputs():

    _w = (lambda a: (lambda t: t.to(torch.bfloat16) if t.is_floating_point() else t)(torch.as_tensor(a)))
    def _A_setup():
        Bsz, L, D, N = 1, 2048, 512, 128
        return {
            "u": _w((lambda *s: torch.randn(*s, dtype=torch.bfloat16) * 0.05)(Bsz, L, D)),
            "log_A_real": _w((lambda *s: torch.randn(*s, dtype=torch.bfloat16) * 6.4)(D, N) * 0.5),
            "A_imag": _w((lambda *s: torch.randn(*s, dtype=torch.bfloat16) * 0.05)(D, N) * 3.14),
            "C_real": _w((lambda *s: torch.randn(*s, dtype=torch.bfloat16) * 0.05)(D, N) / N ** 0.5),
            "C_imag": _w((lambda *s: torch.randn(*s, dtype=torch.bfloat16) * 0.05)(D, N) / N ** 0.5),
            "log_dt": _w((lambda *s: torch.randn(*s, dtype=torch.bfloat16) * 0.05)(D) * 0.5 - 4.0),
            "D_skip": _w((lambda *s: torch.randn(*s, dtype=torch.bfloat16) * 0.05)(D)),
        }
    _A_in = _A_setup()

    def _B_setup():
        B, S, D, F = 1, 2048, 512, 1376
        return {
            "x": _w((lambda *s: torch.randn(*s, dtype=torch.bfloat16) * 0.05)(B, S, D)),
            "w_gate": _w((lambda *s: torch.randn(*s, dtype=torch.bfloat16) * 0.05)(D, F)),
            "w_up": _w((lambda *s: torch.randn(*s, dtype=torch.bfloat16) * 0.05)(D, F)),
            "w_down": _w((lambda *s: torch.randn(*s, dtype=torch.bfloat16) * 0.05)(F, D)),
        }
    _B_in = _B_setup()

    return {
        "A_u": _A_in["u"],
        "A_log_A_real": _A_in["log_A_real"],
        "A_A_imag": _A_in["A_imag"],
        "A_C_real": _A_in["C_real"],
        "A_C_imag": _A_in["C_imag"],
        "A_log_dt": _A_in["log_dt"],
        "A_D_skip": _A_in["D_skip"],
        "B_x": _B_in["x"],
        "B_w_gate": _B_in["w_gate"],
        "B_w_up": _B_in["w_up"],
        "B_w_down": _B_in["w_down"],
    }

def reference(A_u, A_log_A_real, A_A_imag, A_C_real, A_C_imag, A_log_dt, A_D_skip, B_x, B_w_gate, B_w_up, B_w_down):
    def _A_ref(u, log_A_real, A_imag, C_real, C_imag, log_dt, D_skip):
        L = u.shape[1]
        dt = torch.exp(log_dt)
        A = -torch.exp(log_A_real) + 1j * A_imag
        C = (C_real + 1j * C_imag) * dt[:, None]
        pos = (lambda x, dt: x.to(dt))(torch.arange(L), log_dt.dtype)
        P = torch.exp((A * dt[:, None])[:, :, None] * pos[None, None, :])
        K = 2.0 * torch.einsum("dn,dnl->dl", C, P).real
        L2 = 2 * L
        u_t = (lambda x, *d: x.permute(*d))(u, 0, 2, 1)
        Kf = (lambda x, *a, **k: torch.fft.rfft(x.float(), *a, **k))(K, L2)
        Uf = (lambda x, *a, **k: torch.fft.rfft(x.float(), *a, **k))(u_t, L2)
        y = (lambda x, *a, **k: torch.fft.irfft(x, *a, **k).to(torch.bfloat16))(Uf * Kf[None, :, :], L2)[:, :, :L]
        y = (lambda x, *d: x.permute(*d))(y, 0, 2, 1)
        return y + u * D_skip[None, None, :]

    def _B_ref(x, w_gate, w_up, w_down):
        g = _silu(x @ w_gate)
        u = x @ w_up
        return (g * u) @ w_down

    x = A_u
    xn = _layernorm(x, axis=-1)
    s = _A_ref(xn, A_log_A_real, A_A_imag, A_C_real, A_C_imag, A_log_dt, A_D_skip)
    g = _silu(_B_ref(xn, B_w_gate, B_w_up, B_w_down))
    return x + s * g
```

```python
import re
KN = 'recurrent_scan__ssm_conv_s4d__swiglu_ffn__prompt_kernel'

class Asm:
    def __init__(self):
        self.l = []
        self.lg_issued = 0
        self.lg_done = 0
        self.vm_issued = 0
        self.vm_done = 0
    def __call__(self, s):
        for x in s.split('\n'):
            x = x.strip()
            if not x: continue
            self.l.append(x)
    def ds(self, s):
        self(s); self.lg_issued += 1; return self.lg_issued
    def vm(self, s):
        self(s); self.vm_issued += 1; return self.vm_issued
    def wait_lg(self, idx):
        if idx <= self.lg_done: return
        n = min(self.lg_issued - idx, 14)
        self(f's_waitcnt lgkmcnt({n})'); self.lg_done = self.lg_issued - n
    def wait_vm(self, idx):
        if idx <= self.vm_done: return
        n = min(self.vm_issued - idx, 62)
        self(f's_waitcnt vmcnt({n})'); self.vm_done = self.vm_issued - n
    def wait_lg_all(self):
        self('s_waitcnt lgkmcnt(0)'); self.lg_done = self.lg_issued
    def wait_vm_all(self):
        self('s_waitcnt vmcnt(0)'); self.vm_done = self.vm_issued
    def text(self):
        return '\n'.join((x if x.endswith(':') or x.startswith('.') else '    ' + x) for x in self.l) + '\n'

_rv = re.compile(r'^(-|abs\()?\|?(v|s|a)(\d+)\|?\)?$')
_rr = re.compile(r'^-?(v|s|a)\[(\d+):(\d+)\]$')
def regs(tok):
    tok = tok.strip()
    m = _rr.match(tok)
    if m: return {(m.group(1), i) for i in range(int(m.group(2)), int(m.group(3))+1)}
    m = _rv.match(tok)
    if m: return {(m.group(2), int(m.group(3)))}
    if tok == 'vcc': return {('s','vcc')}
    if tok in ('vcc_lo','vcc_hi'): return {('s','vcc')}
    if tok == 'm0': return {('s','m0')}
    if tok in ('exec','exec_lo','exec_hi'): return {('s','exec')}
    return set()
TRANS = ('v_exp_f32','v_log_f32','v_rcp_f32','v_rsq_f32','v_sqrt_f32','v_sin_f32','v_cos_f32')
def parse(ins):
    ins = ins.split(';')[0].strip()
    p = ins.split(None, 1)
    op = p[0]
    rest = p[1] if len(p) > 1 else ''
    rest = re.sub(r'\s(op_sel|op_sel_hi|neg_lo|neg_hi|quad_perm):\[[^\]]*\]', '', rest)
    toks = [t.strip() for t in rest.split(',')]
    if toks:
        last = toks[-1].split()
        mods = last[1:] if last else []
        if last: toks[-1] = last[0]
    else: mods = []
    d = dict(op=op, w=set(), r=set(), cls='other', mods=mods, passes=0, srcc=set(), sdata=set())
    base = op.replace('_e32','').replace('_e64','').replace('_dpp','').replace('_sdwa','')
    if op.startswith('v_mfma'):
        d['cls'] = 'mfma'
        d['w'] = regs(toks[0]); d['ab'] = regs(toks[1]) | regs(toks[2]); d['srcc'] = regs(toks[3]); d['r'] = d['ab'] | d['srcc']
        d['passes'] = 8 if '32x32' in op else 4
    elif op.startswith('v_'):
        d['cls'] = 'valu'
        d['trans'] = base in TRANS
        d['dpp'] = op.endswith('_dpp')
        if base.startswith('v_cmp'):
            d['w'] = regs(toks[0]);
            for t in toks[1:]: d['r'] |= regs(t)
        elif base in ('v_readfirstlane_b32','v_readlane_b32'):
            d['w'] = regs(toks[0]);
            for t in toks[1:]: d['r'] |= regs(t)
            d['lane'] = True
        elif base.startswith('v_permlane'):
            d['w'] = regs(toks[0]) | regs(toks[1]); d['r'] = set(d['w']); d['perm'] = True
        elif base in ('v_add_co_u32','v_sub_co_u32','v_addc_co_u32'):
            d['w'] = regs(toks[0]) | regs(toks[1])
            for t in toks[2:]: d['r'] |= regs(t)
        else:
            d['w'] = regs(toks[0])
            for t in toks[1:]: d['r'] |= regs(t)
            if base in ('v_fmac_f32','v_dot2c_f32_bf16','v_writelane_b32') or d['dpp']: d['r'] |= d['w']
    elif op.startswith('buffer_') or op.startswith('global_'):
        d['cls'] = 'vmem'
        lds = 'lds' in mods or '_lds_' in op
        d['lds'] = lds
        if 'load' in op and not lds:
            d['w'] = regs(toks[0])
            for t in toks[1:]: d['r'] |= regs(t)
        else:
            for t in toks: d['r'] |= regs(t)
            if 'store' in op and ('x4' in op or 'x3' in op):
                d['sdata'] = regs(toks[0]) if op.startswith('buffer_') else regs(toks[1])
        if lds: d['r'] |= {('s','m0')}
    elif op.startswith('ds_'):
        d['cls'] = 'ds'
        if 'read' in op or 'rtn' in op or 'permute' in op or 'swizzle' in op:
            d['w'] = regs(toks[0])
            for t in toks[1:]: d['r'] |= regs(t)
        else:
            for t in toks: d['r'] |= regs(t)
    elif op.startswith('s_'):
        d['cls'] = 'salu'
        if op in ('s_nop',): d['cls'] = 'nop'; d['n'] = int(toks[0], 0) + 1
        elif op.startswith('s_cmp') or op.startswith('s_cbranch') or op in ('s_waitcnt','s_barrier','s_branch','s_sleep','s_setprio','s_endpgm'):
            for t in toks: d['r'] |= regs(t)
        else:
            d['w'] = regs(toks[0])
            for t in toks[1:]: d['r'] |= regs(t)
            if 'saveexec' in op: d['w'] |= {('s','exec')}
    return d

def need(p, c):
    n = 0
    vw = {x for x in p['w'] if x[0] in 'va'}
    sw = {x for x in p['w'] if x[0] == 's'}
    if p['cls'] == 'valu':
        if c['cls'] == 'mfma' and vw & c['r']: n = max(n, 2)
        if c['cls'] == 'mfma' and ('s','exec') in sw: n = max(n, 4)
        if c['cls'] == 'valu':
            if p.get('trans') and not c.get('trans') and vw & c['r']: n = max(n, 1)
            if p.get('trans') and c.get('trans') and vw & c['r']: n = max(n, 1)
            if c.get('dpp') and vw & c['r']: n = max(n, 2)
            if c.get('perm') and vw & c['r']: n = max(n, 2)
            if c.get('lane') and vw & c['r']: n = max(n, 1)
            if c.get('lane') and sw & c['r']: n = max(n, 4)
            if sw & c['r']: n = max(n, 2)
        if p.get('trans') and c['cls'] in ('vmem','ds') and vw & c['r']: n = max(n, 1)
        if c['cls'] == 'vmem' and sw & c['r']: n = max(n, 5)
        if c['cls'] == 'salu' and sw & c['r']: n = max(n, 1)
    if p['cls'] == 'salu':
        if ('s','m0') in sw and c['cls'] == 'vmem' and c.get('lds'): n = max(n, 1)
    if p['cls'] == 'mfma':
        big = {4: 8, 8: 12}[p['passes']]
        if c['cls'] == 'mfma':
            if p['w'] & c['ab']: n = max(n, big)
            if p['w'] & c['srcc']:
                if not (p['w'] == c['srcc'] and p['passes'] == c['passes']): n = max(n, big - 2)
            elif p['w'] & c['w']: n = max(n, big)
        elif c['cls'] in ('valu','vmem','ds'):
            if p['w'] & (c['r'] | c['w']): n = max(n, big)
        if c['cls'] == 'valu' and p['srcc'] & c['w']: n = max(n, {4: 3, 8: 7}[p['passes']])
    if p['cls'] == 'vmem' and p['sdata']:
        if c['cls'] == 'valu' and p['sdata'] & c['w']: n = max(n, 2)
        elif p['sdata'] & c['w']: n = max(n, 1)
    return n

def hazard_pass(lines, verbose=False):
    out = []; hist = []
    added = 0
    for ln in lines:
        if ln.endswith(':') or ln.startswith('.') or ln.startswith(';'):
            out.append(ln); continue
        c = parse(ln)
        req = 0; dist = 0
        for p in reversed(hist):
            k = need(p, c) - dist
            if k > req: req = k
            dist += p.get('n', 1)
            if dist > 20: break
        if req > 0:
            out.append(f's_nop {req-1}'); hist.append(dict(op='s_nop', cls='nop', n=req, w=set(), r=set(), sdata=set()))
            added += req
            if verbose: print('pad', req, 'before', ln)
        out.append(ln); hist.append(c)
        if c['op'] in ('s_branch','s_endpgm'): hist = []
        if len(hist) > 40: hist = hist[-30:]
    return out, added

def kernel_text(name, body, vgpr=256, sgpr=102, accum=None, wgid_y=False):
    if accum is None: accum = min(256, (vgpr + 3)//4*4)
    t = f'.text\n.globl {name}\n.p2align 8\n.type {name},@function\n{name}:\n{body}'
    kd = f'''.section .rodata,"a"
.p2align 6
.amdhsa_kernel {name}
  .amdhsa_next_free_vgpr {vgpr}
  .amdhsa_next_free_sgpr {sgpr}
  .amdhsa_accum_offset {accum}
  .amdhsa_group_segment_fixed_size 0
  .amdhsa_kernarg_size 112
  .amdhsa_user_sgpr_count 2
  .amdhsa_user_sgpr_kernarg_segment_ptr 1
  .amdhsa_system_sgpr_workgroup_id_x 1
''' + ('  .amdhsa_system_sgpr_workgroup_id_y 1\n' if wgid_y else '') + '''  .amdhsa_float_denorm_mode_32 3
  .amdhsa_float_denorm_mode_16_64 3
.end_amdhsa_kernel
'''
    return t, kd

def file_text(launches, kernels, single=False):
    h = ''
    for (n, g, b, lds) in launches:
        if single: h += f'; @launch grid=({g},1,1) block=({b},1,1) lds={lds}\n'
        else: h += f'; @launch kernel={n} grid=({g},1,1) block=({b},1,1) lds={lds}\n'
    h += '.amdgcn_target "amdgcn-amd-amdhsa--gfx950"\n'
    for t, kd in kernels:
        h += t
    for t, kd in kernels:
        h += kd
    return h
```

```python
import sys, math
from asmlib import *

STAMPS = '--stamps' in sys.argv
DEBUGK = '--debugk' in sys.argv
OUT = [x for x in sys.argv[1:] if not x.startswith('--')][0]

EPOCH=0; STATS=0x10000; CSUM=0x20000; XNT=0x100000; HB=0x800000; SB=0xE00000; DBGK=0x1100000; STAMP=0xF000000
HREG=131072
KB=[HREG, HREG+8448]
UB=HREG+16896; CSL=UB
CSA=HREG+29184; STL=HREG+30720; SYNC=HREG+31232
WFULL=0; PROG=16; STREADY=32; UREADY=36; KREADY=40; CDONE=48; CXCH=64; CFIN=80
LOG2E=0x3fb8aa3b
sX='s[44:47]'; sWg='s[48:51]'; sWu='s[52:55]'; sWd='s[56:59]'; sOut='s[60:63]'; sWs='s[64:67]'
sTAG='s68'; sXCD='s69'; sJ='s70'; sRB='s71'; sCG='s72'; sUL='s73'; sULV='s74'; sP='s75'; sWV='s3'
uid=[0]
def lab(p):
    uid[0]+=1; return f'L{p}{uid[0]}'

def stamp(a, k):
    if not STAMPS: return
    a(f's_memrealtime s[{80+2*k}:{81+2*k}]')
    a.wait_lg_all()
def dump_stamps(a, n):
    if not STAMPS: return
    a('s_mov_b64 exec, 1')
    a(f's_lshl_b32 s4, {sWV}, 3')
    for k in range(n):
        a(f's_add_u32 s5, s4, {k}\ns_lshl_b32 s5, s5, 11\ns_lshl_b32 s6, s2, 3\ns_add_u32 s5, s5, s6\ns_add_u32 s5, s5, {STAMP}')
        a(f'v_mov_b32 v2, s{80+2*k}\nv_mov_b32 v3, s{81+2*k}\nv_mov_b32 v4, 0')
        a(f'buffer_store_dwordx2 v[2:3], v4, {sWs}, s5 offen')
    a('s_waitcnt vmcnt(0)')

def poll_lds(a, vaddr, off, val, vt, sleep=1, min4=False):
    L=lab('p'); E=lab('pe')
    a('s_mov_b32 s5, 0x8000')
    a(f'{L}:')
    if min4:
        a(f'ds_read_b128 v[{vt}:{vt+3}], v{vaddr} offset:{off}')
        a('s_waitcnt lgkmcnt(0)')
        a(f'v_min3_u32 v{vt}, v{vt}, v{vt+1}, v{vt+2}\nv_min_u32 v{vt}, v{vt}, v{vt+3}')
    else:
        a(f'ds_read_b32 v{vt}, v{vaddr} offset:{off}')
        a('s_waitcnt lgkmcnt(0)')
    a(f'v_readfirstlane_b32 s4, v{vt}')
    a(f's_cmp_ge_u32 s4, {val}\ns_cbranch_scc1 {E}')
    if sleep: a(f's_sleep {sleep}')
    a(f's_sub_u32 s5, s5, 1\ns_cmp_lg_u32 s5, 0\ns_cbranch_scc1 {L}')
    a(f'{E}:')
    a.lg_done = a.lg_issued

def signal(a, vaddr, off, val, vt):
    a(f'v_mov_b32 v{vt}, {val}')
    a.ds(f'ds_write_b32 v{vaddr}, v{vt} offset:{off}')

def prologue(a):
    a('s_cmp_ge_u32 s2, 256\ns_cbranch_scc1 L_exit')
    a('s_load_dwordx16 s[16:31], s[0:1], 0')
    a('s_load_dwordx8 s[32:39], s[0:1], 64')
    a('s_load_dwordx4 s[40:43], s[0:1], 96')
    if STAMPS: a('s_memrealtime s[80:81]')
    a('v_lshrrev_b32 v2, 6, v0')
    a('v_and_b32 v1, 63, v0')
    a(f'v_readfirstlane_b32 {sWV}, v2')
    a(f's_and_b32 {sXCD}, s2, 7\ns_lshr_b32 {sJ}, s2, 3')
    a(f's_lshr_b32 s4, {sXCD}, 2\ns_lshl_b32 s4, s4, 3\ns_and_b32 s5, {sJ}, 7\ns_add_u32 {sRB}, s4, s5')
    a(f's_and_b32 s4, {sXCD}, 3\ns_lshr_b32 s5, {sJ}, 3\ns_lshl_b32 s6, s4, 2\ns_add_u32 {sCG}, s6, s5')
    a(f's_mul_i32 s6, s4, 3\ns_add_u32 s6, s6, s5\ns_add_u32 s6, s6, 32')
    a(f's_cmp_lt_u32 s6, 43\ns_cselect_b32 {sULV}, 1, 0\ns_cmp_lt_u32 s5, 3\ns_cselect_b32 {sULV}, {sULV}, 0')
    a(f's_min_u32 {sUL}, s6, 42')
    a(f's_lshl_b32 s4, {sXCD}, 5\ns_add_u32 {sP}, s4, {sJ}')
    for r, sz in [(44,2097152),(48,1409024),(52,1409024),(56,1409024),(60,2097152),(64,0x10000000)]:
        a(f's_mov_b32 s{r+2}, {sz}\ns_mov_b32 s{r+3}, 0x20000')
    a(f'v_mov_b32 v2, {SYNC}')
    a(f's_cmp_lt_u32 {sWV}, 4\ns_cbranch_scc1 L_pfG')
    a(f's_cmp_lg_u32 {sWV}, 7\ns_cbranch_scc1 L_pfdone')
    a('v_lshl_add_u32 v3, v1, 2, v2\nv_mov_b32 v4, 0\nds_write_b32 v3, v4')
    a('s_branch L_pfdone')
    a('L_pfG:')
    a('s_getpc_b64 s[4:5]')
    a('L_pc:')
    a('v_lshlrev_b32 v3, 7, v0')
    a('v_min_u32 v3, L_end-L_pc-4, v3')
    a('global_load_dword v255, v3, s[4:5]')
    a('L_pfdone:')
    a('s_waitcnt lgkmcnt(0)')
    for r, b in [(44,16),(48,32),(52,34),(56,36),(60,38),(64,42)]:
        a(f's_mov_b32 s{r}, s{b}\ns_mov_b32 s{r+1}, s{b+1}')
    a(f's_cmp_lt_u32 {sWV}, 4\ns_cbranch_scc1 L_G')
    a(f's_cmp_eq_u32 {sWV}, 5\ns_cbranch_scc1 L_B')
    a(f's_load_dword {sTAG}, s[42:43], {EPOCH}')
    a(f's_cmp_eq_u32 {sWV}, 4\ns_cbranch_scc1 L_A')
    a('s_branch L_K')

def wave_A():
    a = Asm()
    a('L_A:')
    a('s_setprio 2')
    SF=64; NX=96; ST=128
    a('v_and_b32 v3, 7, v1\nv_lshlrev_b32 v3, 10, v3\nv_bfe_u32 v4, v1, 3, 1\nv_lshl_add_u32 v3, v4, 9, v3\nv_lshrrev_b32 v4, 4, v1\nv_lshl_add_u32 v3, v4, 4, v3')
    a('v_lshlrev_b32 v5, 4, v1')
    a(f's_lshl_b32 s6, {sP}, 13\ns_add_u32 s7, s6, 4096')
    ld=[]
    for ks in range(8): ld.append(a.vm(f'buffer_load_dwordx4 v[{SF+4*ks}:{SF+4*ks+3}], v3, {sX}, s6 offen offset:{64*ks}'))
    nx=[]
    for r in range(8): nx.append(a.vm(f'buffer_load_dwordx4 v[{NX+4*r}:{NX+4*r+3}], v5, {sX}, {"s6" if r<4 else "s7"} offen offset:{1024*(r&3)}'))
    for r in range(20,24): a(f'v_mov_b32 v{r}, -1')
    a(f's_mul_i32 s8, {sRB}, {4*86*1024}\ns_add_u32 s8, s8, {HB}')
    a(f's_lshl_b32 s9, {sCG}, 11\ns_add_u32 s9, s9, s8')
    a(f's_lshl_b32 s10, {sUL}, 11\ns_add_u32 s10, s10, s8')
    for g in range(4):
        a(f's_add_u32 s11, s9, {g*86*1024}')
        for o in (0,1024): a.vm(f'buffer_store_dwordx4 v[20:23], v5, {sWs}, s11 offen offset:{o} sc1')
        a(f's_add_u32 s11, s9, {g*86*1024+32768}')
        for o in (0,1024): a.vm(f'buffer_store_dwordx4 v[20:23], v5, {sWs}, s11 offen offset:{o} sc1')
    a(f's_lshl_b32 s11, {sP}, 13\ns_add_u32 s11, s11, {SB}')
    for h in range(2):
        for o in range(4): a.vm(f'buffer_store_dwordx4 v[20:23], v5, {sWs}, s11 offen offset:{1024*o} sc1')
        if h==0: a('s_add_u32 s11, s11, 4096')
    Lk=lab('a')
    a(f's_cmp_eq_u32 {sULV}, 0\ns_cbranch_scc1 {Lk}')
    for g in range(4):
        a(f's_add_u32 s11, s10, {g*86*1024}')
        for o in (0,1024): a(f'buffer_store_dwordx4 v[20:23], v5, {sWs}, s11 offen offset:{o} sc1')
    a(f'{Lk}:')
    a('s_barrier')
    for r in range(8,12): a(f'v_mov_b32 v{r}, 0x3f803f80')
    a('v_and_b32 v6, 3, v1')
    a('v_cmp_eq_u32 s[8:9], 1, v6\nv_cmp_eq_u32 s[10:11], 2, v6\nv_cmp_eq_u32 s[12:13], 3, v6')
    a('v_lshrrev_b32 v6, 4, v1\nv_bfe_u32 v7, v1, 2, 2\nv_cmp_eq_u32 s[14:15], v6, v7')
    a('s_waitcnt lgkmcnt(0)')
    a(f's_add_u32 {sTAG}, {sTAG}, 1')
    for i in range(32): a(f'v_mov_b32 v{ST+2*i+1}, {sTAG}')
    stamp(a,1)
    for ks in range(8):
        a.wait_vm(ld[ks])
        f=f'v[{SF+4*ks}:{SF+4*ks+3}]'
        a(f'v_mfma_f32_16x16x32_bf16 v[12:15], {f}, {f}, {"0" if ks==0 else "v[12:15]"}')
        a(f'v_mfma_f32_16x16x32_bf16 v[16:19], v[8:11], {f}, {"0" if ks==0 else "v[16:19]"}')
    stamp(a,2)
    a('v_cndmask_b32 v24, v12, v13, s[8:9]\nv_cndmask_b32 v24, v24, v14, s[10:11]\nv_cndmask_b32 v24, v24, v15, s[12:13]\nv_cndmask_b32 v24, 0, v24, s[14:15]')
    a('v_mov_b32 v25, v24\nv_permlane32_swap_b32 v24, v25\nv_add_f32 v24, v24, v25')
    a('v_mov_b32 v25, v24\nv_permlane16_swap_b32 v24, v25\nv_add_f32 v24, v24, v25')
    a('v_add_f32_dpp v24, v24, v24 row_ror:8 row_mask:0xf bank_mask:0xf')
    a('v_add_f32_dpp v26, v16, v16 row_ror:8 row_mask:0xf bank_mask:0xf')
    a('v_mul_f32 v26, 0x3b000000, v26')
    a('v_mul_f32 v24, 0x3b000000, v24')
    a('v_fma_f32 v24, -v26, v26, v24\nv_max_f32 v24, 0, v24')
    a('v_cvt_pk_bf16_f32 v27, v24, v24\nv_and_b32 v27, 0xffff0000, v27')
    a('v_add_f32 v27, 0x3727c5ac, v27')
    a('v_cvt_pk_bf16_f32 v27, v27, v27\nv_and_b32 v27, 0xffff0000, v27')
    a('v_sqrt_f32 v27, v27')
    a('v_cvt_pk_bf16_f32 v28, v26, v27')
    a(f'v_mov_b32 v29, {sTAG}')
    a(f's_lshl_b32 s6, {sP}, 6\ns_add_u32 s6, s6, {STATS}')
    a('v_lshlrev_b32 v6, 3, v1')
    a('s_mov_b64 exec, 0xff')
    gs=a.vm(f'buffer_store_dwordx2 v[28:29], v6, {sWs}, s6 offen sc1')
    a('s_mov_b64 exec, -1')
    a('v_and_b32 v27, 0xffff0000, v28\nv_rcp_f32 v27, v27\nv_lshlrev_b32 v26, 16, v28\nv_mul_f32 v26, v26, v27')
    for r in range(8):
        a(f'v_mov_b32_dpp v{32+r}, v27 row_newbcast:{r} row_mask:0xf bank_mask:0xf')
        a(f'v_mov_b32_dpp v{40+r}, v26 row_newbcast:{r} row_mask:0xf bank_mask:0xf')
    a.wait_vm(nx[7])
    for c in range(4):
        for hi in range(2):
            for r in range(8):
                if hi: a(f'v_and_b32 v{48+r}, 0xffff0000, v{NX+4*r+c}')
                else: a(f'v_lshlrev_b32 v{48+r}, 16, v{NX+4*r+c}')
            for r in range(8): a(f'v_fma_f32 v{48+r}, v{48+r}, v{32+r}, -v{40+r}')
            for q in range(4):
                a(f'v_cvt_pk_bf16_f32 v{ST+16*c+8*hi+2*q}, v{48+2*q}, v{49+2*q}')
    a.wait_vm_all()
    stamp(a,3)
    a(f's_lshl_b32 s6, {sP}, 14\ns_add_u32 s6, s6, {XNT}')
    a('v_lshlrev_b32 v6, 8, v1')
    for i in range(16): a.vm(f'buffer_store_dwordx4 v[{ST+4*i}:{ST+4*i+3}], v6, {sWs}, s6 offen offset:{16*i} sc1')
    CS=64
    L=lab('a'); E=lab('a')
    a('s_mov_b32 s12, 0x4000')
    a(f's_lshl_b32 s6, {sRB}, 10\ns_add_u32 s6, s6, {STATS}')
    a(f's_lshl_b32 s7, {sCG}, 14\ns_add_u32 s7, s7, {CSUM}')
    a(f'{L}:')
    a(f'buffer_load_dwordx4 v[24:27], v5, {sWs}, s6 offen sc1')
    for i in range(16):
        if i%4==0: a(f's_add_u32 s8, s7, {i*1024}')
        a(f'buffer_load_dwordx4 v[{CS+4*i}:{CS+4*i+3}], v5, {sWs}, s8 offen offset:{1024*(i&3)} sc1')
    a('s_waitcnt vmcnt(0)')
    a('v_min_u32 v30, v25, v27\nv_max_u32 v31, v25, v27')
    for i in range(0,16,2):
        a(f'v_min3_u32 v30, v30, v{CS+4*i+3}, v{CS+4*i+7}\nv_max3_u32 v31, v31, v{CS+4*i+3}, v{CS+4*i+7}')
    a(f'v_cmp_ne_u32 vcc, {sTAG}, v30\nv_cmp_ne_u32 s[8:9], {sTAG}, v31\ns_or_b64 vcc, vcc, s[8:9]')
    a(f's_cbranch_vccz {E}')
    a(f's_sleep 2\ns_sub_u32 s12, s12, 1\ns_cmp_lg_u32 s12, 0\ns_cbranch_scc1 {L}')
    a(f'{E}:')
    a.vm_done=a.vm_issued
    stamp(a,4)
    XG=128
    a(f'v_lshrrev_b32 v6, 2, v1\nv_lshlrev_b32 v6, 14, v6\nv_and_b32 v7, 3, v1\nv_lshl_add_u32 v6, v7, 4, v6')
    a(f's_lshl_b32 s13, {sP}, 6\ns_add_u32 s13, s13, {XNT}')
    def xg_loads():
        for i in range(16):
            a(f's_add_u32 s8, s13, {i*16*16384}')
            a(f'buffer_load_dwordx4 v[{XG+4*i}:{XG+4*i+3}], v6, {sWs}, s8 offen sc1')
    xg_loads()
    for st in (8,4,2,1):
        for i in range(st):
            for e in range(3): a(f'v_add_f32 v{CS+4*i+e}, v{CS+4*i+e}, v{CS+4*(i+st)+e}')
    a(f'v_lshl_add_u32 v30, v1, 3, 0\nv_add_u32 v30, {STL}, v30')
    a.ds('ds_write2_b32 v30, v24, v26 offset0:0 offset1:1')
    a(f'v_and_b32 v30, 31, v1\nv_lshlrev_b32 v30, 3, v30\nv_lshrrev_b32 v31, 5, v1\nv_mul_u32_u24 v31, 768, v31\nv_add3_u32 v30, v30, v31, 0\nv_add_u32 v30, {CSA}, v30')
    a('s_mov_b32 s8, 0x07060302')
    for e in range(3):
        v=CS+e; t=32+4*e
        a(f'v_and_b32 v{t}, 0xffff0000, v{v}\nv_sub_f32 v{t+1}, v{v}, v{t}\nv_and_b32 v{t+2}, 0xffff0000, v{t+1}\nv_sub_f32 v{t+3}, v{t+1}, v{t+2}')
        a(f'v_perm_b32 v{t+2}, v{t+2}, v{t}, s8\nv_lshrrev_b32 v{t+3}, 16, v{t+3}')
        a.ds(f'ds_write_b64 v30, v[{t+2}:{t+3}] offset:{256*e}')
    signal(a, 2, STREADY, 1, 31)
    a(f'v_lshlrev_b32 v30, 3, v1\nv_add_u32 v30, {UB}, v30\nv_mov_b32 v32, 0\nv_mov_b32 v33, 0')
    a.ds('ds_write_b64 v30, v[32:33]'); a.ds('ds_write_b64 v30, v[32:33] offset:4608')
    a(f'v_lshrrev_b32 v30, 2, v1\nv_lshlrev_b32 v30, 4, v30\nv_and_b32 v31, 1, v1\nv_lshl_add_u32 v30, v31, 3, v30\nv_bfe_u32 v31, v1, 1, 1\nv_mul_u32_u24 v31, 4608, v31\nv_add_u32 v30, v30, v31\nv_add_u32 v30, {UB+512}, v30')
    L=lab('a'); E=lab('a')
    a('s_mov_b32 s12, 0x4000')
    a(f'{L}:')
    a('s_waitcnt vmcnt(0)')
    a(f'v_min_u32 v24, v{XG+1}, v{XG+3}\nv_max_u32 v25, v{XG+1}, v{XG+3}')
    for i in range(1,16):
        a(f'v_min3_u32 v24, v24, v{XG+4*i+1}, v{XG+4*i+3}\nv_max3_u32 v25, v25, v{XG+4*i+1}, v{XG+4*i+3}')
    a(f'v_cmp_ne_u32 vcc, {sTAG}, v24\nv_cmp_ne_u32 s[8:9], {sTAG}, v25\ns_or_b64 vcc, vcc, s[8:9]')
    a(f's_cbranch_vccz {E}')
    a(f's_sub_u32 s12, s12, 1\ns_cmp_eq_u32 s12, 0\ns_cbranch_scc1 {E}')
    a('s_sleep 2')
    xg_loads()
    a(f's_branch {L}')
    a(f'{E}:')
    for i in range(16):
        if i%4==0 and i: a('v_add_u32 v30, 1024, v30')
        a.ds(f'ds_write2_b32 v30, v{XG+4*i}, v{XG+4*i+2} offset0:{64*(i&3)} offset1:{64*(i&3)+1}')
    signal(a, 2, UREADY, 1, 31)
    stamp(a,5)
    L=lab('a')
    a(f's_cmp_lg_u32 s2, 0\ns_cbranch_scc1 {L}')
    a(f'v_mov_b32 v24, {sTAG}\nv_mov_b32 v25, {EPOCH}\ns_mov_b64 exec, 1')
    a(f'buffer_store_dword v24, v25, {sWs}, 0 offen')
    a('s_mov_b64 exec, -1')
    a(f'{L}:')
    a('s_branch L_conv')
    return a

def w_dma_addr(a, v0):
    t0=v0+8; t1=v0+9
    a(f'v_lshrrev_b32 v{t0}, 2, v1\nv_mul_u32_u24 v{t0}, 2752, v{t0}\nv_and_b32 v{t1}, 3, v1')
    a(f'v_lshl_add_u32 v{v0}, v{t1}, 4, v{t0}\nv_xor_b32 v{t1}, 2, v{t1}\nv_lshl_add_u32 v{v0+4}, v{t1}, 4, v{t0}')
    for m in range(2):
        for i in range(1,4): a(f'v_add_u32 v{v0+4*m+i}, {i*(44032-1024)}, v{v0+4*m}')

def wave_B():
    a = Asm()
    a('L_B:')
    a('s_setprio 2')
    WA=8; DA=16
    w_dma_addr(a, WA)
    a(f's_lshl_b32 s6, {sCG}, 6')
    a(f's_lshl_b32 s7, {sUL}, 6')
    def issueW01(c):
        last=None
        for u in range(2):
            a(f's_add_u32 s8, s6, {c*64*2752 + u*1024}')
            for m in range(2):
                a(f's_mov_b32 m0, {(c&3)*32768 + 16384 + (2*u+m)*4096}')
                for i in range(4): last=a.vm(f'buffer_load_dwordx4 v{WA+4*m+i}, {[sWg,sWu][m]}, s8 offen offset:{1024*i} lds')
        return last
    def issueW2(jh, kbs):
        last=None
        for kb in kbs:
            a(f's_add_u32 s8, s7, {(jh*4+kb)*64*2752}')
            for m in range(2):
                a(f's_mov_b32 m0, {jh*32768 + (2*kb+m)*4096}')
                for i in range(4): last=a.vm(f'buffer_load_dwordx4 v{WA+4*m+i}, {[sWg,sWu][m]}, s8 offen offset:{1024*i} lds')
        return last
    def issueWd(ldsbase, f0, ninstr):
        last=None
        for i in range(ninstr):
            if i%4==0:
                a(f's_add_u32 s8, s9, {(f0+8*i)*1024}')
                a(f's_mov_b32 m0, {ldsbase+1024*i}')
            last=a.vm(f'buffer_load_dwordx4 v{DA+(i&3)}, {sWd}, s8 offen offset:{1024*(i&3)} lds')
        return last
    t={}
    t[0]=issueW01(0); t[1]=issueW01(1)
    a('s_barrier')
    t[2]=issueW01(2); t[3]=issueW01(3)
    a(f'v_lshrrev_b32 v3, 3, v1\nv_lshlrev_b32 v3, 10, v3\nv_and_b32 v4, 7, v1\nv_bfe_u32 v5, v1, 4, 1\nv_lshlrev_b32 v5, 2, v5\nv_xor_b32 v4, v4, v5\nv_lshl_add_u32 v{DA}, v4, 4, v3')
    for i in range(1,4): a(f'v_add_u32 v{DA+i}, {i*7168}, v{DA}')
    a(f's_lshr_b32 s9, {sJ}, 2\ns_lshl_b32 s9, s9, 7')
    def sig(n):
        a.wait_vm(t[n]); signal(a, 2, WFULL, n+1, 24)
    def free(v): poll_lds(a, 2, PROG, v, 20, sleep=1, min4=True)
    sig(0); stamp(a,1); sig(1)
    for c in range(4,8):
        free(c-3); t[c]=issueW01(c); sig(c-2)
    free(5); issueW2(0,[0,1]); sig(6); t[8]=issueW2(0,[2,3])
    free(6); issueW2(1,[0,1]); sig(7); t[9]=issueW2(1,[2,3])
    def tileWd(stage, ks0):
        issueWd(stage*32768, 16*ks0, 16)
        return issueWd(stage*32768+16384, 16*(ks0+16), 16)
    free(7); sig(8); t[10]=tileWd(2,0)
    free(8); sig(9); t[11]=tileWd(3,8)
    stamp(a,2)
    free(9); t[12]=tileWd(0,32); sig(11)
    free(10); t[13]=tileWd(1,40)
    stamp(a,3)
    a('s_branch L_conv')
    b = Asm()
    b('L_Btail:')
    a2=a; a=b
    poll_lds(b, 2, PROG, 12, 20, sleep=1, min4=True)
    b(f'v_lshrrev_b32 v3, 3, v1\nv_lshlrev_b32 v3, 10, v3\nv_and_b32 v4, 7, v1\nv_bfe_u32 v5, v1, 4, 1\nv_lshlrev_b32 v5, 2, v5\nv_xor_b32 v4, v4, v5\nv_lshl_add_u32 v{DA}, v4, 4, v3')
    for i in range(1,4): b(f'v_add_u32 v{DA+i}, {i*7168}, v{DA}')
    b(f's_lshr_b32 s9, {sJ}, 2\ns_lshl_b32 s9, s9, 7')
    for i in range(44):
        if i%4==0:
            b(f's_add_u32 s8, s9, {(1024+8*i)*1024}')
            b(f's_mov_b32 m0, {65536+1024*i}')
        b(f'buffer_load_dwordx4 v{DA+(i&3)}, {sWd}, s8 offen offset:{1024*(i&3)} lds')
    poll_lds(b, 2, CFIN, 4, 20, sleep=1)
    b('s_waitcnt vmcnt(0)')
    signal(b, 2, WFULL, 15, 24)
    b.wait_lg_all()
    stamp(b,7)
    dump_stamps(b,8)
    b('s_endpgm')
    return a2, b

def wave_K():
    a = Asm()
    a('L_K:')
    a(f's_and_b32 s14, {sWV}, 1')
    a(f's_lshl_b32 s6, {sP}, 1\ns_add_u32 s6, s6, s14')
    a(f's_lshl_b32 s7, s6, 8\nv_lshl_add_u32 v3, v1, 2, s7')
    a(f's_lshl_b32 s7, {sP}, 2')
    a('s_load_dword s15, s[26:27], s7')
    pl=[a.vm(f'global_load_dword v{4+i}, v3, s[{18+2*i}:{19+2*i}]') for i in range(4)]
    Lk=lab('k'); Lk2=lab('k')
    a(f's_cmp_eq_u32 s14, 1\ns_cbranch_scc1 {Lk}')
    w_dma_addr(a, 8)
    a(f's_mul_i32 s8, {sRB}, {32*2752}')
    a(f's_lshl_b32 s9, {sCG}, 6\ns_add_u32 s9, s9, s8\ns_add_u32 s10, s9, 1024')
    a(f's_lshl_b32 s11, {sUL}, 6\ns_add_u32 s11, s11, s8')
    for u in range(3):
        for m in range(2):
            a(f's_mov_b32 m0, {CSL+(2*u+m)*2048}')
            for i in range(2): a(f'buffer_load_dwordx4 v{8+4*m+i}, {[sWg,sWu][m]}, s{9+u} offen offset:{1024*i} lds')
    a('s_barrier')
    a('v_bfe_u32 v16, v1, 4, 1\nv_lshrrev_b32 v17, 5, v1\nv_bfe_u32 v18, v1, 2, 2\nv_lshl_add_u32 v17, v17, 3, v18\nv_lshlrev_b32 v17, 6, v17')
    a(f'v_and_b32 v18, 3, v1\nv_lshl_add_u32 v17, v18, 3, v17\nv_mul_u32_u24 v18, {2048+32}, v16\nv_add_u32 v17, v17, v18\nv_add_u32 v17, {CSL}, v17\nv_xor_b32 v18, 32, v17')
    for r in range(20,24): a(f'v_mov_b32 v{r}, 0x3f803f80')
    a('s_waitcnt vmcnt(0) lgkmcnt(0)')
    FR=24; D=96
    rd={}
    for al in range(6):
        for ks in range(2):
            for n in range(2):
                f=FR+(al*2+ks)*4+2*n
                rd[al,ks]=a.ds(f'ds_read_b64_tr_b16 v[{f}:{f+1}], v{17+(al&1)} offset:{(al>>1)*4096+1024*ks+256*n}')
    for al in range(6):
        for ks in range(2):
            a.wait_lg(rd[al,ks])
            f=FR+(al*2+ks)*4; d=f'v[{D+16*al}:{D+16*al+15}]'
            a(f'v_mfma_f32_32x32x16_bf16 {d}, v[20:23], v[{f}:{f+3}], {"0" if ks==0 else d}')
    a('v_cmp_le_u32 vcc, 32, v1')
    a(f's_add_u32 s12, {sTAG}, 1')
    a(f's_lshl_b32 s8, {sCG}, 14\ns_lshl_b32 s9, {sRB}, 10\ns_add_u32 s8, s8, s9\ns_add_u32 s8, s8, {CSUM}')
    a('v_lshlrev_b32 v16, 4, v1\nv_mov_b32 v27, s12')
    for e in range(3): a(f'v_cndmask_b32 v{24+e}, v{D+16*e}, v{D+16*(e+3)}, vcc')
    a(f'buffer_store_dwordx4 v[24:27], v16, {sWs}, s8 offen sc1')
    a(f's_branch {Lk2}')
    a(f'{Lk}:')
    a('s_barrier')
    a('s_waitcnt vmcnt(0) lgkmcnt(0)')
    a(f'{Lk2}:')
    a.lg_done=a.lg_issued; a.vm_done=a.vm_issued
    stamp(a,1)
    a('s_lshl_b32 s8, s15, 16\ns_and_b32 s9, s15, 0xffff0000\ns_cmp_eq_u32 s14, 0\ns_cselect_b32 s8, s8, s9')
    a(f'v_mov_b32 v8, s8\nv_mul_f32 v8, {LOG2E}, v8\nv_exp_f32 v8, v8\nv_cvt_pk_bf16_f32 v8, v8, v8\nv_and_b32 v8, 0xffff0000, v8')
    a(f's_mul_i32 s8, s14, 8448\ns_add_u32 s13, s8, {KB[0]}')
    a('v_lshl_add_u32 v9, v1, 3, s13')
    a('v_and_b32 v10, 15, v1\nv_mul_u32_u24 v10, 528, v10\nv_lshrrev_b32 v11, 4, v1\nv_lshl_add_u32 v10, v11, 4, v10\nv_add_u32 v10, s13, v10')
    W=lambda mu,e: 32+40*mu+2*e
    X=lambda mu,k: 32+40*mu+18+2*k
    T=lambda mu,k: 12+8*mu+k
    def both(f):
        l0=f(0); l1=f(1)
        for x,y in zip(l0,l1): a(x); a(y)
    def unpack(mu,dst,src): return f'v_lshlrev_b32 v{dst}, 16, v{src}' if mu==0 else f'v_and_b32 v{dst}, 0xffff0000, v{src}'
    def prep(mu):
        t=lambda k:T(mu,k)
        return [unpack(mu,t(0),4), unpack(mu,t(1),5), unpack(mu,X(mu,0),6), unpack(mu,X(mu,0)+1,7),
            f'v_mul_f32 v{t(0)}, {LOG2E}, v{t(0)}', f'v_exp_f32 v{t(0)}, v{t(0)}',
            f'v_mul_f32 v{t(1)}, v{t(1)}, v8',
            f'v_cvt_pk_bf16_f32 v{t(0)}, v{t(0)}, v{t(0)}', f'v_and_b32 v{t(0)}, 0xffff0000, v{t(0)}',
            f'v_mul_f32 v{t(0)}, v{t(0)}, v8', f'v_mul_f32 v{t(0)}, 0xbfb8aa3b, v{t(0)}',
            f'v_mul_f32 v{t(1)}, 0x3e22f983, v{t(1)}',
            f'v_mul_f32 v{X(mu,0)}, v{X(mu,0)}, v8', f'v_mul_f32 v{X(mu,0)+1}, v{X(mu,0)+1}, v8',
            f'v_add_f32 v{X(mu,0)}, v{X(mu,0)}, v{X(mu,0)}', f'v_add_f32 v{X(mu,0)+1}, v{X(mu,0)+1}, v{X(mu,0)+1}',
            f'v_mul_f32 v{t(2)}, 0x43000000, v{t(0)}', f'v_mul_f32 v{t(3)}, 0x43000000, v{t(1)}',
            f'v_fract_f32 v{t(1)}, v{t(1)}', f'v_fract_f32 v{t(3)}, v{t(3)}',
            f'v_exp_f32 v{t(0)}, v{t(0)}', f'v_exp_f32 v{t(2)}, v{t(2)}',
            f'v_cos_f32 v{W(mu,1)}, v{t(1)}', f'v_sin_f32 v{W(mu,1)+1}, v{t(1)}',
            f'v_cos_f32 v{W(mu,0)}, v{t(3)}', f'v_sin_f32 v{W(mu,0)+1}, v{t(3)}',
            f'v_mul_f32 v{W(mu,1)}, v{W(mu,1)}, v{t(0)}', f'v_mul_f32 v{W(mu,1)+1}, v{W(mu,1)+1}, v{t(0)}',
            f'v_mul_f32 v{W(mu,0)}, v{W(mu,0)}, v{t(2)}', f'v_mul_f32 v{W(mu,0)+1}, v{W(mu,0)+1}, v{t(2)}']
    both(prep)
    def cmul(d,x,y):
        both(lambda mu: [f'v_mul_f32 v{d(mu)}, v{x(mu)}, v{y(mu)}', f'v_mul_f32 v{d(mu)+1}, v{x(mu)}, v{y(mu)+1}',
                         f'v_fma_f32 v{d(mu)}, -v{x(mu)+1}, v{y(mu)+1}, v{d(mu)}', f'v_fmac_f32 v{d(mu)+1}, v{x(mu)+1}, v{y(mu)}'])
    wr=[0]
    def put(row, x, neg=False):
        p=28+2*(wr[0]&1); wr[0]+=1
        for mu in range(2): a(f'v_cvt_pk_bf16_f32 v{p+mu}, v{x(mu)}, {"-" if neg else ""}v{x(mu)+1}')
        a.ds(f'ds_write_b64 v9, v[{p}:{p+1}] offset:{528*row}')
    w=lambda e: (lambda mu: W(mu,e)); x=lambda k: (lambda mu: X(mu,k))
    cmul(w(2),w(1),w(1)); cmul(w(4),w(2),w(2)); cmul(w(8),w(4),w(4))
    BF=128; AF=160; DK=112
    put(0,x(0),True)
    for j in range(1,16):
        cmul(x(j&1), x((j-1)&1), w(8)); put(j, x(j&1), True)
    for k in range(8): a.ds(f'ds_read_b128 v[{BF+4*k}:{BF+4*k+3}], v10 offset:{64*k}')
    def tile(ti):
        rd=[a.ds(f'ds_read_b128 v[{AF+32*ti+4*k}:{AF+32*ti+4*k+3}], v10 offset:{64*k}') for k in range(8)]
        return rd
    def mm(ti, rd):
        a.wait_lg(rd[7])
        d=f'v[{DK+4*ti}:{DK+4*ti+3}]'
        for k in range(8): a(f'v_mfma_f32_16x16x32_bf16 {d}, v[{AF+32*ti+4*k}:{AF+32*ti+4*k+3}], v[{BF+4*k}:{BF+4*k+3}], {"0" if k==0 else d}')
    a('v_mov_b32 v30, 0x3f80\nv_mov_b32 v31, 0x3f80'); a.ds('ds_write_b64 v9, v[30:31]'); wr[0]=0
    cmul(w(3),w(2),w(1)); cmul(w(5),w(4),w(1)); cmul(w(6),w(4),w(2)); cmul(w(7),w(4),w(3))
    for e in range(1,8): put(e,w(e))
    put(8,w(0))
    for e in range(1,8):
        cmul(x(e&1), w(0), w(e)); put(8+e, x(e&1))
    r0=tile(0)
    P=lambda m: x(2+(m&1))
    cmul(P(2),w(0),w(0))
    for m in (2,3):
        if m==3: cmul(P(3),P(2),w(0))
        put(4*(m-2),P(m))
        for e in (1,2,3):
            cmul(x(e&1),P(m),w(2*e)); put(4*(m-2)+e,x(e&1))
    mm(0,r0)
    for m in range(4,8):
        cmul(P(m),P(m-1),w(0)); put(8+2*(m-4),P(m))
        cmul(x(0),P(m),w(4)); put(9+2*(m-4),x(0))
    r1=tile(1)
    for m in range(8,17):
        cmul(P(m),P(m-1),w(0)); put(m-8,P(m))
        if m==11: mm(1,r1)
    r2=tile(2)
    a('v_and_b32 v12, 15, v1\nv_lshrrev_b32 v13, 4, v1')
    a('s_add_u32 s12, s13, 64')
    a('v_lshrrev_b32 v14, 1, v13\nv_lshlrev_b32 v14, 7, v14\nv_and_b32 v15, 1, v13\nv_lshl_add_u32 v14, v15, 2, v14\nv_lshl_add_u32 v14, v12, 3, v14\nv_lshl_add_u32 v14, v14, 2, s12')
    a('v_cmp_gt_u32 vcc, 2, v13\nv_lshlrev_b32 v15, 1, v12\nv_lshlrev_b32 v16, 2, v12\nv_cndmask_b32 v15, v15, v16, vcc\nv_lshl_add_u32 v15, v13, 6, v15\nv_lshl_add_u32 v15, v15, 2, s12')
    a('v_mov_b32 v16, 128\nv_cndmask_b32 v16, v16, 8, vcc\nv_add_u32 v16, v16, v15')
    a('v_lshl_add_u32 v17, v13, 6, v12\nv_lshl_add_u32 v17, v17, 2, s12')
    a('v_lshl_add_u32 v18, v1, 3, s12')
    a('v_lshl_add_u32 v19, v1, 4, s13')
    a('v_cmp_eq_u32 vcc, 0, v1\nv_add_u32 v20, 4, v18\nv_cndmask_b32 v20, v20, v18, vcc')
    a('v_mov_b32 v21, 0\nv_mov_b32 v22, s13')
    mm(2,r2)
    a.ds(f'ds_write_b32 v22, v21 offset:60')
    a.ds(f'ds_write_b128 v14, v[{DK}:{DK+3}]')
    a.ds(f'ds_write_b64 v15, v[{DK+4}:{DK+5}] offset:1024')
    a.ds(f'ds_write_b64 v16, v[{DK+6}:{DK+7}] offset:1024')
    for r in range(4): a.ds(f'ds_write_b32 v17, v{DK+8+r} offset:{2048+64*r}')
    E=32
    a.ds(f'ds_read_b64 v[{E}:{E+1}], v18 offset:2048'); a.ds(f'ds_read_b32 v{E+2}, v18 offset:2056')
    a.ds(f'ds_read_b64 v[{E+4}:{E+5}], v18 offset:1536'); a.ds(f'ds_read_b32 v{E+6}, v18 offset:1544')
    a.ds(f'ds_read_b64 v[{E+8}:{E+9}], v18 offset:1024'); a.ds(f'ds_read_b32 v{E+10}, v18 offset:1032')
    a.ds(f'ds_read_b32 v{E+11}, v20 offset:1020')
    a.ds(f'ds_read_b128 v[{E+12}:{E+15}], v19 offset:64'); a.ds(f'ds_read_b32 v{E+16}, v19 offset:60')
    if DEBUGK:
        for i in range(12): a.ds(f'ds_read_b32 v{200+i}, v23 offset:0') if False else None
    a('v_sub_u32 v23, 63, v1')
    a('v_lshl_add_u32 v24, v23, 5, s13')
    a('v_lshl_add_u32 v25, v23, 4, s13')
    a('v_lshl_add_u32 v26, v23, 3, s13')
    a('v_and_b32 v27, 7, v1\nv_lshl_add_u32 v27, v27, 2, s13')
    a.wait_lg_all()
    O=56
    def pk(d,lo,hi): a(f'v_cvt_pk_bf16_f32 v{d}, v{lo}, v{hi}')
    A_,B_,C_=E,E+1,E+2
    for k,(lo,hi) in enumerate([(C_,C_),(C_,C_),(B_,B_),(B_,B_),(B_,B_),(B_,A_),(A_,A_),(A_,A_)]): pk(O+k,lo,hi)
    for k,(lo,hi) in enumerate([(C_,C_),(C_,B_),(B_,B_),(B_,B_),(B_,B_),(A_,A_),(A_,A_),(A_,A_)]): pk(O+8+k,lo,hi)
    a.ds(f'ds_write_b128 v24, v[{O}:{O+3}]'); a.ds(f'ds_write_b128 v24, v[{O+4}:{O+7}] offset:16')
    a.ds(f'ds_write_b128 v24, v[{O+8}:{O+11}] offset:4160'); a.ds(f'ds_write_b128 v24, v[{O+12}:{O+15}] offset:4176')
    A_,B_,C_=E+4,E+5,E+6
    for k,(lo,hi) in enumerate([(C_,C_),(B_,B_),(B_,A_),(A_,A_),(C_,B_),(B_,B_),(A_,A_),(A_,A_)]): pk(O+16+k,lo,hi)
    a.ds(f'ds_write_b128 v25, v[{O+16}:{O+19}] offset:2048'); a.ds(f'ds_write_b128 v25, v[{O+20}:{O+23}] offset:{2048+4160}')
    A_,B_,C_=E+8,E+9,E+10
    for k,(lo,hi) in enumerate([(C_,B_),(A_,A_),(B_,A_),(A_,E+11)]): pk(O+24+k,lo,hi)
    a.ds(f'ds_write_b64 v26, v[{O+24}:{O+25}] offset:3072'); a.ds(f'ds_write_b64 v26, v[{O+26}:{O+27}] offset:{3072+4160}')
    k0=E+12
    for k,(lo,hi) in enumerate([(k0+3,k0+2),(k0+1,k0),(k0+2,k0+1),(k0,E+16)]): pk(O+28+k,lo,hi)
    a.ds(f'ds_write_b64 v26, v[{O+28}:{O+29}] offset:3584'); a.ds(f'ds_write_b64 v26, v[{O+30}:{O+31}] offset:{3584+4160}')
    a.ds('ds_write_b32 v27, v21 offset:4096'); a.ds(f'ds_write_b32 v27, v21 offset:{4096+4160}')
    a(f's_lshl_b32 s8, s14, 2\nv_add_u32 v23, s8, v2')
    signal(a, 23, KREADY, 1, 24)
    if DEBUGK:
        a.wait_lg_all()
        a(f's_lshl_b32 s6, {sP}, 1\ns_add_u32 s6, s6, s14\ns_mul_i32 s6, s6, 8448\ns_add_u32 s6, s6, {DBGK}')
        a('v_lshlrev_b32 v24, 4, v1\nv_add_u32 v25, s13, v24')
        for i in range(9):
            a(f'ds_read_b128 v[32:35], v25 offset:{1024*i}\ns_waitcnt lgkmcnt(0)')
            if i==8: a('s_mov_b64 exec, 0xffff')
            a(f'buffer_store_dwordx4 v[32:35], v24, {sWs}, s6 offen\ns_add_u32 s6, s6, 1024\ns_waitcnt vmcnt(0)')
        a('s_mov_b64 exec, -1')
    stamp(a,2)
    return a

def conv():
    a = Asm()
    a('L_conv:')
    a('s_setprio 0')
    a(f's_and_b32 s14, {sWV}, 1\ns_bfe_u32 s15, {sWV}, 0x10001')
    a(f's_lshl_b32 s7, {sP}, 2')
    a('s_load_dword s11, s[28:29], s7')
    a(f's_mul_i32 s13, s14, 8448\ns_add_u32 s13, s13, {KB[0]}')
    a(f's_mul_i32 s12, s14, 4608\ns_add_u32 s12, s12, {UB}')
    a('s_lshl_b32 s10, s15, 8')
    a('v_and_b32 v3, 15, v1\nv_lshrrev_b32 v4, 4, v1')
    a('v_lshrrev_b32 v5, 1, v3\nv_lshl_add_u32 v5, v4, 2, v5\nv_lshlrev_b32 v5, 2, v5\nv_and_b32 v6, 1, v3\nv_mul_u32_u24 v6, 4160, v6\nv_add_u32 v5, v5, v6')
    a(f's_add_u32 s8, s13, {4160+4108-512}\ns_sub_u32 s8, s8, s10')
    a('v_sub_u32 v8, s8, v5')
    for ap in range(1,4): a(f'v_subrev_u32 v{8+ap}, {1024*ap}, v8')
    a('v_lshlrev_b32 v5, 5, v3\nv_lshlrev_b32 v6, 4, v4\nv_sub_u32 v5, v5, v6')
    a(f's_add_u32 s8, s12, 528\ns_sub_u32 s8, s8, s10')
    a('v_add_u32 v12, s8, v5')
    a(f's_lshl_b32 s8, s14, 2\nv_add_u32 v13, s8, v2')
    poll_lds(a, 2, UREADY, 1, 20, sleep=1)
    poll_lds(a, 13, KREADY, 1, 20, sleep=1)
    stamp(a,4) if False else None
    ACC=32; FA=lambda par,k: 64+64*par+4*k; FB=lambda par,k: 96+64*par+4*k
    def reads(par):
        l=[]
        for k in range(8):
            ap=k>>1; o=(1-(k&1))*128
            l.append(f'ds_read_b128 v[{FB(par,k)}:{FB(par,k)+3}], v12 offset:{512*k}')
            l.append(f'ds_read2_b32 v[{FA(par,k)}:{FA(par,k)+1}], v{8+ap} offset0:{o} offset1:{o+1}')
            l.append(f'ds_read2_b32 v[{FA(par,k)+2}:{FA(par,k)+3}], v{8+ap} offset0:{o+2} offset1:{o+3}')
        return l
    def adv(): return [f'v_subrev_u32 v{r}, 64, v{r}' for r in (8,9,10,11,12)]
    for x in reads(0): a.ds(x)
    first=set()
    for it in range(4):
        par=it&1
        a.wait_lg_all()
        fill=[]
        if it<3: fill=[('v',x) for x in adv()]+[('d',x) for x in reads(par^1)]
        pairs=[(aa,b) for s in range(8) for aa in range(s+1) for b in [s-aa]]
        pairs.sort(key=lambda p:(p[0],p[1]))
        for n,(aa,b) in enumerate(pairs):
            tau=aa+b; d=f'v[{ACC+4*tau}:{ACC+4*tau+3}]'
            c=d if tau in first else '0'; first.add(tau)
            a(f'v_mfma_f32_16x16x32_bf16 {d}, v[{FA(par,aa)}:{FA(par,aa)+3}], v[{FB(par,b)}:{FB(par,b)+3}], {c}')
            if fill:
                k,x=fill.pop(0)
                (a.ds if k=='d' else a)(x)
        assert not fill
        if it==1:
            L=lab('c')
            a(f's_cmp_lg_u32 {sWV}, 5\ns_cbranch_scc1 {L}')
            a('s_waitcnt vmcnt(0)\nv_mov_b32 v20, 14')
            a(f'ds_write_b32 v2, v20 offset:{WFULL}')
            a(f'{L}:')
    a(f's_sub_u32 s8, {sWV}, 4\ns_lshl_b32 s8, s8, 2\nv_add_u32 v14, s8, v2\ns_xor_b32 s8, s8, 8\nv_add_u32 v15, s8, v2')
    signal(a, 14, CDONE, 1, 20)
    a('v_lshlrev_b32 v5, 5, v3\nv_lshl_add_u32 v5, v4, 3, v5\ns_lshl_b32 s8, s15, 11\ns_add_u32 s8, s8, s12\nv_add_u32 v16, s8, v5')
    for q in range(4): a.ds(f'ds_read_b64 v[{64+2*q}:{65+2*q}], v16 offset:{512+512*q}')
    L=lab('c'); L2=lab('c')
    a(f's_cmp_eq_u32 s15, 0\ns_cbranch_scc1 {L}')
    a('s_nop 7')
    for r in range(16): a(f'v_mov_b32 v{96+r}, v{ACC+16+r}\nv_mov_b32 v{112+r}, v{ACC+r}')
    a(f's_branch {L2}')
    a(f'{L}:')
    a('s_nop 7')
    for r in range(16): a(f'v_mov_b32 v{96+r}, v{ACC+r}\nv_mov_b32 v{112+r}, v{ACC+16+r}')
    a(f'{L2}:')
    poll_lds(a, 15, CDONE, 1, 20, sleep=0)
    a('s_lshl_b32 s8, s15, 12\ns_add_u32 s8, s8, s13\nv_lshl_add_u32 v17, v1, 4, s8')
    a('s_xor_b32 s9, s15, 1\ns_lshl_b32 s9, s9, 12\ns_add_u32 s9, s9, s13\nv_lshl_add_u32 v18, v1, 4, s9')
    for q in range(4): a.ds(f'ds_write_b128 v17, v[{112+4*q}:{115+4*q}] offset:{1024*q}')
    signal(a, 14, CXCH, 1, 20)
    a('s_lshl_b32 s8, s11, 16\ns_and_b32 s9, s11, 0xffff0000\ns_cmp_eq_u32 s14, 0\ns_cselect_b32 s11, s8, s9')
    for q in range(4):
        for e in range(4):
            src=64+2*q+(e>>1)
            a(f'v_lshlrev_b32 v21, 16, v{src}' if e%2==0 else f'v_and_b32 v21, 0xffff0000, v{src}')
            a(f'v_fmac_f32 v{96+4*q+e}, s11, v21')
    poll_lds(a, 15, CXCH, 1, 20, sleep=0)
    for q in range(4): a.ds(f'ds_read_b128 v[{112+4*q}:{115+4*q}], v18 offset:{1024*q}')
    a('v_mov_b32 v20, 1')
    a.ds(f'ds_add_u32 v2, v20 offset:{CFIN}') if False else None
    a('s_mov_b64 exec, 1'); a.ds(f'ds_add_u32 v2, v20 offset:{CFIN}'); a('s_mov_b64 exec, -1')
    a('v_and_b32 v5, 1, v4\nv_lshlrev_b32 v5, 9, v5\nv_lshl_add_u32 v5, v3, 5, v5\nv_lshrrev_b32 v6, 1, v4\nv_lshl_add_u32 v5, v6, 4, v5')
    a(f's_lshl_b32 s6, {sP}, 1\ns_add_u32 s6, s6, s14\ns_lshl_b32 s6, s6, 12\ns_lshl_b32 s8, s15, 11\ns_add_u32 s6, s6, s8\ns_add_u32 s6, s6, {SB}')
    a.wait_lg_all()
    for r in range(16): a(f'v_add_f32 v{96+r}, v{96+r}, v{112+r}')
    for pp in range(2):
        o=72+4*pp
        for k in range(4): a(f'v_cvt_pk_bf16_f32 v{o+k}, v{96+8*pp+2*k}, v{97+8*pp+2*k}')
        a(f'v_permlane16_swap_b32 v{o}, v{o+2}\nv_permlane16_swap_b32 v{o+1}, v{o+3}')
        a(f'buffer_store_dwordx4 v[{o}:{o+3}], v5, {sWs}, s6 offen offset:{1024*pp} sc1')
    stamp(a,6)
    a(f's_cmp_eq_u32 {sWV}, 5\ns_cbranch_scc1 L_Btail')
    dump_stamps(a,8)
    a('s_endpgm')
    return a

def wave_G():
    a = Asm(); ool = Asm()
    a('L_G:')
    a.vm_issued=1
    a('s_setprio 3')
    XF=lambda ks: 128+4*ks
    ACC=lambda al: 32+16*al
    FB1=lambda par,al: 96+16*par+4*al
    FB2=lambda k: 16+4*(k&3)
    XD=16; XR=20; TR=5; vP=7; vT=8; vL16=9
    a('v_lshrrev_b32 v3, 3, v1\nv_lshlrev_b32 v3, 10, v3\nv_and_b32 v4, 7, v1\nv_lshrrev_b32 v10, 4, v1\nv_xor_b32 v4, v4, v10')
    a(f'v_lshl_add_u32 v{XD}, v4, 4, v3\nv_xor_b32 v{XD+1}, 64, v{XD}\nv_add_u32 v{XD+1}, 7168, v{XD+1}\nv_add_u32 v{XD+2}, {2*7168}, v{XD}\nv_add_u32 v{XD+3}, {2*7168}, v{XD+1}')
    a(f's_lshl_b32 s6, {sRB}, 2\ns_add_u32 s76, s6, {sWV}')
    a('s_lshl_b32 s6, s76, 15')
    a(f's_lshl_b32 s7, {sWV}, 12')
    xd={}
    def xdma(c,i):
        if i==0 or c>=4:
            a(f's_add_u32 s8, s6, {128*c}')
            a(f's_add_u32 m0, s7, {(c&3)*32768}')
        xd[c]=a.vm(f'buffer_load_dwordx4 v{XD+i}, {sX}, s8 offen offset:{1024*i} lds')
    for c in range(4):
        for i in range(4): xdma(c,i)
    a('s_barrier')
    a('v_and_b32 v3, 31, v1\nv_bfe_u32 v4, v1, 1, 3\nv_lshrrev_b32 v10, 5, v1\nv_xor_b32 v4, v4, v10\nv_lshlrev_b32 v4, 4, v4\nv_lshl_add_u32 v3, v3, 7, v4')
    a(f'v_add_u32 v{XR}, s7, v3')
    for k in range(1,4): a(f'v_xor_b32 v{XR+k}, {32*k}, v{XR}')
    a('v_bfe_u32 v3, v1, 4, 1\nv_lshrrev_b32 v4, 5, v1\nv_bfe_u32 v10, v1, 2, 2\nv_lshl_add_u32 v4, v4, 3, v10\nv_lshlrev_b32 v4, 6, v4')
    a(f'v_and_b32 v10, 3, v1\nv_lshl_add_u32 v4, v10, 3, v4\nv_mul_u32_u24 v10, {4096+32}, v3\nv_add_u32 v{TR}, v4, v10\nv_xor_b32 v{TR+1}, 32, v{TR}')
    a(f's_lshl_b32 s8, {sWV}, 2\nv_add_u32 v{vP}, s8, v2')
    a(f'v_lshlrev_b32 v{vL16}, 4, v1')
    hi=[False]
    def set_hi(want, xr=True):
        if want==hi[0]: return
        op='v_add_u32' if want else 'v_subrev_u32'
        for r in [TR,TR+1]+([XR,XR+1,XR+2,XR+3] if xr else []): a(f'{op} v{r}, 0x10000, v{r}')
        hi[0]=want
    def check_full(val, rd):
        a.wait_lg(rd)
        S=lab('gs'); R=lab('gr')
        a(f'v_readfirstlane_b32 s4, v{vT}')
        a(f's_cmp_lt_u32 s4, {val}\ns_cbranch_scc1 {S}')
        a(f'{R}:')
        ool(f'{S}:')
        poll_lds(ool, 2, WFULL, val, vT, sleep=0)
        ool(f's_branch {R}')
    def rd_flag(): return a.ds(f'ds_read_b32 v{vT}, v2 offset:{WFULL}')
    def prog(v):
        a(f'v_mov_b32 v10, {v}')
        a.ds(f'ds_write_b32 v{vP}, v10 offset:{PROG}')
    fr={}; xr={}
    def tr1(ks,al,n):
        c=ks>>2; f=FB1(ks&1,al)+2*n
        fr[ks,al]=a.ds(f'ds_read_b64_tr_b16 v[{f}:{f+1}], v{TR+(al&1)} offset:{(c&1)*32768+16384+(al>>1)*8192+1024*(ks&3)+256*n}')
    def xread(ks):
        c=ks>>2
        xr[ks]=a.ds(f'ds_read_b128 v[{XF(ks)}:{XF(ks)+3}], v{XR+(ks&3)} offset:{(c&1)*32768}')
    def tr2(k,n):
        ks=k>>1; f=FB2(k)+2*n
        fr['p2',k]=a.ds(f'ds_read_b64_tr_b16 v[{f}:{f+1}], v{TR+(k&1)} offset:{(ks>>2)*8192+1024*(ks&3)+256*n}')
    poll_lds(a, 2, WFULL, 1, vT, sleep=0)
    a.wait_vm(xd[0])
    stamp(a,1)
    xread(0)
    for al in range(4):
        tr1(0,al,0); tr1(0,al,1)
    fl=None
    for ks in range(32):
        c=ks>>2; kk=ks&3
        nxt=ks+1
        if kk==3 and ks<31:
            check_full(c+2, fl); a.wait_vm(xd[c+1]); set_hi(((c+1)&3)>=2)
        if ks==31:
            check_full(9, fl); set_hi(False, xr=False)
        for al in range(4):
            if al==0: a.wait_lg(xr[ks])
            a.wait_lg(fr[ks,al])
            d=f'v[{ACC(al)}:{ACC(al)+15}]'
            a(f'v_mfma_f32_32x32x16_bf16 {d}, v[{FB1(ks&1,al)}:{FB1(ks&1,al)+3}], v[{XF(ks)}:{XF(ks)+3}], {"0" if ks==0 else d}')
            if ks<31:
                if al==0: xread(nxt)
                tr1(nxt,al,0); tr1(nxt,al,1)
            else:
                tr2(al,0); tr2(al,1)
            if al==1 and 1<=c<=4: xdma(c+3,kk)
            if al==3 and kk==2:
                prog(c+1); fl=rd_flag()
    stamp(a,2)
    poll_lds(a, 2, STREADY, 1, vT, sleep=0)
    vC1=11; vQ=12; vM=14
    a(f'v_and_b32 v3, 31, v1\ns_lshl_b32 s8, {sWV}, 7\ns_add_u32 s8, s8, {STL}\nv_lshl_add_u32 v4, v3, 2, s8')
    r0=a.ds(f'ds_read_b32 v13, v4')
    a(f'v_lshlrev_b32 v3, 3, v3\nv_add_u32 v3, {CSA}, v3')
    a(f's_mul_i32 s77, s76, {86*1024}\ns_add_u32 s77, s77, {HB}')
    a(f's_lshl_b32 s8, {sUL}, 11\ns_add_u32 s78, s77, s8')
    a(f's_lshl_b32 s8, {sCG}, 11\ns_add_u32 s77, s77, s8\ns_add_u32 s79, s77, 32768')
    def epi(al):
        A=ACC(al); l=[]
        for r in range(8): l.append(f'v_mul_f32 v{A+8+r}, v{A+r}, v{A+8+r}')
        for r in range(8): l.append(f'v_mul_f32 v{A+r}, v{A+r}, v{vC1}')
        for r in range(8): l.append(f'v_exp_f32 v{A+r}, v{A+r}')
        for r in range(8): l.append(f'v_fma_f32 v{A+r}, v{A+r}, v{vQ}, v{vQ}')
        for r in range(8): l.append(f'v_rcp_f32 v{A+r}, v{A+r}')
        for r in range(8): l.append(f'v_mul_f32 v{A+8+r}, v{A+8+r}, v{A+r}')
        for q in range(4): l.append(f'v_cvt_pk_bf16_f32 v{A+q}, v{A+8+2*q}, v{A+9+2*q}')
        l.append(f'buffer_store_dwordx4 v[{A}:{A+3}], v{vL16}, {sWs}, {["s77","s79","s78"][al>>1]} offen offset:{1024*(al&1)} sc1')
        return l
    def cost(x): return 2 if x.split()[0] in TRANS else 1
    fill=[]
    cs={}
    for k in range(64):
        ks=k>>1; al=4+(k&1)
        if k==28: check_full(10, fl)
        a.wait_lg(fr['p2',k])
        d=f'v[{ACC(al)}:{ACC(al)+15}]'
        a(f'v_mfma_f32_32x32x16_bf16 {d}, v[{FB2(k)}:{FB2(k)+3}], v[{XF(ks)}:{XF(ks)+3}], {"0" if ks==0 else d}')
        if k+4<64: tr2(k+4,0); tr2(k+4,1)
        if k==24: fl=rd_flag()
        if k==27: prog(9)
        if k==59: prog(10)
        if k==0:
            a.wait_lg(r0)
            a(f'v_and_b32 v{vQ}, 0xffff0000, v13\nv_rcp_f32 v{vC1}, v{vQ}\nv_and_b32 v13, 0xffff, v13\nv_xor_b32 v13, 0x8000, v13')
        if k==1:
            a(f'v_mul_f32 v{vC1}, 0xbfb8aa3b, v{vC1}\nv_mul_f32 v{vQ}, v{vQ}, v{vQ}\nv_cmp_gt_u32 vcc, 32, v1\nv_lshl_or_b32 v{vM}, v13, 16, v13')
        if k==2:
            a(f'v_cndmask_b32 v{vM}, 0, v{vM}, vcc\nv_cndmask_b32 v{vM+1}, 0, v13, vcc')
        if k==5:
            for al2 in range(6): cs[al2]=a.ds(f'ds_read_b64 v[{XF(0)+2*al2}:{XF(0)+2*al2+1}], v3 offset:{256*al2}')
        if k in (7,8,9,10):
            al2=k-7; a.wait_lg(cs[al2]); d2=f'v[{ACC(al2)}:{ACC(al2)+15}]'
            a(f'v_mfma_f32_32x32x8_bf16 {d2}, v[{XF(0)+2*al2}:{XF(0)+2*al2+1}], v[{vM}:{vM+1}], {d2}')
        if k==10:
            for al2 in range(4): fill+=epi(al2)
        if k>=11 and fill:
            budget = math.ceil(sum(cost(x) for x in fill)/(64-k))
            while fill and budget>0:
                x=fill.pop(0); budget-=cost(x)
                (a.vm if x.startswith('buffer') else a)(x)
    assert not fill
    stamp(a,3)
    for al2 in (4,5):
        d2=f'v[{ACC(al2)}:{ACC(al2)+15}]'
        a(f'v_mfma_f32_32x32x8_bf16 {d2}, v[{XF(0)+2*al2}:{XF(0)+2*al2+1}], v[{vM}:{vM+1}], {d2}')
    Ls=lab('g')
    a(f's_cmp_eq_u32 {sULV}, 0\ns_cbranch_scc1 {Ls}')
    e4=epi(4); e5=epi(5)
    for x,y in zip(e4,e5): a(x); a(y)
    a(f'{Ls}:')
    a('s_nop 7\ns_nop 7')
    stamp(a,4)
    a(f's_and_b32 s14, {sWV}, 1\ns_lshr_b32 s15, {sWV}, 1')
    a(f's_lshl_b32 s8, {sXCD}, 3\ns_and_b32 s9, {sJ}, 3\ns_lshl_b32 s9, s9, 1\ns_add_u32 s8, s8, s9\ns_add_u32 s76, s8, s14')
    a(f's_mul_i32 s77, s76, {86*1024}\ns_add_u32 s77, s77, {HB}')
    a(f's_mul_i32 s8, s15, {11*1024}\ns_add_u32 s78, s77, s8\ns_add_u32 s78, s78, {64*1024}')
    a(f's_lshl_b32 s8, s15, 14\ns_add_u32 s77, s77, s8')
    poll_lds(a, 2, UREADY, 1, vT, sleep=0)
    HF=lambda i: 84+4*((i+11)%43)
    def hload(tgt, i, cnt):
        if i<32:
            base='s77'; off=(i&15)*1024+(i>>4)*32768; first=(i%4==0)
        else:
            base='s78'; off=(i-32)*1024; first=((i-32)%4==0)
        if first: tgt(f's_add_u32 s8, {base}, {off}')
        ins=f'buffer_load_dwordx4 v[{HF(i)}:{HF(i)+3}], v{vL16}, {sWs}, s8 offen offset:{off&4095} sc1'
        return tgt.vm(ins) if cnt else tgt(ins)
    hl=[hload(a,i,True) for i in range(43)]
    a('v_lshrrev_b32 v4, 5, v1\nv_bfe_u32 v10, v1, 2, 2\nv_lshl_add_u32 v4, v4, 2, v10\nv_lshlrev_b32 v4, 7, v4')
    a('v_bfe_u32 v10, v1, 3, 1\nv_lshl_add_u32 v4, v10, 6, v4\nv_bfe_u32 v10, v1, 4, 1\nv_lshl_add_u32 v4, v10, 5, v4\nv_and_b32 v10, 3, v1\nv_lshl_add_u32 v4, v10, 3, v4')
    a(f's_lshl_b32 s8, s15, 14\ns_add_u32 s8, s8, 0x10000\nv_add_u32 v{TR}, s8, v4\nv_xor_b32 v{TR+1}, 64, v{TR}')
    AC2=lambda dq: 32+16*dq
    WF=lambda k: [16,20,24,28,64,68,72,76][k&7]
    groups=[(0,8,11,0),(8,16,12,32768),(16,24,13,0),(24,32,14,32768),(32,43,15,0)]
    a(f's_mul_i32 s13, {sWV}, 6144\ns_add_u32 s13, s13, {HREG}')
    first=True
    for gi,(i0,i1,full,lofs) in enumerate(groups):
        poll_lds(a, 2, WFULL, full, vT, sleep=0)
        if gi==2:
            a(f'v_subrev_u32 v{TR}, 0x10000, v{TR}\nv_subrev_u32 v{TR+1}, 0x10000, v{TR+1}')
        if gi==4:
            a(f's_mul_i32 s8, s15, {22528-16384}\ns_add_u32 s8, s8, 0x10000\nv_add_u32 v{TR}, s8, v{TR}\nv_add_u32 v{TR+1}, s8, v{TR+1}')
            a('v_lshrrev_b32 v3, 2, v1\nv_and_b32 v4, 3, v1\nv_lshlrev_b32 v4, 4, v4')
            a(f'v_lshl_add_u32 v11, v3, 10, v4\nv_add_u32 v12, {16384-1024}, v11')
            a(f'v_lshl_add_u32 v13, v3, 12, v4\nv_add_u32 v14, {65536-1024}, v13')
            a(f's_lshr_b32 s9, {sJ}, 2\ns_lshl_b32 s9, s9, 1\ns_add_u32 s9, s9, s15')
            a('s_lshl_b32 s10, s76, 15\ns_lshl_b32 s11, s9, 6\ns_add_u32 s10, s10, s11')
            a(f's_lshl_b32 s11, s9, 17\ns_lshl_b32 s12, s76, 6\ns_add_u32 s11, s11, s12\ns_add_u32 s11, s11, {SB}')
            a('s_add_u32 m0, s13, 2048')
            a.vm(f'buffer_load_dwordx4 v11, {sX}, s10 offen lds'); xt=a.vm(f'buffer_load_dwordx4 v12, {sX}, s10 offen offset:1024 lds')
            a('s_mov_b32 m0, s13')
            a.vm(f'buffer_load_dwordx4 v13, {sWs}, s11 offen sc1 lds'); a.vm(f'buffer_load_dwordx4 v14, {sWs}, s11 offen offset:1024 sc1 lds')
        n=2*(i1-i0)
        wf={}
        def trw(k):
            for nn in range(2):
                f=WF(k)+2*nn
                wf[k]=a.ds(f'ds_read_b64_tr_b16 v[{f}:{f+1}], v{TR+(k&1)} offset:{lofs+2048*(k>>1)+1024*nn}')
        for k in range(6): trw(k)
        a.wait_vm(hl[i1-1])
        C=lab('gc'); S=lab('gs')
        a('s_mov_b32 s5, 0x2000')
        a(f'{C}:')
        a(f'v_max3_u32 v10, v{HF(i0)}, v{HF(i0)+1}, v{HF(i0)+2}\nv_mov_b32 v15, v{HF(i0)+3}')
        for i in range(i0+1,i1):
            a(f'v_max3_u32 v10, v10, v{HF(i)}, v{HF(i)+1}\nv_max3_u32 v15, v15, v{HF(i)+2}, v{HF(i)+3}')
        a('v_max_u32 v10, v10, v15\nv_cmp_eq_u32 vcc, -1, v10')
        a(f's_cbranch_vccnz {S}')
        OK=lab('go')
        a(f'{OK}:')
        ool(f'{S}:')
        ool(f's_sub_u32 s5, s5, 1\ns_cmp_eq_u32 s5, 0\ns_cbranch_scc1 {OK}')
        for i in range(i0,i1): hload(ool,i,False)
        ool('s_waitcnt vmcnt(0)')
        ool(f's_branch {C}')
        for k in range(n):
            a.wait_lg(wf[k])
            d=f'v[{AC2(k&1)}:{AC2(k&1)+15}]'; h=HF(i0+(k>>1))
            a(f'v_mfma_f32_32x32x16_bf16 {d}, v[{WF(k)}:{WF(k)+3}], v[{h}:{h+3}], {"0" if (gi==0 and k<2) else d}')
            if k+6<n: trw(k+6)
            if k+6==n-1 and gi<2: prog(11+gi)
        if gi==3: stamp(a,5)
    stamp(a,6)
    a.wait_vm(xt)
    a('v_and_b32 v3, 31, v1\nv_lshlrev_b32 v3, 6, v3\nv_lshrrev_b32 v4, 5, v1\nv_lshl_add_u32 v3, v4, 3, v3\nv_add_u32 v3, s13, v3')
    for q in range(4): a.ds(f'ds_read_b64 v[{64+2*q}:{65+2*q}], v3 offset:{2048+16*q}')
    L=lab('g'); L2=lab('g')
    a(f'v_add_u32 v4, s13, v{vL16}')
    a(f's_cmp_eq_u32 s15, 0\ns_cbranch_scc1 {L}')
    for q in range(4): a(f'ds_write_b128 v4, v[{32+4*q}:{35+4*q}] offset:{2048+1024*q}')
    for r in range(16): a(f'v_mov_b32 v{32+r}, v{48+r}')
    a(f's_branch {L2}')
    a(f'{L}:')
    a('s_nop 7')
    for q in range(4): a(f'ds_write_b128 v4, v[{48+4*q}:{51+4*q}] offset:{2048+1024*q}')
    a(f'{L2}:')
    a(f's_xor_b32 s8, {sWV}, 2\ns_mul_i32 s8, s8, 6144\ns_add_u32 s8, s8, {HREG}\nv_add_u32 v10, s8, v{vL16}')
    a('v_lshrrev_b32 v5, 5, v1\nv_bfe_u32 v6, v1, 2, 2\nv_lshl_add_u32 v5, v5, 2, v6\nv_lshlrev_b32 v5, 6, v5\nv_bfe_u32 v6, v1, 4, 1\nv_lshl_add_u32 v5, v6, 5, v5\nv_and_b32 v6, 3, v1\nv_lshl_add_u32 v5, v6, 3, v5\nv_add_u32 v5, s13, v5')
    a.wait_lg_all()
    a('s_barrier')
    for q in range(4): a.ds(f'ds_read_b128 v[{48+4*q}:{51+4*q}], v10 offset:{2048+1024*q}')
    a.wait_lg_all()
    for r in range(16): a(f'v_add_f32 v{32+r}, v{32+r}, v{48+r}')
    for r in range(16): a(f'v_mul_f32 v{48+r}, 0xbfb8aa3b, v{32+r}')
    for r in range(16): a(f'v_exp_f32 v{48+r}, v{48+r}')
    for r in range(16): a(f'v_add_f32 v{48+r}, 1.0, v{48+r}')
    for r in range(16): a(f'v_rcp_f32 v{48+r}, v{48+r}')
    for r in range(16): a(f'v_mul_f32 v{32+r}, v{32+r}, v{48+r}')
    C=lab('gc'); S=lab('gs'); OK=lab('go')
    a('s_mov_b32 s5, 0x2000')
    a(f'{C}:')
    a('s_waitcnt vmcnt(0)')
    for q in range(4): a(f'ds_read_b64_tr_b16 v[{72+2*q}:{73+2*q}], v5 offset:{512*q}')
    a('s_waitcnt lgkmcnt(0)')
    a('v_pk_max_u16 v15, v72, v73\nv_pk_max_u16 v10, v74, v75\nv_pk_max_u16 v15, v15, v76\nv_pk_max_u16 v10, v10, v77\nv_pk_max_u16 v15, v15, v78\nv_pk_max_u16 v10, v10, v79\nv_pk_max_u16 v10, v10, v15')
    a('v_lshlrev_b32 v15, 16, v10\nv_max_u32 v10, v10, v15\nv_cmp_le_u32 vcc, 0xffff0000, v10')
    a(f's_cbranch_vccnz {S}')
    a(f'{OK}:')
    ool(f'{S}:')
    ool(f's_sub_u32 s5, s5, 1\ns_cmp_eq_u32 s5, 0\ns_cbranch_scc1 {OK}')
    ool(f'buffer_load_dwordx4 v13, {sWs}, s11 offen sc1 lds\nbuffer_load_dwordx4 v14, {sWs}, s11 offen offset:1024 sc1 lds')
    ool(f's_branch {C}')
    for r in range(16):
        sx=64+(r>>1); ss=72+(r>>1)
        if r%2==0: a(f'v_lshlrev_b32 v{48+r}, 16, v{sx}\nv_lshlrev_b32 v{80+r}, 16, v{ss}')
        else: a(f'v_and_b32 v{48+r}, 0xffff0000, v{sx}\nv_and_b32 v{80+r}, 0xffff0000, v{ss}')
    for r in range(16): a(f'v_fmac_f32 v{48+r}, v{80+r}, v{32+r}')
    for q in range(8): a(f'v_cvt_pk_bf16_f32 v{32+q}, v{48+2*q}, v{49+2*q}')
    for q in range(4): a(f'ds_write_b64 v3, v[{32+2*q}:{33+2*q}] offset:{16*q}')
    a('ds_read_b128 v[40:43], v4\nds_read_b128 v[44:47], v4 offset:1024')
    a('s_waitcnt lgkmcnt(1)')
    a(f'buffer_store_dwordx4 v[40:43], v11, {sOut}, s10 offen')
    a('s_waitcnt lgkmcnt(0)')
    a(f'buffer_store_dwordx4 v[44:47], v12, {sOut}, s10 offen offset:1024')
    if STAMPS:
        a('s_waitcnt vmcnt(0)')
        stamp(a,7)
    dump_stamps(a,8)
    a('s_endpgm')
    a.l += ool.l
    return a

main = Asm()
prologue(main)
B, Bt = wave_B()
parts = [main, wave_G(), wave_A(), B, wave_K(), conv(), Bt]
lines=[]
tot=0
for p in parts:
    l, added = hazard_pass(p.l, verbose='--vpad' in sys.argv)
    tot+=added
    lines += l
lines += ['L_exit:', 's_endpgm', 'L_end:']
body = Asm(); body.l = lines
k = kernel_text(KN, body.text(), vgpr=256, sgpr=100)
open(OUT,'w').write(file_text([(KN,256,512,163840)],[k], single=True))
print('nop states added', tot, 'lines', len(lines))
```

```python
import sys, math
from asmlib import *

def opt(name, default):
    for x in sys.argv:
        if x.startswith(f'--{name}='): return int(x.split('=')[1])
    return default
STAMPS = '--stamps' in sys.argv
DEBUGK = '--debugk' in sys.argv
SPIN = opt('spin', 0)
LAG = opt('lag', 30)
ROT = opt('rot', 2)
CLRAT = opt('clrat', 8)
NT = 'nt' if '--nt' in sys.argv else ''
OUT = [x for x in sys.argv[1:] if not x.startswith('--')][0]

EPOCH=0; STATS=0x10000; CSUM=0x20000; XNT=0x100000; HB=0x800000; SB=0xE00000; DBGK=0x1100000; STAMP=0xF000000
HROW=88*1024
STG=45056
HREG=135168
KB=[HREG, HREG+8448]
UB=HREG+16896
CSA=HREG+26112; STL=CSA+1536; SYNC=STL+512
WFULL=0; PROG=16; STREADY=32; UREADY=36; KREADY=40; CDONE=48; CXCH=64; CFIN=80; CSREADY=84; CLRDONE=88; ISSUED=92
LOG2E=0x3fb8aa3b
sX='s[44:47]'; sWg='s[48:51]'; sWu='s[52:55]'; sWd='s[56:59]'; sOut='s[60:63]'; sWs='s[64:67]'
sTAG='s68'; sXCD='s69'; sJ='s70'; sRB='s71'; sCG='s72'; sU0='s73'; sULV='s74'; sP='s75'; sWV='s3'
NST=8
uid=[0]
def lab(p):
    uid[0]+=1; return f'L{p}{uid[0]}'

def stamp(a, k):
    if not STAMPS: return
    a(f's_memrealtime s[{80+2*k}:{81+2*k}]')
    a.wait_lg_all()
def dump_stamps(a):
    if not STAMPS: return
    a('s_mov_b64 exec, 1')
    a(f's_lshl_b32 s4, {sWV}, 3')
    for k in range(NST):
        a(f's_add_u32 s5, s4, {k}\ns_lshl_b32 s5, s5, 11\ns_lshl_b32 s6, s2, 3\ns_add_u32 s5, s5, s6\ns_add_u32 s5, s5, {STAMP}')
        a(f'v_mov_b32 v4, s{80+2*k}\nv_mov_b32 v5, s{81+2*k}\nv_mov_b32 v3, 0')
        a(f'buffer_store_dwordx2 v[4:5], v3, {sWs}, s5 offen')
    a('s_waitcnt vmcnt(0)')

def poll_lds(a, vaddr, off, val, vt, sleep=1, min4=False):
    L=lab('p'); E=lab('pe')
    a('s_mov_b32 s5, 0x8000')
    a(f'{L}:')
    if min4:
        a(f'ds_read_b128 v[{vt}:{vt+3}], v{vaddr} offset:{off}')
        a('s_waitcnt lgkmcnt(0)')
        a(f'v_min3_u32 v{vt}, v{vt}, v{vt+1}, v{vt+2}\nv_min_u32 v{vt}, v{vt}, v{vt+3}')
    else:
        a(f'ds_read_b32 v{vt}, v{vaddr} offset:{off}')
        a('s_waitcnt lgkmcnt(0)')
    a(f'v_readfirstlane_b32 s4, v{vt}')
    a(f's_cmp_ge_u32 s4, {val}\ns_cbranch_scc1 {E}')
    if sleep: a(f's_sleep {sleep}')
    a(f's_sub_u32 s5, s5, 1\ns_cmp_lg_u32 s5, 0\ns_cbranch_scc1 {L}')
    a(f'{E}:')
    a.lg_done = a.lg_issued

def signal(a, vaddr, off, val, vt):
    a(f'v_mov_b32 v{vt}, {val}')
    a.ds(f'ds_write_b32 v{vaddr}, v{vt} offset:{off}')

def prologue(a):
    a('s_cmp_ge_u32 s2, 256\ns_cbranch_scc1 L_exit')
    a('s_load_dwordx16 s[16:31], s[0:1], 0')
    a('s_load_dwordx8 s[32:39], s[0:1], 64')
    a('s_load_dwordx4 s[40:43], s[0:1], 96')
    if STAMPS or SPIN: a('s_memrealtime s[80:81]')
    a('v_lshrrev_b32 v2, 6, v0')
    a('v_and_b32 v1, 63, v0')
    a(f'v_readfirstlane_b32 {sWV}, v2')
    a(f's_and_b32 {sXCD}, s2, 7\ns_lshr_b32 {sJ}, s2, 3')
    a(f's_lshr_b32 s4, {sXCD}, 2\ns_lshl_b32 s4, s4, 3\ns_and_b32 s5, {sJ}, 7\ns_add_u32 {sRB}, s4, s5')
    a(f's_and_b32 s4, {sXCD}, 3\ns_lshr_b32 s5, {sJ}, 3\ns_lshl_b32 s6, s4, 2\ns_add_u32 {sCG}, s6, s5')
    a(f's_mul_i32 s6, s4, 11\ns_mul_i32 s7, s5, 3\ns_add_u32 s6, s6, s7\ns_min_u32 {sU0}, s6, 41')
    a(f's_cmp_lt_u32 {sCG}, 14\ns_cselect_b32 {sULV}, 1, 0\ns_cmp_lt_u32 s5, 3\ns_cselect_b32 {sULV}, {sULV}, 0')
    a(f's_lshl_b32 s4, {sXCD}, 5\ns_add_u32 {sP}, s4, {sJ}')
    for r, sz in [(44,2097152),(48,1409024),(52,1409024),(56,1409024),(60,2097152),(64,0x10000000)]:
        a(f's_mov_b32 s{r+2}, {sz}\ns_mov_b32 s{r+3}, 0x20000')
    a(f'v_mov_b32 v2, {SYNC}')
    a(f's_cmp_lg_u32 {sWV}, 1\ns_cbranch_scc1 L_pfdone')
    a('v_lshl_add_u32 v3, v1, 2, v2\nv_mov_b32 v4, 0\nds_write_b32 v3, v4')
    a('s_getpc_b64 s[4:5]')
    a('L_pc:')
    a(f'v_and_b32 v3, 15, v1\nv_lshlrev_b32 v3, 5, v3\nv_add_u32 v3, {sJ}, v3\nv_lshlrev_b32 v3, 7, v3')
    a('v_min_u32 v3, L_end-L_pc-4, v3')
    a('global_load_dword v167, v3, s[4:5]')
    a('L_pfdone:')
    a('s_waitcnt lgkmcnt(0)')
    for r, b in [(44,16),(48,32),(52,34),(56,36),(60,38),(64,42)]:
        a(f's_mov_b32 s{r}, s{b}\ns_mov_b32 s{r+1}, s{b+1}')
    a(f's_cmp_eq_u32 {sWV}, 0\ns_cbranch_scc1 L_B')
    a(f's_cmp_lt_u32 {sWV}, 5\ns_cbranch_scc1 L_G')
    a(f's_cmp_eq_u32 {sWV}, 5\ns_cbranch_scc1 L_A')
    a(f's_cmp_eq_u32 {sWV}, 6\ns_cbranch_scc1 L_S')
    a('s_branch L_K')

def rot1(a, dst, par=None):
    a(f's_and_b32 s4, {sJ}, 7\ns_lshr_b32 s5, {sJ}, 3')
    if ROT==2:
        a(f's_add_u32 {dst}, s4, s5\ns_and_b32 {dst}, {dst}, 3\ns_lshl_b32 {dst}, {dst}, 1')
        if par: a(f's_lshr_b32 {par}, s4, 2')
    elif ROT==1:
        a(f's_lshl_b32 s5, s5, 1\ns_add_u32 {dst}, s4, s5\ns_and_b32 {dst}, {dst}, 7')
        if par: a(f's_mov_b32 {par}, 0')
def rot2(a, dst):
    a(f's_lshr_b32 s4, {sJ}, 2\ns_add_u32 {dst}, s4, {sJ}\ns_and_b32 {dst}, {dst}, 3')

def wave_B():
    a = Asm()
    a('L_B:')
    a('s_setprio 3')
    XD=8; WA=12; DA=16
    a('v_lshrrev_b32 v3, 3, v1\nv_lshlrev_b32 v3, 10, v3\nv_and_b32 v4, 7, v1\nv_lshrrev_b32 v5, 4, v1\nv_xor_b32 v5, v4, v5')
    a(f'v_lshl_add_u32 v{XD}, v5, 4, v3\nv_xor_b32 v{XD+1}, 64, v{XD}\nv_add_u32 v{XD+1}, 7168, v{XD+1}\nv_add_u32 v{XD+2}, {2*7168}, v{XD}\nv_add_u32 v{XD+3}, {2*7168}, v{XD+1}')
    a(f'v_lshrrev_b32 v6, 2, v1\nv_mul_u32_u24 v6, 2752, v6\nv_and_b32 v7, 3, v1\nv_lshl_add_u32 v{WA}, v7, 4, v6\nv_xor_b32 v7, 2, v7\nv_lshl_add_u32 v{WA+1}, v7, 4, v6')
    rot1(a, 's10')
    a(f's_lshl_b32 s6, {sRB}, 17')
    a(f's_lshl_b32 s7, {sU0}, 6')
    ev=[]
    sent=[0]
    def flush(lag):
        best=None
        for idx,val in ev:
            if val>sent[0] and a.vm_issued-idx>=lag: best=(idx,val)
        if best:
            a.wait_vm(best[0]); signal(a,2,WFULL,best[1],24); sent[0]=best[1]
    def free(v): poll_lds(a, 2, PROG, v, 20, sleep=0, min4=True)
    for r in range(8):
        st=(r%3)*STG
        if r>=3: free(r-2)
        a('s_lshl_b32 s11, s10, 7\ns_add_u32 s11, s11, s6')
        a(f's_mul_i32 s12, s10, {64*2752}\ns_add_u32 s12, s12, s7')
        for g in range(4):
            a(f's_add_u32 s8, s11, {g*32768}\ns_mov_b32 m0, {st+4096*g}')
            for i in range(4): a.vm(f'buffer_load_dwordx4 v{XD+i}, {sX}, s8 offen offset:{1024*i} {NT} lds')
            flush(LAG)
        for ks in range(4):
            a(f's_add_u32 s8, s12, {ks*16*2752}')
            for m in range(2):
                for u in range(3):
                    a(f's_mov_b32 m0, {st+16384+m*12288+ks*3072+u*1024-64*u}')
                    last=a.vm(f'buffer_load_dwordx4 v{WA+m}, {[sWg,sWu][m]}, s8 offen offset:{64*u} lds')
            if ks&1: ev.append((last,4*r+ks+1))
            if r==0 and ks==1: a('s_barrier')
            flush(LAG)
        a('s_add_u32 s10, s10, 1\ns_and_b32 s10, s10, 7')
        if r==0: stamp(a,1)
        if r==1: stamp(a,2)
    signal(a,2,ISSUED,1,25)
    for idx,val in ev:
        if val>sent[0]:
            a.wait_vm(idx); signal(a,2,WFULL,val,24); sent[0]=val
    stamp(a,3)
    a(f'v_lshrrev_b32 v3, 3, v1\nv_lshlrev_b32 v3, 10, v3\nv_and_b32 v4, 7, v1\nv_bfe_u32 v5, v1, 4, 1\nv_lshlrev_b32 v5, 2, v5\nv_xor_b32 v4, v4, v5\nv_lshl_add_u32 v{DA}, v4, 4, v3')
    for i in range(1,4): a(f'v_add_u32 v{DA+i}, {i*7168}, v{DA}')
    a(f's_lshr_b32 s9, {sJ}, 2\ns_lshl_b32 s9, s9, 7')
    rot2(a,'s10')
    for q in range(4):
        st=((2+q)%3)*STG
        if q==1: flush(0) if False else None
        if q>0:
            needval = {1:28,2:32,3:33}[q]
            for idx,val in ev:
                if val>sent[0] and val<=needval:
                    a.wait_vm(idx); signal(a,2,WFULL,val,24); sent[0]=val
        free({0:6,1:7,2:8,3:9}[q])
        a(f's_mul_i32 s11, s10, {176*1024}\ns_add_u32 s11, s11, s9')
        for kh in range(2):
            for i in range(22):
                if i%4==0:
                    a(f's_add_u32 s8, s11, {(kh*704+8*i)*1024}\ns_mov_b32 m0, {st+kh*22528+1024*i}')
                last=a.vm(f'buffer_load_dwordx4 v{DA+(i&3)}, {sWd}, s8 offen offset:{1024*(i&3)} lds')
                if i%4==3: flush(LAG)
        ev.append((last,33+q))
        a('s_add_u32 s10, s10, 1\ns_and_b32 s10, s10, 3')
        if q==2:
            for idx,val in ev:
                if val>sent[0]:
                    a.wait_vm(idx); signal(a,2,WFULL,val,24); sent[0]=val
            stamp(a,4)
    poll_lds(a, 2, CFIN, 4, 20, sleep=1)
    flush(0)
    a.wait_lg_all()
    stamp(a,5)
    dump_stamps(a)
    a('s_endpgm')
    return a

def wave_S():
    a = Asm()
    a('L_S:')
    a('s_mul_i32 s6, s2, 5504\nv_min_u32 v3, 42, v1\nv_lshlrev_b32 v3, 7, v3')
    a(f'buffer_load_dword v30, v3, {sWd}, s6 offen')
    a('s_barrier')
    a('v_lshlrev_b32 v5, 4, v1')
    for r in range(20,24): a(f'v_mov_b32 v{r}, -1')
    for r in range(24,28): a(f'v_mov_b32 v{r}, 0')
    if CLRAT: poll_lds(a, 2, WFULL, CLRAT, 8, sleep=2)
    stamp(a,1)
    a(f's_mul_i32 s8, {sRB}, {4*HROW}\ns_add_u32 s8, s8, {HB}')
    a(f's_lshl_b32 s9, {sU0}, 11\ns_add_u32 s9, s9, s8')
    for g in range(4):
        a(f's_add_u32 s11, s9, {g*HROW}')
        for o in range(4): a(f'buffer_store_dwordx4 v[20:23], v5, {sWs}, s11 offen offset:{1024*o} sc1')
    a(f's_lshl_b32 s11, {sP}, 13\ns_add_u32 s11, s11, {SB}')
    for h in range(2):
        for o in range(4): a(f'buffer_store_dwordx4 v[20:23], v5, {sWs}, s11 offen offset:{1024*o} sc1')
        if h==0: a('s_add_u32 s11, s11, 4096')
    L1=lab('s'); L2=lab('s')
    a(f's_cmp_eq_u32 {sCG}, 15\ns_cbranch_scc0 {L1}')
    for r in range(20,24): a(f'v_mov_b32 v{r}, 0')
    a(f's_branch {L2}')
    a(f'{L1}:')
    L3=lab('s')
    a(f's_cmp_eq_u32 {sULV}, 0\ns_cbranch_scc1 {L3}')
    a(f'{L2}:')
    for g in range(4):
        a(f's_add_u32 s11, s9, {g*HROW+4096}')
        for o in range(2): a(f'buffer_store_dwordx4 v[20:23], v5, {sWs}, s11 offen offset:{1024*o} sc1')
    a(f'{L3}:')
    stamp(a,2)
    a('s_waitcnt vmcnt(0)')
    signal(a,2,CLRDONE,1,8)
    stamp(a,3)
    a('s_branch L_conv')
    return a

def wave_A():
    a = Asm()
    a('L_A:')
    a('s_setprio 2')
    a(f's_load_dword {sTAG}, s[42:43], {EPOCH}')
    SF=64; ST=96
    a('v_lshlrev_b32 v5, 4, v1')
    a(f's_lshl_b32 s6, {sP}, 13')
    for r in range(8):
        a(f's_mov_b32 m0, {UB+1056*r}')
        a.vm(f'buffer_load_dwordx4 v5, {sX}, s6 offen lds')
        if r<7: a('s_add_u32 s6, s6, 1024')
    a('s_barrier')
    a(f'v_and_b32 v3, 7, v1\nv_mul_u32_u24 v3, 1056, v3\nv_bfe_u32 v4, v1, 3, 1\nv_lshl_add_u32 v3, v4, 9, v3\nv_lshrrev_b32 v4, 4, v1\nv_lshl_add_u32 v3, v4, 4, v3\nv_add_u32 v3, {UB}, v3')
    a(f'v_and_b32 v6, 1, v1\nv_bfe_u32 v7, v1, 2, 2\nv_lshl_add_u32 v6, v6, 2, v7\nv_mul_u32_u24 v6, 1056, v6\nv_lshl_add_u32 v6, v4, 4, v6\nv_bfe_u32 v7, v1, 1, 1\nv_lshl_add_u32 v6, v7, 3, v6\nv_add_u32 v6, {UB}, v6')
    for r in range(8,12): a(f'v_mov_b32 v{r}, 0x3f803f80')
    a('v_and_b32 v7, 3, v1')
    a('v_cmp_eq_u32 s[8:9], 1, v7\nv_cmp_eq_u32 s[10:11], 2, v7\nv_cmp_eq_u32 s[12:13], 3, v7')
    a('v_bfe_u32 v7, v1, 2, 2\nv_cmp_eq_u32 s[14:15], v4, v7')
    a('s_waitcnt lgkmcnt(0)')
    a(f's_add_u32 {sTAG}, {sTAG}, 1')
    for i in range(16): a(f'v_mov_b32 v{ST+4*i+2}, {sTAG}\nv_mov_b32 v{ST+4*i+3}, {sTAG}')
    a.wait_vm_all()
    stamp(a,1)
    ld=[a.ds(f'ds_read_b128 v[{SF+4*ks}:{SF+4*ks+3}], v3 offset:{64*ks}') for ks in range(8)]
    for ks in range(8):
        a.wait_lg(ld[ks])
        f=f'v[{SF+4*ks}:{SF+4*ks+3}]'
        a(f'v_mfma_f32_16x16x32_bf16 v[12:15], {f}, {f}, {"0" if ks==0 else "v[12:15]"}')
        a(f'v_mfma_f32_16x16x32_bf16 v[16:19], v[8:11], {f}, {"0" if ks==0 else "v[16:19]"}')
    tr=[a.ds(f'ds_read_b64_tr_b16 v[{ST+4*i}:{ST+4*i+1}], v6 offset:{64*i}') for i in range(16)]
    a('v_cndmask_b32 v24, v12, v13, s[8:9]\nv_cndmask_b32 v24, v24, v14, s[10:11]\nv_cndmask_b32 v24, v24, v15, s[12:13]\nv_cndmask_b32 v24, 0, v24, s[14:15]')
    a('v_mov_b32 v25, v24\nv_permlane32_swap_b32 v24, v25\nv_add_f32 v24, v24, v25')
    a('v_mov_b32 v25, v24\nv_permlane16_swap_b32 v24, v25\nv_add_f32 v24, v24, v25')
    a('v_add_f32_dpp v24, v24, v24 row_ror:8 row_mask:0xf bank_mask:0xf')
    a('v_add_f32_dpp v26, v16, v16 row_ror:8 row_mask:0xf bank_mask:0xf')
    a('v_mul_f32 v26, 0x3b000000, v26')
    a('v_mul_f32 v24, 0x3b000000, v24')
    a('v_fma_f32 v24, -v26, v26, v24\nv_max_f32 v24, 0, v24')
    a('v_cvt_pk_bf16_f32 v27, v24, v24\nv_and_b32 v27, 0xffff0000, v27')
    a('v_add_f32 v27, 0x3727c5ac, v27')
    a('v_cvt_pk_bf16_f32 v27, v27, v27\nv_and_b32 v27, 0xffff0000, v27')
    a('v_sqrt_f32 v27, v27')
    a('v_cvt_pk_bf16_f32 v28, v26, v27')
    a(f'v_mov_b32 v29, {sTAG}')
    a(f's_lshl_b32 s6, {sP}, 6\ns_add_u32 s6, s6, {STATS}')
    a('v_lshlrev_b32 v7, 3, v1')
    a('s_mov_b64 exec, 0xff')
    a.vm(f'buffer_store_dwordx2 v[28:29], v7, {sWs}, s6 offen sc1')
    a('s_mov_b64 exec, -1')
    a('v_and_b32 v27, 0xffff0000, v28\nv_rcp_f32 v27, v27\nv_lshlrev_b32 v26, 16, v28\nv_mul_f32 v26, v26, v27')
    for e in range(4):
        a(f'v_mov_b32_dpp v{32+e}, v27 quad_perm:[{e},{e},{e},{e}] row_mask:0xf bank_mask:0xf')
        a(f'v_mov_b32_dpp v{36+e}, v26 quad_perm:[{e},{e},{e},{e}] row_mask:0xf bank_mask:0xf')
    a.wait_lg_all()
    for i in range(0,16,2):
        for z in range(2):
            s0=ST+4*(i+z); t=40+4*z
            a(f'v_lshlrev_b32 v{t}, 16, v{s0}\nv_and_b32 v{t+1}, 0xffff0000, v{s0}\nv_lshlrev_b32 v{t+2}, 16, v{s0+1}\nv_and_b32 v{t+3}, 0xffff0000, v{s0+1}')
        for z in range(2):
            t=40+4*z
            for e in range(4): a(f'v_fma_f32 v{t+e}, v{t+e}, v{32+e}, -v{36+e}')
        for z in range(2):
            s0=ST+4*(i+z); t=40+4*z
            a(f'v_cvt_pk_bf16_f32 v{s0}, v{t}, v{t+1}\nv_cvt_pk_bf16_f32 v{s0+1}, v{t+2}, v{t+3}')
    stamp(a,2)
    a(f'v_and_b32 v30, 31, v1\nv_lshrrev_b32 v31, 5, v1\nv_mul_u32_u24 v7, 384, v31\nv_lshl_add_u32 v7, v30, 2, v7\nv_add_u32 v7, {CSA}, v7')
    poll_lds(a, 2, CSREADY, 2, 24, sleep=1)
    for e in range(3): a.ds(f'ds_read_b32 v{24+e}, v7 offset:{128*e}')
    a(f'v_mov_b32 v27, {sTAG}')
    a(f's_lshl_b32 s8, {sCG}, 14\ns_lshl_b32 s9, {sRB}, 10\ns_add_u32 s8, s8, s9\ns_add_u32 s8, s8, {CSUM}')
    a.wait_lg_all()
    a.vm(f'buffer_store_dwordx4 v[24:27], v5, {sWs}, s8 offen sc1')
    poll_lds(a, 2, CLRDONE, 1, 28, sleep=1)
    a(f's_lshl_b32 s6, {sP}, 14\ns_add_u32 s6, s6, {XNT}')
    for i in range(16):
        if i%4==0 and i: a('s_add_u32 s6, s6, 4096')
        a.vm(f'buffer_store_dwordx4 v[{ST+4*i}:{ST+4*i+3}], v5, {sWs}, s6 offen offset:{1024*(i&3)} sc1')
    stamp(a,3)
    a(f'v_lshlrev_b32 v7, 3, v1\nv_add_u32 v7, {UB}, v7\nv_mov_b32 v32, 0\nv_mov_b32 v33, 0')
    a.ds('ds_write_b64 v7, v[32:33]'); a.ds('ds_write_b64 v7, v[32:33] offset:4608')
    CS=64; XG=96
    a('v_lshrrev_b32 v6, 2, v1\nv_lshlrev_b32 v6, 14, v6\nv_bfe_u32 v7, v1, 1, 1\nv_lshl_add_u32 v6, v7, 6, v6\nv_and_b32 v3, 1, v1\nv_lshl_add_u32 v6, v3, 4, v6')
    a(f's_lshr_b32 s13, {sP}, 1\ns_lshl_b32 s13, s13, 7\ns_and_b32 s8, {sP}, 1\ns_lshl_b32 s8, s8, 5\ns_add_u32 s13, s13, s8\ns_add_u32 s13, s13, {XNT}')
    a(f'v_lshrrev_b32 v34, 2, v1\nv_lshlrev_b32 v34, 4, v34\nv_lshl_add_u32 v34, v7, 3, v34\nv_mul_u32_u24 v3, 4608, v3\nv_add3_u32 v34, v34, v3, 0\nv_add_u32 v34, {UB+512}, v34')
    a(f's_lshl_b32 s6, {sRB}, 10\ns_add_u32 s6, s6, {STATS}')
    a(f's_and_b32 s8, {sRB}, 8\ns_lshl_b32 s8, s8, 10\ns_lshl_b32 s7, {sCG}, 14\ns_add_u32 s7, s7, s8\ns_add_u32 s7, s7, {CSUM}\ns_add_u32 s15, s7, 4096')
    def xg_loads():
        for i in range(16):
            a(f's_add_u32 s8, s13, {i*16*16384}')
            a(f'buffer_load_dwordx4 v[{XG+4*i}:{XG+4*i+3}], v6, {sWs}, s8 offen sc1')
    def cs_loads():
        a(f'buffer_load_dwordx4 v[24:27], v5, {sWs}, s6 offen sc1')
        for i in range(8): a(f'buffer_load_dwordx4 v[{CS+4*i}:{CS+4*i+3}], v5, {sWs}, {"s7" if i<4 else "s15"} offen offset:{1024*(i&3)} sc1')
    poll_lds(a, 2, ISSUED, 1, 28, sleep=1)
    cs_loads(); xg_loads()
    L=lab('a'); E=lab('a')
    a('s_mov_b32 s12, 0x4000')
    a('s_waitcnt vmcnt(16)')
    a(f'{L}:')
    a('v_min_u32 v30, v25, v27\nv_max_u32 v31, v25, v27')
    for i in range(0,8,2):
        a(f'v_min3_u32 v30, v30, v{CS+4*i+3}, v{CS+4*i+7}\nv_max3_u32 v31, v31, v{CS+4*i+3}, v{CS+4*i+7}')
    a(f'v_cmp_ne_u32 vcc, {sTAG}, v30\nv_cmp_ne_u32 s[8:9], {sTAG}, v31\ns_or_b64 vcc, vcc, s[8:9]')
    a(f's_cbranch_vccz {E}')
    a(f's_sub_u32 s12, s12, 1\ns_cmp_eq_u32 s12, 0\ns_cbranch_scc1 {E}')
    cs_loads()
    a(f's_waitcnt vmcnt(0)\ns_branch {L}')
    a(f'{E}:')
    for st in (4,2,1):
        for i in range(st):
            for e in range(3): a(f'v_add_f32 v{CS+4*i+e}, v{CS+4*i+e}, v{CS+4*(i+st)+e}')
    a(f'v_lshlrev_b32 v30, 3, v1\nv_add_u32 v30, {STL}, v30')
    a.ds('ds_write2_b32 v30, v24, v26 offset0:0 offset1:1')
    a(f'v_and_b32 v30, 31, v1\nv_lshlrev_b32 v30, 3, v30\nv_lshrrev_b32 v31, 5, v1\nv_mul_u32_u24 v31, 768, v31\nv_add3_u32 v30, v30, v31, 0\nv_add_u32 v30, {CSA}, v30')
    a('s_mov_b32 s8, 0x07060302')
    for e in range(3):
        v=CS+e; t=40+4*e
        a(f'v_and_b32 v{t}, 0xffff0000, v{v}\nv_sub_f32 v{t+1}, v{v}, v{t}\nv_and_b32 v{t+2}, 0xffff0000, v{t+1}\nv_sub_f32 v{t+3}, v{t+1}, v{t+2}')
        a(f'v_perm_b32 v{t+2}, v{t+2}, v{t}, s8\nv_lshrrev_b32 v{t+3}, 16, v{t+3}')
        a.ds(f'ds_write_b64 v30, v[{t+2}:{t+3}] offset:{256*e}')
    signal(a, 2, STREADY, 1, 31)
    stamp(a,4)
    L=lab('a'); E=lab('a')
    a('s_mov_b32 s12, 0x4000')
    a(f'{L}:')
    a('s_waitcnt vmcnt(0)')
    a(f'v_min_u32 v24, v{XG+3}, v{XG+7}\nv_max_u32 v25, v{XG+3}, v{XG+7}')
    for i in range(2,16,2):
        a(f'v_min3_u32 v24, v24, v{XG+4*i+3}, v{XG+4*i+7}\nv_max3_u32 v25, v25, v{XG+4*i+3}, v{XG+4*i+7}')
    a(f'v_cmp_ne_u32 vcc, {sTAG}, v24\nv_cmp_ne_u32 s[8:9], {sTAG}, v25\ns_or_b64 vcc, vcc, s[8:9]')
    a(f's_cbranch_vccz {E}')
    a(f's_sub_u32 s12, s12, 1\ns_cmp_eq_u32 s12, 0\ns_cbranch_scc1 {E}')
    a('s_sleep 4')
    xg_loads()
    a(f's_branch {L}')
    a(f'{E}:')
    for i in range(16): a.ds(f'ds_write_b64 v34, v[{XG+4*i}:{XG+4*i+1}] offset:{256*i}')
    signal(a, 2, UREADY, 1, 31)
    stamp(a,5)
    L=lab('a')
    a(f's_cmp_lg_u32 s2, 0\ns_cbranch_scc1 {L}')
    a(f'v_mov_b32 v24, {sTAG}\nv_mov_b32 v25, {EPOCH}\ns_mov_b64 exec, 1')
    a(f'buffer_store_dword v24, v25, {sWs}, 0 offen')
    a('s_mov_b64 exec, -1')
    a(f'{L}:')
    a('s_branch L_conv')
    return a

def wave_K():
    a = Asm()
    a('L_K:')
    a(f's_sub_u32 s14, {sWV}, 7')
    a(f's_lshl_b32 s6, {sP}, 1\ns_add_u32 s6, s6, s14')
    a(f's_lshl_b32 s7, s6, 8\nv_lshl_add_u32 v3, v1, 2, s7')
    a(f's_lshl_b32 s7, {sP}, 2')
    a('s_load_dword s15, s[26:27], s7')
    for i in range(4): a(f'global_load_dword v{4+i}, v3, s[{18+2*i}:{19+2*i}]')
    a('s_barrier')
    a(f's_mul_i32 s8, s14, 8448\ns_add_u32 s13, s8, {KB[0]}')
    a('v_lshl_add_u32 v9, v1, 3, s13')
    a('v_and_b32 v10, 15, v1\nv_mul_u32_u24 v10, 528, v10\nv_lshrrev_b32 v11, 4, v1\nv_lshl_add_u32 v10, v11, 4, v10\nv_add_u32 v10, s13, v10')
    a('s_waitcnt vmcnt(0) lgkmcnt(0)')
    stamp(a,1)
    a('s_lshl_b32 s8, s15, 16\ns_and_b32 s9, s15, 0xffff0000\ns_cmp_eq_u32 s14, 0\ns_cselect_b32 s8, s8, s9')
    a(f'v_mov_b32 v8, s8\nv_mul_f32 v8, {LOG2E}, v8\nv_exp_f32 v8, v8\nv_cvt_pk_bf16_f32 v8, v8, v8\nv_and_b32 v8, 0xffff0000, v8')
    W=lambda mu,e: 32+26*mu+2*e
    X=lambda mu,k: 32+26*mu+18+2*k
    T=lambda mu,k: 12+8*mu+k
    def both(f):
        l0=f(0); l1=f(1)
        for x,y in zip(l0,l1): a(x); a(y)
    def unpack(mu,dst,src): return f'v_lshlrev_b32 v{dst}, 16, v{src}' if mu==0 else f'v_and_b32 v{dst}, 0xffff0000, v{src}'
    def prep(mu):
        t=lambda k:T(mu,k)
        return [unpack(mu,t(0),4), unpack(mu,t(1),5), unpack(mu,X(mu,0),6), unpack(mu,X(mu,0)+1,7),
            f'v_mul_f32 v{t(0)}, {LOG2E}, v{t(0)}', f'v_exp_f32 v{t(0)}, v{t(0)}',
            f'v_mul_f32 v{t(1)}, v{t(1)}, v8',
            f'v_cvt_pk_bf16_f32 v{t(0)}, v{t(0)}, v{t(0)}', f'v_and_b32 v{t(0)}, 0xffff0000, v{t(0)}',
            f'v_mul_f32 v{t(0)}, v{t(0)}, v8', f'v_mul_f32 v{t(0)}, 0xbfb8aa3b, v{t(0)}',
            f'v_mul_f32 v{t(1)}, 0x3e22f983, v{t(1)}',
            f'v_mul_f32 v{X(mu,0)}, v{X(mu,0)}, v8', f'v_mul_f32 v{X(mu,0)+1}, v{X(mu,0)+1}, v8',
            f'v_add_f32 v{X(mu,0)}, v{X(mu,0)}, v{X(mu,0)}', f'v_add_f32 v{X(mu,0)+1}, v{X(mu,0)+1}, v{X(mu,0)+1}',
            f'v_mul_f32 v{t(2)}, 0x43000000, v{t(0)}', f'v_mul_f32 v{t(3)}, 0x43000000, v{t(1)}',
            f'v_fract_f32 v{t(1)}, v{t(1)}', f'v_fract_f32 v{t(3)}, v{t(3)}',
            f'v_exp_f32 v{t(0)}, v{t(0)}', f'v_exp_f32 v{t(2)}, v{t(2)}',
            f'v_cos_f32 v{W(mu,1)}, v{t(1)}', f'v_sin_f32 v{W(mu,1)+1}, v{t(1)}',
            f'v_cos_f32 v{W(mu,0)}, v{t(3)}', f'v_sin_f32 v{W(mu,0)+1}, v{t(3)}',
            f'v_mul_f32 v{W(mu,1)}, v{W(mu,1)}, v{t(0)}', f'v_mul_f32 v{W(mu,1)+1}, v{W(mu,1)+1}, v{t(0)}',
            f'v_mul_f32 v{W(mu,0)}, v{W(mu,0)}, v{t(2)}', f'v_mul_f32 v{W(mu,0)+1}, v{W(mu,0)+1}, v{t(2)}']
    both(prep)
    def cmul(d,x,y):
        both(lambda mu: [f'v_mul_f32 v{d(mu)}, v{x(mu)}, v{y(mu)}', f'v_mul_f32 v{d(mu)+1}, v{x(mu)}, v{y(mu)+1}',
                         f'v_fma_f32 v{d(mu)}, -v{x(mu)+1}, v{y(mu)+1}, v{d(mu)}', f'v_fmac_f32 v{d(mu)+1}, v{x(mu)+1}, v{y(mu)}'])
    wr=[0]
    def put(row, x, neg=False):
        p=28+2*(wr[0]&1); wr[0]+=1
        for mu in range(2): a(f'v_cvt_pk_bf16_f32 v{p+mu}, v{x(mu)}, {"-" if neg else ""}v{x(mu)+1}')
        a.ds(f'ds_write_b64 v9, v[{p}:{p+1}] offset:{528*row}')
    w=lambda e: (lambda mu: W(mu,e)); x=lambda k: (lambda mu: X(mu,k))
    cmul(w(2),w(1),w(1)); cmul(w(4),w(2),w(2)); cmul(w(8),w(4),w(4))
    BF=100; AF=132; DK=84
    put(0,x(0),True)
    for j in range(1,16):
        cmul(x(j&1), x((j-1)&1), w(8)); put(j, x(j&1), True)
    for k in range(8): a.ds(f'ds_read_b128 v[{BF+4*k}:{BF+4*k+3}], v10 offset:{64*k}')
    def tile(ti):
        return [a.ds(f'ds_read_b128 v[{AF+4*k}:{AF+4*k+3}], v10 offset:{64*k}') for k in range(8)]
    def mm(ti, rd):
        a.wait_lg(rd[7])
        d=f'v[{DK+4*ti}:{DK+4*ti+3}]'
        for k in range(8): a(f'v_mfma_f32_16x16x32_bf16 {d}, v[{AF+4*k}:{AF+4*k+3}], v[{BF+4*k}:{BF+4*k+3}], {"0" if k==0 else d}')
    a('v_mov_b32 v30, 0x3f80\nv_mov_b32 v31, 0x3f80'); a.ds('ds_write_b64 v9, v[30:31]'); wr[0]=0
    cmul(w(3),w(2),w(1)); cmul(w(5),w(4),w(1)); cmul(w(6),w(4),w(2)); cmul(w(7),w(4),w(3))
    for e in range(1,8): put(e,w(e))
    put(8,w(0))
    for e in range(1,8):
        cmul(x(e&1), w(0), w(e)); put(8+e, x(e&1))
    r0=tile(0)
    P=lambda m: x(2+(m&1))
    cmul(P(2),w(0),w(0))
    for m in (2,3):
        if m==3: cmul(P(3),P(2),w(0))
        put(4*(m-2),P(m))
        for e in (1,2,3):
            cmul(x(e&1),P(m),w(2*e)); put(4*(m-2)+e,x(e&1))
    mm(0,r0)
    for m in range(4,8):
        cmul(P(m),P(m-1),w(0)); put(8+2*(m-4),P(m))
        cmul(x(0),P(m),w(4)); put(9+2*(m-4),x(0))
    r1=tile(1)
    for m in range(8,17):
        cmul(P(m),P(m-1),w(0)); put(m-8,P(m))
        if m==11: mm(1,r1)
    r2=tile(2)
    a('v_and_b32 v12, 15, v1\nv_lshrrev_b32 v13, 4, v1')
    a('s_add_u32 s12, s13, 64')
    a('v_lshrrev_b32 v14, 1, v13\nv_lshlrev_b32 v14, 7, v14\nv_and_b32 v15, 1, v13\nv_lshl_add_u32 v14, v15, 2, v14\nv_lshl_add_u32 v14, v12, 3, v14\nv_lshl_add_u32 v14, v14, 2, s12')
    a('v_cmp_gt_u32 vcc, 2, v13\nv_lshlrev_b32 v15, 1, v12\nv_lshlrev_b32 v16, 2, v12\nv_cndmask_b32 v15, v15, v16, vcc\nv_lshl_add_u32 v15, v13, 6, v15\nv_lshl_add_u32 v15, v15, 2, s12')
    a('v_mov_b32 v16, 128\nv_cndmask_b32 v16, v16, 8, vcc\nv_add_u32 v16, v16, v15')
    a('v_lshl_add_u32 v17, v13, 6, v12\nv_lshl_add_u32 v17, v17, 2, s12')
    a('v_lshl_add_u32 v18, v1, 3, s12')
    a('v_lshl_add_u32 v19, v1, 4, s13')
    a('v_cmp_eq_u32 vcc, 0, v1\nv_add_u32 v20, 4, v18\nv_cndmask_b32 v20, v20, v18, vcc')
    a('v_mov_b32 v21, 0\nv_mov_b32 v22, s13')
    mm(2,r2)
    a.ds(f'ds_write_b32 v22, v21 offset:60')
    a.ds(f'ds_write_b128 v14, v[{DK}:{DK+3}]')
    a.ds(f'ds_write_b64 v15, v[{DK+4}:{DK+5}] offset:1024')
    a.ds(f'ds_write_b64 v16, v[{DK+6}:{DK+7}] offset:1024')
    for r in range(4): a.ds(f'ds_write_b32 v17, v{DK+8+r} offset:{2048+64*r}')
    E=32
    a.ds(f'ds_read_b64 v[{E}:{E+1}], v18 offset:2048'); a.ds(f'ds_read_b32 v{E+2}, v18 offset:2056')
    a.ds(f'ds_read_b64 v[{E+4}:{E+5}], v18 offset:1536'); a.ds(f'ds_read_b32 v{E+6}, v18 offset:1544')
    a.ds(f'ds_read_b64 v[{E+8}:{E+9}], v18 offset:1024'); a.ds(f'ds_read_b32 v{E+10}, v18 offset:1032')
    a.ds(f'ds_read_b32 v{E+11}, v20 offset:1020')
    a.ds(f'ds_read_b128 v[{E+12}:{E+15}], v19 offset:64'); a.ds(f'ds_read_b32 v{E+16}, v19 offset:60')
    a('v_sub_u32 v23, 63, v1')
    a('v_lshl_add_u32 v24, v23, 5, s13')
    a('v_lshl_add_u32 v25, v23, 4, s13')
    a('v_lshl_add_u32 v26, v23, 3, s13')
    a('v_and_b32 v27, 7, v1\nv_lshl_add_u32 v27, v27, 2, s13')
    a.wait_lg_all()
    O=100
    def pk(d,lo,hi): a(f'v_cvt_pk_bf16_f32 v{d}, v{lo}, v{hi}')
    A_,B_,C_=E,E+1,E+2
    for k,(lo,hi) in enumerate([(C_,C_),(C_,C_),(B_,B_),(B_,B_),(B_,B_),(B_,A_),(A_,A_),(A_,A_)]): pk(O+k,lo,hi)
    for k,(lo,hi) in enumerate([(C_,C_),(C_,B_),(B_,B_),(B_,B_),(B_,B_),(A_,A_),(A_,A_),(A_,A_)]): pk(O+8+k,lo,hi)
    a.ds(f'ds_write_b128 v24, v[{O}:{O+3}]'); a.ds(f'ds_write_b128 v24, v[{O+4}:{O+7}] offset:16')
    a.ds(f'ds_write_b128 v24, v[{O+8}:{O+11}] offset:4160'); a.ds(f'ds_write_b128 v24, v[{O+12}:{O+15}] offset:4176')
    A_,B_,C_=E+4,E+5,E+6
    for k,(lo,hi) in enumerate([(C_,C_),(B_,B_),(B_,A_),(A_,A_),(C_,B_),(B_,B_),(A_,A_),(A_,A_)]): pk(O+16+k,lo,hi)
    a.ds(f'ds_write_b128 v25, v[{O+16}:{O+19}] offset:2048'); a.ds(f'ds_write_b128 v25, v[{O+20}:{O+23}] offset:{2048+4160}')
    A_,B_,C_=E+8,E+9,E+10
    for k,(lo,hi) in enumerate([(C_,B_),(A_,A_),(B_,A_),(A_,E+11)]): pk(O+24+k,lo,hi)
    a.ds(f'ds_write_b64 v26, v[{O+24}:{O+25}] offset:3072'); a.ds(f'ds_write_b64 v26, v[{O+26}:{O+27}] offset:{3072+4160}')
    k0=E+12
    for k,(lo,hi) in enumerate([(k0+3,k0+2),(k0+1,k0),(k0+2,k0+1),(k0,E+16)]): pk(O+28+k,lo,hi)
    a.ds(f'ds_write_b64 v26, v[{O+28}:{O+29}] offset:3584'); a.ds(f'ds_write_b64 v26, v[{O+30}:{O+31}] offset:{3584+4160}')
    a.ds('ds_write_b32 v27, v21 offset:4096'); a.ds(f'ds_write_b32 v27, v21 offset:{4096+4160}')
    a(f's_lshl_b32 s8, s14, 2\nv_add_u32 v23, s8, v2')
    signal(a, 23, KREADY, 1, 24)
    stamp(a,2)
    return a

def conv():
    a = Asm()
    a('L_conv:')
    a('s_setprio 0')
    a(f's_sub_u32 s9, {sWV}, 5\ns_and_b32 s14, s9, 1\ns_lshr_b32 s15, s9, 1')
    a(f's_lshl_b32 s7, {sP}, 2')
    a('s_load_dword s11, s[28:29], s7')
    a(f's_mul_i32 s13, s14, 8448\ns_add_u32 s13, s13, {KB[0]}')
    a(f's_mul_i32 s12, s14, 4608\ns_add_u32 s12, s12, {UB}')
    a('s_lshl_b32 s10, s15, 8')
    a('v_and_b32 v3, 15, v1\nv_lshrrev_b32 v4, 4, v1')
    a('v_lshrrev_b32 v5, 1, v3\nv_lshl_add_u32 v5, v4, 2, v5\nv_lshlrev_b32 v5, 2, v5\nv_and_b32 v6, 1, v3\nv_mul_u32_u24 v6, 4160, v6\nv_add_u32 v5, v5, v6')
    a(f's_add_u32 s8, s13, {4160+4108-512-192}\ns_sub_u32 s8, s8, s10')
    a('v_sub_u32 v8, s8, v5')
    for ap in range(1,4): a(f'v_subrev_u32 v{8+ap}, {1024*ap}, v8')
    a('v_lshlrev_b32 v5, 5, v3\nv_lshlrev_b32 v6, 4, v4\nv_sub_u32 v5, v5, v6')
    a(f's_add_u32 s8, s12, {528-192}\ns_sub_u32 s8, s8, s10')
    a('v_add_u32 v12, s8, v5')
    a(f's_lshl_b32 s8, s14, 2\nv_add_u32 v13, s8, v2')
    a('s_lshl_b32 s8, s9, 2\nv_add_u32 v14, s8, v2\ns_xor_b32 s8, s8, 8\nv_add_u32 v15, s8, v2')
    poll_lds(a, 13, KREADY, 1, 20, sleep=2)
    poll_lds(a, 2, UREADY, 1, 20, sleep=1)
    stamp(a,6)
    ACC=32; FA=lambda k: 64+4*k; FB=lambda k: 96+4*k
    ra={}; rb={}
    def rdA(it,k):
        ap=k>>1; o=(1-(k&1))*128+16*(3-it)
        a.ds(f'ds_read2_b32 v[{FA(k)}:{FA(k)+1}], v{8+ap} offset0:{o} offset1:{o+1}')
        ra[it,k]=a.ds(f'ds_read2_b32 v[{FA(k)+2}:{FA(k)+3}], v{8+ap} offset0:{o+2} offset1:{o+3}')
    def rdB(it,k):
        rb[it,k]=a.ds(f'ds_read_b128 v[{FB(k)}:{FB(k)+3}], v12 offset:{512*k+64*(3-it)}')
    rdA(0,0)
    for k in range(7,-1,-1): rdB(0,k)
    for k in range(1,8): rdA(0,k)
    for it in range(4):
        for aa in range(8):
            for b in range(7-aa,-1,-1):
                tau=aa+b; d=f'v[{ACC+4*tau}:{ACC+4*tau+3}]'
                a.wait_lg(max(ra[it,aa], rb[it,b]))
                a(f'v_mfma_f32_16x16x32_bf16 {d}, v[{FA(aa)}:{FA(aa)+3}], v[{FB(b)}:{FB(b)+3}], {"0" if (it==0 and aa==0) else d}')
                if it<3 and b==7-aa: rdB(it+1,b)
            if it<3: rdA(it+1,aa)
    signal(a, 14, CDONE, 1, 20)
    a('v_lshlrev_b32 v5, 5, v3\nv_lshl_add_u32 v5, v4, 3, v5\ns_lshl_b32 s8, s15, 11\ns_add_u32 s8, s8, s12\nv_add_u32 v16, s8, v5')
    for q in range(4): a.ds(f'ds_read_b64 v[{64+2*q}:{65+2*q}], v16 offset:{512+512*q}')
    L=lab('c'); L2=lab('c')
    a(f's_cmp_eq_u32 s15, 0\ns_cbranch_scc1 {L}')
    a('s_nop 7')
    for r in range(16): a(f'v_mov_b32 v{96+r}, v{ACC+16+r}\nv_mov_b32 v{112+r}, v{ACC+r}')
    a(f's_branch {L2}')
    a(f'{L}:')
    a('s_nop 7')
    for r in range(16): a(f'v_mov_b32 v{96+r}, v{ACC+r}\nv_mov_b32 v{112+r}, v{ACC+16+r}')
    a(f'{L2}:')
    poll_lds(a, 15, CDONE, 1, 20, sleep=0)
    a('s_lshl_b32 s8, s15, 12\ns_add_u32 s8, s8, s13\nv_lshl_add_u32 v17, v1, 4, s8')
    a('s_xor_b32 s9, s15, 1\ns_lshl_b32 s9, s9, 12\ns_add_u32 s9, s9, s13\nv_lshl_add_u32 v18, v1, 4, s9')
    for q in range(4): a.ds(f'ds_write_b128 v17, v[{112+4*q}:{115+4*q}] offset:{1024*q}')
    signal(a, 14, CXCH, 1, 20)
    a('v_add_u32 v19, s9, v5')
    a('s_lshl_b32 s8, s11, 16\ns_and_b32 s9, s11, 0xffff0000\ns_cmp_eq_u32 s14, 0\ns_cselect_b32 s11, s8, s9')
    for q in range(4):
        for e in range(4):
            src=64+2*q+(e>>1)
            a(f'v_lshlrev_b32 v21, 16, v{src}' if e%2==0 else f'v_and_b32 v21, 0xffff0000, v{src}')
            a(f'v_fmac_f32 v{96+4*q+e}, s11, v21')
    poll_lds(a, 15, CXCH, 1, 20, sleep=0)
    for q in range(4): a.ds(f'ds_read_b128 v[{112+4*q}:{115+4*q}], v18 offset:{1024*q}')
    a(f's_lshl_b32 s6, {sP}, 1\ns_add_u32 s6, s6, s14\ns_lshl_b32 s6, s6, 12\ns_lshl_b32 s8, s15, 11\ns_add_u32 s6, s6, s8\ns_add_u32 s6, s6, {SB}')
    a('v_lshlrev_b32 v6, 4, v1\nv_mov_b32 v20, 1')
    a.wait_lg_all()
    for r in range(16): a(f'v_add_f32 v{96+r}, v{96+r}, v{112+r}')
    for q in range(4):
        a(f'v_cvt_pk_bf16_f32 v{72+2*q}, v{96+4*q}, v{97+4*q}\nv_cvt_pk_bf16_f32 v{73+2*q}, v{98+4*q}, v{99+4*q}')
        a.ds(f'ds_write_b64 v19, v[{72+2*q}:{73+2*q}] offset:{512*q}')
    r0=a.ds('ds_read_b128 v[80:83], v18'); r1=a.ds('ds_read_b128 v[84:87], v18 offset:1024')
    a('s_mov_b64 exec, 1'); a.ds(f'ds_add_u32 v2, v20 offset:{CFIN}'); a('s_mov_b64 exec, -1')
    a.wait_lg(r0)
    a(f'buffer_store_dwordx4 v[80:83], v6, {sWs}, s6 offen sc1')
    a.wait_lg(r1)
    a(f'buffer_store_dwordx4 v[84:87], v6, {sWs}, s6 offen offset:1024 sc1')
    stamp(a,7)
    dump_stamps(a)
    a('s_endpgm')
    return a

def wave_G():
    a = Asm(); ool = Asm()
    a('L_G:')
    a('s_setprio 3')
    a('s_barrier')
    ACC=lambda tt,j: 72+16*(3*tt+j)
    FW=lambda par,j: 32+20*par+4*j
    FX=lambda par,tt: 32+20*par+12+4*tt
    CA=lambda j: 20+4*j
    SEL=16
    TR=3; XR=6; vP=10; vT=11; vL16=12; t0=13; t1=14; t2=15
    a(f's_sub_u32 s13, {sWV}, 1\ns_and_b32 s14, s13, 1\ns_lshr_b32 s15, s13, 1')
    a(f'v_and_b32 v{t0}, 31, v1\nv_bfe_u32 v{t1}, v1, 1, 3\nv_lshrrev_b32 v{t2}, 5, v1\nv_xor_b32 v{t1}, v{t1}, v{t2}\nv_lshlrev_b32 v{t1}, 4, v{t1}\nv_lshl_add_u32 v{t0}, v{t0}, 7, v{t1}')
    a(f's_lshl_b32 s7, s14, 13\nv_add_u32 v{XR}, s7, v{t0}')
    for k in range(1,4): a(f'v_xor_b32 v{XR+k}, {32*k}, v{XR}')
    a(f'v_bfe_u32 v{t0}, v1, 4, 1\nv_bfe_u32 v{t1}, v1, 2, 2\nv_lshl_add_u32 v{t2}, v{t2}, 3, v{t1}\nv_lshlrev_b32 v{t2}, 6, v{t2}')
    a(f'v_and_b32 v{t1}, 3, v1\nv_lshl_add_u32 v{t2}, v{t1}, 3, v{t2}\nv_mul_u32_u24 v{t1}, {12288+32}, v{t0}\nv_add_u32 v{t2}, v{t2}, v{t1}')
    for j in range(3):
        a(f's_mul_i32 s8, s15, 3\ns_add_u32 s8, s8, {j}\ns_and_b32 s9, s8, 1\ns_lshl_b32 s9, s9, 5\ns_lshr_b32 s8, s8, 1\ns_lshl_b32 s8, s8, 10\ns_add_u32 s8, s8, 16384')
        a(f'v_xor_b32 v{TR+j}, s9, v{t2}\nv_add_u32 v{TR+j}, s8, v{TR+j}')
    a(f's_lshl_b32 s8, s13, 2\nv_add_u32 v{vP}, s8, v2')
    a(f'v_lshlrev_b32 v{vL16}, 4, v1')
    rot1(a,'s10','s11')
    a(f'v_and_b32 v{t1}, 1, v1\nv_cmp_eq_u32 vcc, v{t0}, v{t1}\nv_mov_b32 v{t1}, 0x3f803f80\nv_cndmask_b32 v{t0}, 0, v{t1}, vcc')
    a('s_cmp_eq_u32 s11, 0\ns_cselect_b32 s76, -1, 0\ns_cselect_b32 s77, 0, -1')
    for r in range(4): a(f'v_and_b32 v{SEL+r}, s76, v{t0}')
    cur=[0]
    def set_stage(st):
        d=(st-cur[0])*STG
        if d==0: return
        op='v_add_u32' if d>0 else 'v_subrev_u32'
        for r in [TR,TR+1,TR+2,XR,XR+1,XR+2,XR+3]: a(f'{op} v{r}, {abs(d)}, v{r}')
        cur[0]=st
    def check_full(val, rd):
        a.wait_lg(rd)
        S=lab('gs'); R=lab('gr')
        a(f'v_readfirstlane_b32 s4, v{vT}')
        a(f's_cmp_lt_u32 s4, {val}\ns_cbranch_scc1 {S}')
        a(f'{R}:')
        ool(f'{S}:')
        poll_lds(ool, 2, WFULL, val, vT, sleep=0)
        ool(f's_branch {R}')
    def rd_flag(): return a.ds(f'ds_read_b32 v{vT}, v2 offset:{WFULL}')
    def prog(v):
        a(f'v_mov_b32 v{t1}, {v}')
        a.ds(f'ds_write_b32 v{vP}, v{t1} offset:{PROG}')
    fr={}
    def reads(ks):
        kk=ks&3; par=ks&1; l=[]
        l.append((('x',0),f'ds_read_b128 v[{FX(par,0)}:{FX(par,0)+3}], v{XR+kk}'))
        for n in range(2): l.append((('w',0),f'ds_read_b64_tr_b16 v[{FW(par,0)+2*n}:{FW(par,0)+2*n+1}], v{TR} offset:{kk*3072+256*n}'))
        l.append((('x',1),f'ds_read_b128 v[{FX(par,1)}:{FX(par,1)+3}], v{XR+kk} offset:4096'))
        for j in (1,2):
            for n in range(2): l.append((('w',j),f'ds_read_b64_tr_b16 v[{FW(par,j)+2*n}:{FW(par,j)+2*n+1}], v{TR+j} offset:{kk*3072+256*n}'))
        return l
    poll_lds(a, 2, WFULL, 2, vT, sleep=0)
    a('s_waitcnt vmcnt(0)')
    stamp(a,1)
    for key,ins in reads(0): fr[(0,)+key]=a.ds(ins)
    fl=None
    for ks in range(32):
        r=ks>>2; kk=ks&3; par=ks&1
        nx=[]
        mf=[(tt,j) for j in range(3) for tt in range(2)]
        for n,(tt,j) in enumerate(mf):
            a.wait_lg(max(fr[ks,'x',tt], fr[ks,'w',j]))
            d=f'v[{ACC(tt,j)}:{ACC(tt,j)+15}]'
            a(f'v_mfma_f32_32x32x16_bf16 {d}, v[{FW(par,j)}:{FW(par,j)+3}], v[{FX(par,tt)}:{FX(par,tt)+3}], {"0" if ks==0 else d}')
            if n==0 and ks<31:
                if ks&1: check_full(ks+3, fl)
                if kk==3: set_stage((r+1)%3)
                nx=reads(ks+1)
            for _ in range(2):
                if nx:
                    key,ins=nx.pop(0); fr[(ks+1,)+key]=a.ds(ins)
            if n==4:
                if kk==2: prog(r+1)
                if not (ks&1): fl=rd_flag()
            if r<2 and tt==1:
                c=f'v[{CA(j)}:{CA(j)+3}]'
                a(f'v_mfma_f32_16x16x32_bf16 {c}, v[{SEL}:{SEL+3}], v[{FW(par,j)}:{FW(par,j)+3}], {"0" if ks==0 else c}')
        if ks==3:
            for rr in range(4): a(f'v_and_b32 v{SEL+rr}, s77, v{t0}')
        if ks==8:
            L=lab('g')
            a(f's_cmp_eq_u32 s14, 1\ns_cbranch_scc1 {L}')
            a(f's_mul_i32 s8, s15, 384\ns_add_u32 s8, s8, {CSA}\nv_lshl_add_u32 v{t2}, v1, 2, s8\nv_mov_b32 v{t1}, 1')
            a('s_mov_b64 exec, 0xffff')
            for j in range(3): a(f'ds_write2_b32 v{t2}, v{CA(j)}, v{CA(j)+1} offset0:{32*j} offset1:{32*j+16}')
            a('s_mov_b64 exec, 1')
            a(f'ds_add_u32 v2, v{t1} offset:{CSREADY}')
            a('s_mov_b64 exec, -1')
            a(f'{L}:')
        if ks==7: stamp(a,2)
    stamp(a,3)
    poll_lds(a, 2, STREADY, 1, vT, sleep=0)
    vC1=[16,17]; vQ=[18,19]; vM=[20,22]; CSF=24
    a(f'v_and_b32 v{t0}, 31, v1\ns_lshl_b32 s8, s14, 8\ns_add_u32 s8, s8, {STL}\nv_lshl_add_u32 v{t1}, v{t0}, 2, s8')
    a.ds(f'ds_read2_b32 v[30:31], v{t1} offset0:0 offset1:32')
    a(f's_mul_i32 s8, s15, 768\ns_add_u32 s8, s8, {CSA}\nv_lshl_add_u32 v{t0}, v{t0}, 3, s8')
    for j in range(3): a.ds(f'ds_read_b64 v[{CSF+2*j}:{CSF+2*j+1}], v{t0} offset:{256*j}')
    a(f's_lshl_b32 s8, {sRB}, 2\ns_lshl_b32 s9, s14, 1\ns_add_u32 s8, s8, s9\ns_mul_i32 s76, s8, {HROW}\ns_add_u32 s76, s76, {HB}')
    a(f's_lshl_b32 s8, {sU0}, 11\ns_mul_i32 s9, s15, 3072\ns_add_u32 s76, s76, s8\ns_add_u32 s76, s76, s9\ns_add_u32 s77, s76, {HROW}')
    a('v_cmp_gt_u32 vcc, 32, v1')
    a.wait_lg_all()
    for tt in range(2):
        s=30+tt
        a(f'v_and_b32 v{vQ[tt]}, 0xffff0000, v{s}\nv_and_b32 v{s}, 0xffff, v{s}\nv_xor_b32 v{s}, 0x8000, v{s}\nv_lshl_or_b32 v{vM[tt]}, v{s}, 16, v{s}')
        a(f'v_cndmask_b32 v{vM[tt]}, 0, v{vM[tt]}, vcc\nv_cndmask_b32 v{vM[tt]+1}, 0, v{s}, vcc')
    for j in range(3):
        for tt in range(2):
            d=f'v[{ACC(tt,j)}:{ACC(tt,j)+15}]'
            a(f'v_mfma_f32_32x32x8_bf16 {d}, v[{CSF+2*j}:{CSF+2*j+1}], v[{vM[tt]}:{vM[tt]+1}], {d}')
    for tt in range(2):
        a(f'v_rcp_f32 v{vC1[tt]}, v{vQ[tt]}\nv_mul_f32 v{vQ[tt]}, v{vQ[tt]}, v{vQ[tt]}\nv_mul_f32 v{vC1[tt]}, 0xbfb8aa3b, v{vC1[tt]}')
    def epi(tt,j):
        A=ACC(tt,j); l=[]
        for r in range(8): l.append(f'v_mul_f32 v{A+8+r}, v{A+r}, v{A+8+r}')
        for r in range(8): l.append(f'v_mul_f32 v{A+r}, v{A+r}, v{vC1[tt]}')
        for r in range(8): l.append(f'v_exp_f32 v{A+r}, v{A+r}')
        for r in range(8): l.append(f'v_fma_f32 v{A+r}, v{A+r}, v{vQ[tt]}, v{vQ[tt]}')
        for r in range(8): l.append(f'v_rcp_f32 v{A+r}, v{A+r}')
        for r in range(8): l.append(f'v_mul_f32 v{A+8+r}, v{A+8+r}, v{A+r}')
        for q in range(4): l.append(f'v_cvt_pk_bf16_f32 v{A+q}, v{A+8+2*q}, v{A+9+2*q}')
        l.append(f'buffer_store_dwordx4 v[{A}:{A+3}], v{vL16}, {sWs}, {["s76","s77"][tt]} offen offset:{1024*j} sc1')
        return l
    Ls=lab('g')
    for j in range(3):
        if j==1: a(f's_xor_b32 s8, {sULV}, 1\ns_and_b32 s8, s8, s15\ns_cmp_eq_u32 s8, 1\ns_cbranch_scc1 {Ls}')
        for tt in range(2):
            for x in epi(tt,j): a(x)
    a(f'{Ls}:')
    stamp(a,4)
    a(f's_lshl_b32 s8, {sXCD}, 3\ns_and_b32 s9, {sJ}, 3\ns_lshl_b32 s9, s9, 1\ns_add_u32 s8, s8, s9\ns_add_u32 s76, s8, s14')
    a(f's_mul_i32 s77, s76, {HROW}\ns_mul_i32 s8, s15, {44*1024}\ns_add_u32 s77, s77, s8\ns_add_u32 s77, s77, {HB}')
    rot2(a,'s78')
    poll_lds(a, 2, UREADY, 1, vT, sleep=0)
    a('s_waitcnt vmcnt(0)')
    HF=lambda q,i: 80+44*(q&1)+4*i
    sHB=lambda q: f's{96+q}'
    for q in range(4):
        a(f's_add_u32 s8, s78, {q}\ns_and_b32 s8, s8, 3\ns_mul_i32 s8, s8, {11*1024}\ns_add_u32 {sHB(q)}, s77, s8')
    def hload(tgt, q, cnt):
        last=None
        for i in range(11):
            if i%4==0: tgt(f's_add_u32 s8, {sHB(q)}, {1024*i}')
            ins=f'buffer_load_dwordx4 v[{HF(q,i)}:{HF(q,i)+3}], v{vL16}, {sWs}, s8 offen offset:{1024*(i&3)} sc1'
            last=tgt.vm(ins) if cnt else tgt(ins)
        return last
    hl={}
    hl[0]=hload(a,0,True); hl[1]=hload(a,1,True)
    a(f'v_lshrrev_b32 v{t0}, 5, v1\nv_bfe_u32 v{t1}, v1, 2, 2\nv_lshl_add_u32 v{t0}, v{t0}, 2, v{t1}\nv_lshlrev_b32 v{t0}, 7, v{t0}')
    a(f'v_bfe_u32 v{t1}, v1, 3, 1\nv_lshl_add_u32 v{t0}, v{t1}, 6, v{t0}\nv_bfe_u32 v{t1}, v1, 4, 1\nv_lshl_add_u32 v{t0}, v{t1}, 5, v{t0}\nv_and_b32 v{t1}, 3, v1\nv_lshl_add_u32 v{t0}, v{t1}, 3, v{t0}')
    a(f's_mul_i32 s8, s15, 22528\ns_add_u32 s8, s8, {2*STG}\nv_add_u32 v{TR}, s8, v{t0}\nv_xor_b32 v{TR+1}, 64, v{TR}')
    AC2=lambda dq: 48+16*dq
    WF=lambda k: 16+4*(k&7)
    a(f's_mul_i32 s13, s13, 6144\ns_add_u32 s13, s13, {HREG}')
    curs=2
    for q in range(4):
        st=(2+q)%3
        poll_lds(a, 2, WFULL, 33+q, vT, sleep=0)
        if st!=curs:
            d=(st-curs)*STG; op='v_add_u32' if d>0 else 'v_subrev_u32'
            a(f'{op} v{TR}, {abs(d)}, v{TR}\n{op} v{TR+1}, {abs(d)}, v{TR+1}'); curs=st
        if q==3:
            a(f'v_lshrrev_b32 v{t0}, 2, v1\nv_and_b32 v{t1}, 3, v1\nv_lshlrev_b32 v{t1}, 4, v{t1}')
            a(f'v_lshl_add_u32 v6, v{t0}, 10, v{t1}\nv_add_u32 v7, {16384-1024}, v6')
            a(f'v_lshl_add_u32 v8, v{t0}, 12, v{t1}\nv_add_u32 v9, {65536-1024}, v8')
            a(f's_lshr_b32 s9, {sJ}, 2\ns_lshl_b32 s9, s9, 1\ns_add_u32 s9, s9, s15')
            a('s_lshl_b32 s10, s76, 15\ns_lshl_b32 s11, s9, 6\ns_add_u32 s10, s10, s11')
            a(f's_lshl_b32 s11, s9, 17\ns_lshl_b32 s12, s76, 6\ns_add_u32 s11, s11, s12\ns_add_u32 s11, s11, {SB}')
            a('s_add_u32 m0, s13, 2048')
            a.vm(f'buffer_load_dwordx4 v6, {sX}, s10 offen lds'); xt=a.vm(f'buffer_load_dwordx4 v7, {sX}, s10 offen offset:1024 lds')
            a('s_mov_b32 m0, s13')
            a.vm(f'buffer_load_dwordx4 v8, {sWs}, s11 offen sc1 lds'); a.vm(f'buffer_load_dwordx4 v9, {sWs}, s11 offen offset:1024 sc1 lds')
        n=22; wf={}
        def trw(k):
            for nn in range(2):
                f=WF(k)+2*nn
                wf[k]=a.ds(f'ds_read_b64_tr_b16 v[{f}:{f+1}], v{TR+(k&1)} offset:{2048*(k>>1)+1024*nn}')
        for k in range(6): trw(k)
        a.wait_vm(hl[q])
        C=lab('gc'); S=lab('gs'); OK=lab('go')
        a('s_mov_b32 s5, 0x2000')
        a(f'{C}:')
        a(f'v_max3_u32 v{t0}, v{HF(q,0)}, v{HF(q,0)+1}, v{HF(q,0)+2}\nv_mov_b32 v{t2}, v{HF(q,0)+3}')
        for i in range(1,11):
            a(f'v_max3_u32 v{t0}, v{t0}, v{HF(q,i)}, v{HF(q,i)+1}\nv_max3_u32 v{t2}, v{t2}, v{HF(q,i)+2}, v{HF(q,i)+3}')
        a(f'v_max_u32 v{t0}, v{t0}, v{t2}\nv_cmp_eq_u32 vcc, -1, v{t0}')
        a(f's_cbranch_vccnz {S}')
        a(f'{OK}:')
        ool(f'{S}:')
        ool(f's_sub_u32 s5, s5, 1\ns_cmp_eq_u32 s5, 0\ns_cbranch_scc1 {OK}')
        hload(ool,q,False)
        ool('s_waitcnt vmcnt(0)')
        ool(f's_branch {C}')
        if q==0: stamp(a,5)
        for k in range(n):
            a.wait_lg(wf[k])
            d=f'v[{AC2(k&1)}:{AC2(k&1)+15}]'; h=HF(q,k>>1)
            a(f'v_mfma_f32_32x32x16_bf16 {d}, v[{WF(k)}:{WF(k)+3}], v[{h}:{h+3}], {"0" if (q==0 and k<2) else d}')
            if k+6<n: trw(k+6)
            if k+6==n-1 and q==0: prog(9)
        if q<2: hl[q+2]=hload(a,q+2,True)
    stamp(a,6)
    a.wait_vm(xt)
    a(f'v_and_b32 v3, 31, v1\nv_lshlrev_b32 v3, 6, v3\nv_lshrrev_b32 v4, 5, v1\nv_lshl_add_u32 v3, v4, 3, v3\nv_add_u32 v3, s13, v3')
    for q in range(4): a.ds(f'ds_read_b64 v[{80+2*q}:{81+2*q}], v3 offset:{2048+16*q}')
    L=lab('g'); L2=lab('g')
    a(f'v_add_u32 v4, s13, v{vL16}')
    a(f's_cmp_eq_u32 s15, 0\ns_cbranch_scc1 {L}')
    for q in range(4): a(f'ds_write_b128 v4, v[{48+4*q}:{51+4*q}] offset:{2048+1024*q}')
    for r in range(16): a(f'v_mov_b32 v{48+r}, v{64+r}')
    a(f's_branch {L2}')
    a(f'{L}:')
    a('s_nop 7')
    for q in range(4): a(f'ds_write_b128 v4, v[{64+4*q}:{67+4*q}] offset:{2048+1024*q}')
    a(f'{L2}:')
    a(f's_sub_u32 s8, {sWV}, 1\ns_xor_b32 s8, s8, 2\ns_mul_i32 s8, s8, 6144\ns_add_u32 s8, s8, {HREG}\nv_add_u32 v10, s8, v{vL16}')
    a(f'v_lshrrev_b32 v5, 5, v1\nv_bfe_u32 v{t0}, v1, 2, 2\nv_lshl_add_u32 v5, v5, 2, v{t0}\nv_lshlrev_b32 v5, 6, v5\nv_bfe_u32 v{t0}, v1, 4, 1\nv_lshl_add_u32 v5, v{t0}, 5, v5\nv_and_b32 v{t0}, 3, v1\nv_lshl_add_u32 v5, v{t0}, 3, v5\nv_add_u32 v5, s13, v5')
    a.wait_lg_all()
    a('s_barrier')
    for q in range(4): a.ds(f'ds_read_b128 v[{64+4*q}:{67+4*q}], v10 offset:{2048+1024*q}')
    a.wait_lg_all()
    for r in range(16): a(f'v_add_f32 v{48+r}, v{48+r}, v{64+r}')
    for r in range(16): a(f'v_mul_f32 v{64+r}, 0xbfb8aa3b, v{48+r}')
    for r in range(16): a(f'v_exp_f32 v{64+r}, v{64+r}')
    for r in range(16): a(f'v_add_f32 v{64+r}, 1.0, v{64+r}')
    for r in range(16): a(f'v_rcp_f32 v{64+r}, v{64+r}')
    for r in range(16): a(f'v_mul_f32 v{48+r}, v{48+r}, v{64+r}')
    C=lab('gc'); S=lab('gs'); OK=lab('go')
    a('s_mov_b32 s5, 0x2000')
    a(f'{C}:')
    a('s_waitcnt vmcnt(0)')
    for q in range(4): a(f'ds_read_b64_tr_b16 v[{88+2*q}:{89+2*q}], v5 offset:{512*q}')
    a('s_waitcnt lgkmcnt(0)')
    a(f'v_pk_max_u16 v{t2}, v88, v89\nv_pk_max_u16 v{t0}, v90, v91\nv_pk_max_u16 v{t2}, v{t2}, v92\nv_pk_max_u16 v{t0}, v{t0}, v93\nv_pk_max_u16 v{t2}, v{t2}, v94\nv_pk_max_u16 v{t0}, v{t0}, v95\nv_pk_max_u16 v{t0}, v{t0}, v{t2}')
    a(f'v_lshlrev_b32 v{t2}, 16, v{t0}\nv_max_u32 v{t0}, v{t0}, v{t2}\nv_cmp_le_u32 vcc, 0xffff0000, v{t0}')
    a(f's_cbranch_vccnz {S}')
    a(f'{OK}:')
    ool(f'{S}:')
    ool(f's_sub_u32 s5, s5, 1\ns_cmp_eq_u32 s5, 0\ns_cbranch_scc1 {OK}')
    ool(f'buffer_load_dwordx4 v8, {sWs}, s11 offen sc1 lds\nbuffer_load_dwordx4 v9, {sWs}, s11 offen offset:1024 sc1 lds')
    ool(f's_branch {C}')
    for r in range(16):
        sx=80+(r>>1); ss=88+(r>>1)
        if r%2==0: a(f'v_lshlrev_b32 v{64+r}, 16, v{sx}\nv_lshlrev_b32 v{96+r}, 16, v{ss}')
        else: a(f'v_and_b32 v{64+r}, 0xffff0000, v{sx}\nv_and_b32 v{96+r}, 0xffff0000, v{ss}')
    for r in range(16): a(f'v_fmac_f32 v{64+r}, v{96+r}, v{48+r}')
    for q in range(8): a(f'v_cvt_pk_bf16_f32 v{48+q}, v{64+2*q}, v{65+2*q}')
    for q in range(4): a(f'ds_write_b64 v3, v[{48+2*q}:{49+2*q}] offset:{16*q}')
    a('ds_read_b128 v[56:59], v4\nds_read_b128 v[60:63], v4 offset:1024')
    a('s_waitcnt lgkmcnt(1)')
    a(f'buffer_store_dwordx4 v[56:59], v6, {sOut}, s10 offen')
    a('s_waitcnt lgkmcnt(0)')
    a(f'buffer_store_dwordx4 v[60:63], v7, {sOut}, s10 offen offset:1024')
    if SPIN:
        a('Lspin:')
        a(f's_memrealtime s[82:83]\ns_waitcnt lgkmcnt(0)\ns_sub_u32 s82, s82, s80\ns_cmp_lt_u32 s82, {SPIN*100}\ns_cbranch_scc1 Lspin')
    if STAMPS:
        a('s_waitcnt vmcnt(0)')
        stamp(a,7)
    dump_stamps(a)
    a('s_endpgm')
    a.l += ool.l
    return a

main = Asm()
prologue(main)
parts = [main, wave_B(), wave_A(), wave_S(), wave_K(), conv(), wave_G()]
lines=[]; tot=0
for p in parts:
    l, added = hazard_pass(p.l, verbose='--vpad' in sys.argv)
    tot+=added
    lines += l
lines += ['L_exit:', 's_endpgm', 'L_end:']
body = Asm(); body.l = lines
k = kernel_text(KN, body.text(), vgpr=168, sgpr=100)
open(OUT,'w').write(file_text([(KN,256,576,163840)],[k], single=True))
print('nop states added', tot, 'lines', len(lines))
```

```python
import sys, math
from asmlib import *

def opt(name, default):
    for x in sys.argv:
        if x.startswith(f'--{name}='): return int(x.split('=')[1])
    return default
STAMPS = '--stamps' in sys.argv
TAIL = '--tail' in sys.argv
TIMER = 's_memtime' if '--clk' in sys.argv else 's_memrealtime'
SPIN = opt('spin', 0)
ABL = opt('abl', 0)
LAG = opt('lag', 30); LAG2 = opt('lag2', 40)
GAT = opt('gat', 22)
Q3AT = opt('q3at', 3); Q3N = opt('q3n', 9)
T23 = opt('t23', 1); NPF = opt('npf', 2)
PSLEEP = opt('psleep', 2)
CPRIO = opt('cprio', 1)
STAT = opt('stat', 8)
SPOLL = opt('spoll', 19)
HRR = opt('hr', 8)
IDLEAT = opt('idleat', 30)
HPF = opt('hpf', 0)
OUTSC = 'sc1' if opt('outsc', 0) else ''
OUT = [x for x in sys.argv[1:] if not x.startswith('--')][0]

EPOCH=0; XF=0x8000; STATS=0x10000; CSUM=0x20000; HFL=0x60000; SFL=0xA0000; XNT=0x100000; HB=0x800000; SB=0xE00000; STAMP=0xF000000
HROW=88*1024
STG=45056
XS=[0,16384,STG+24576,2*STG+24576]
WS_=[2*STG+12288,32768,STG,STG+12288,2*STG]
HREG=135168
KB0=HREG; KBS=8448
UB=HREG+16896
CSA=HREG+26112; STL=CSA+1536; SYNC=STL+512
WFULL=0; PROG=16; STREADY=32; UREADY=36; KREADY=40; CDONE=48; CXCH=64; CFIN=80; CSREADY=84; ISSUED=88; XSREADY=92; KX=96
LOG2E=0x3fb8aa3b
sX='s[44:47]'; sWg='s[48:51]'; sWu='s[52:55]'; sWd='s[56:59]'; sOut='s[60:63]'; sWs='s[64:67]'
sTAG='s68'; sXCD='s69'; sJ='s70'; sRB='s71'; sCG='s72'; sU0='s73'; sTY='s74'; sP='s75'; sWV='s3'
WA_, WB_, WG_ = 4, 5, 6
uid=[0]
def lab(p):
    uid[0]+=1; return f'L{p}{uid[0]}'
P2=lambda r: f'v[{r}:{r+1}]'
P4=lambda r: f'v[{r}:{r+3}]'
P16=lambda r: f'v[{r}:{r+15}]'

def stamp(a, k):
    if not STAMPS: return
    a(f'{TIMER} s[{80+2*k}:{81+2*k}]')
    a.wait_lg_all()
def finish(a):
    if STAMPS:
        a('s_mov_b64 exec, 1')
        a(f's_lshl_b32 s4, {sWV}, 3')
        for k in range(8):
            a(f's_add_u32 s5, s4, {k}\ns_lshl_b32 s5, s5, 11\ns_lshl_b32 s6, s2, 3\ns_add_u32 s5, s5, s6\ns_add_u32 s5, s5, {STAMP}')
            a(f'v_mov_b32 v4, s{80+2*k}\nv_mov_b32 v5, s{81+2*k}\nv_mov_b32 v3, 0')
            a(f'buffer_store_dwordx2 v[4:5], v3, {sWs}, s5 offen')
        a('s_waitcnt vmcnt(0)')
    a('s_endpgm')

def poll_lds(a, vaddr, off, val, vt, sleep=1, min4=False):
    L=lab('p'); E=lab('pe')
    a('s_mov_b32 s5, 0x8000')
    a(f'{L}:')
    if min4:
        a(f'ds_read_b128 {P4(vt)}, v{vaddr} offset:{off}')
        a('s_waitcnt lgkmcnt(0)')
        a(f'v_min3_u32 v{vt}, v{vt}, v{vt+1}, v{vt+2}\nv_min_u32 v{vt}, v{vt}, v{vt+3}')
    else:
        a(f'ds_read_b32 v{vt}, v{vaddr} offset:{off}')
        a('s_waitcnt lgkmcnt(0)')
    a(f'v_readfirstlane_b32 s4, v{vt}')
    a(f's_cmp_ge_u32 s4, {val}\ns_cbranch_scc1 {E}')
    if sleep: a(f's_sleep {sleep}')
    a(f's_sub_u32 s5, s5, 1\ns_cmp_lg_u32 s5, 0\ns_cbranch_scc1 {L}')
    a(f'{E}:')
    a.lg_done = a.lg_issued

def poll_flags(a, vdst, vaddr, soff, stag, sleep):
    L=lab('f'); E=lab('fe')
    a('s_mov_b32 s5, 0x4000')
    a(f'{L}:')
    a(f'buffer_load_dword v{vdst}, v{vaddr}, {sWs}, {soff} offen sc1')
    a('s_waitcnt vmcnt(0)')
    a(f'v_cmp_ne_u32 vcc, {stag}, v{vdst}')
    a(f's_cbranch_vccz {E}')
    a(f's_sleep {sleep}\ns_sub_u32 s5, s5, 1\ns_cmp_lg_u32 s5, 0\ns_cbranch_scc1 {L}')
    a(f'{E}:')
    a.vm_done = a.vm_issued

def signal(a, vaddr, off, val, vt):
    a(f'v_mov_b32 v{vt}, {val}')
    a.ds(f'ds_write_b32 v{vaddr}, v{vt} offset:{off}')

XD=8; WA=12; DA=16
def prologue(a):
    a('s_cmp_ge_u32 s2, 256\ns_cbranch_scc1 L_exit')
    a('s_load_dwordx16 s[16:31], s[0:1], 0')
    a('s_load_dwordx8 s[32:39], s[0:1], 64')
    a('s_load_dwordx4 s[40:43], s[0:1], 96')
    if STAMPS or SPIN: a(f'{TIMER} s[80:81]')
    a('v_lshrrev_b32 v2, 6, v0')
    a('v_and_b32 v1, 63, v0')
    a(f'v_readfirstlane_b32 {sWV}, v2')
    a(f's_and_b32 {sXCD}, s2, 7\ns_lshr_b32 {sJ}, s2, 3')
    if opt('maxj',0): a(f's_cmp_ge_u32 {sJ}, {opt("maxj",0)}\ns_cbranch_scc1 L_exit')
    if opt('maxx',0): a(f's_cmp_ge_u32 {sXCD}, {opt("maxx",0)}\ns_cbranch_scc1 L_exit')
    a(f'v_mov_b32 v2, {SYNC}')
    a(f's_cmp_lg_u32 {sWV}, 0\ns_cbranch_scc1 L_pfdone')
    a('s_getpc_b64 s[4:5]')
    a('L_pc:')
    a(f'v_and_b32 v3, 15, v1\nv_lshlrev_b32 v3, 5, v3\nv_add_u32 v3, {sJ}, v3\nv_lshlrev_b32 v3, 7, v3')
    a('v_min_u32 v3, L_end-L_pc-4, v3')
    a('global_load_dword v167, v3, s[4:5]')
    a('v_lshl_add_u32 v3, v1, 2, v2\nv_mov_b32 v4, 0\nds_write_b32 v3, v4')
    a('L_pfdone:')
    a(f's_and_b32 s4, {sXCD}, 3\ns_mul_i32 s5, s4, 28\ns_add_u32 s5, s5, {sJ}')
    a(f's_lshl_b32 s6, s4, 1\ns_add_u32 s6, s6, {sJ}\ns_add_u32 s6, s6, {112-28}')
    a(f's_cmp_lt_u32 {sJ}, 28\ns_cselect_b32 s5, s5, s6\ns_cselect_b32 {sTY}, 0, 1')
    a(f's_cmp_lt_u32 {sJ}, 30\ns_cselect_b32 {sTY}, {sTY}, 2\ns_cselect_b32 s5, s5, 112')
    a(f's_lshr_b32 {sCG}, s5, 3\ns_and_b32 s5, s5, 7\ns_lshr_b32 s4, {sXCD}, 2\ns_lshl_b32 s4, s4, 3\ns_add_u32 {sRB}, s4, s5')
    a(f's_mul_i32 {sU0}, {sCG}, 3')
    a(f's_lshl_b32 s4, {sXCD}, 5\ns_add_u32 {sP}, s4, {sJ}')
    for r, sz in [(44,2097152),(48,1409024),(52,1409024),(56,1409024),(60,2097152),(64,0x10000000)]:
        a(f's_mov_b32 s{r+2}, {sz}\ns_mov_b32 s{r+3}, 0x20000')
    a('v_lshrrev_b32 v3, 3, v1\nv_lshlrev_b32 v3, 10, v3\nv_and_b32 v4, 7, v1\nv_lshrrev_b32 v5, 4, v1\nv_xor_b32 v5, v4, v5')
    a(f'v_lshl_add_u32 v{XD}, v5, 4, v3\nv_xor_b32 v{XD+1}, 64, v{XD}\nv_add_u32 v{XD+1}, 7168, v{XD+1}\nv_add_u32 v{XD+2}, {2*7168}, v{XD}\nv_add_u32 v{XD+3}, {2*7168}, v{XD+1}')
    a(f'v_bfe_u32 v5, v1, 4, 1\nv_lshlrev_b32 v5, 2, v5\nv_xor_b32 v4, v4, v5\nv_lshl_add_u32 v{DA}, v4, 4, v3')
    a(f'v_lshrrev_b32 v6, 2, v1\nv_mul_u32_u24 v6, 2752, v6\nv_and_b32 v7, 3, v1\nv_lshl_add_u32 v{WA}, v7, 4, v6\nv_xor_b32 v7, 2, v7\nv_lshl_add_u32 v{WA+1}, v7, 4, v6')
    a(f's_add_u32 s10, {sRB}, {sCG}\ns_and_b32 s10, s10, 3\ns_lshl_b32 s10, s10, 1')
    a(f's_lshr_b32 s4, {sRB}, 3\ns_lshr_b32 s5, {sCG}, 2\ns_add_u32 s5, s5, s4\ns_and_b32 s5, s5, 1\ns_add_u32 s10, s10, s5')
    a(f's_lshl_b32 s6, {sRB}, 17\ns_lshl_b32 s7, {sU0}, 6')
    a('s_lshl_b32 s11, s10, 7\ns_add_u32 s11, s11, s6')
    a(f's_mul_i32 s12, s10, {64*2752}\ns_add_u32 s12, s12, s7')
    a(f's_and_b32 s14, {sWV}, 1\ns_lshr_b32 s15, {sWV}, 1')
    a(f's_lshl_b32 s4, {sP}, 1\ns_add_u32 s4, s4, s14\ns_lshl_b32 s4, s4, 8\ns_lshl_b32 s5, s15, 7\ns_add_u32 s4, s4, s5\nv_lshl_add_u32 v3, v1, 1, s4')
    a('v_lshlrev_b32 v5, 4, v1')
    a(f's_lshl_b32 s13, {sP}, 13\ns_mov_b32 m0, {UB}')
    a('s_waitcnt lgkmcnt(0)')
    for r, b in [(44,16),(48,32),(52,34),(56,36),(60,38),(64,42)]:
        a(f's_mov_b64 s[{r}:{r+1}], s[{b}:{b+1}]')
    a(f's_cmp_eq_u32 {sWV}, {WB_}\ns_cbranch_scc1 L_B')
    a(f's_cmp_ge_u32 {sWV}, {WA_}\ns_cbranch_scc1 L_notH')
    for i in range(4): a(f'global_load_ushort v{24+i}, v3, s[{18+2*i}:{19+2*i}]')
    a(f's_lshl_b32 s4, {sP}, 2')
    a(f's_load_dword {sTAG}, s[42:43], {EPOCH}\ns_load_dword s76, s[26:27], s4\ns_load_dword s77, s[28:29], s4')
    a('s_branch L_H')
    a('L_notH:')
    a(f's_load_dword {sTAG}, s[42:43], {EPOCH}')
    a(f's_cmp_gt_u32 {sWV}, {WA_}\ns_cbranch_scc1 L_G')
    for r in range(8):
        a(f'buffer_load_dwordx4 v5, {sX}, s13 offen lds')
        if r<7: a(f's_mov_b32 m0, {UB+1056*(r+1)}\ns_add_u32 s13, s13, 1024')
    a('s_branch L_A')

def wave_B():
    a = Asm(); ool=Asm()
    a('L_B:')
    if ABL&64: a('s_endpgm')
    a('s_setprio 3')
    ev=[]; sent=[0]
    def flush(lag):
        best=None
        for idx,val in ev:
            if val>sent[0] and a.vm_issued-idx>=lag: best=(idx,val)
        if best:
            a.wait_vm(best[0]); signal(a,2,WFULL,best[1],24); sent[0]=best[1]
    def drain():
        for idx,val in ev:
            if val>sent[0]:
                a.wait_vm(idx); signal(a,2,WFULL,val,24); sent[0]=val
    def free(v): poll_lds(a, 2, PROG, v, 20, sleep=1, min4=True)
    def free_chk(v):
        S=lab('bs'); R=lab('br')
        a(f's_cmp_lt_u32 s13, {v}\ns_cbranch_scc1 {S}')
        a(f'{R}:')
        ool(f'{S}:')
        poll_lds(ool, 2, PROG, v, 20, sleep=0, min4=True)
        ool(f's_branch {R}')
    NREG=34; R3=32; q3n=[0]
    def q3ins(t,n):
        t(f's_add_u32 s14, s9, {(3*176+(n//22)*704+8*(n%22))*1024}')
        return f'buffer_load_dwordx4 {P4(R3+4*n)}, v{DA}, {sWd}, s14 offen'
    def q3load():
        a.vm(q3ins(a,q3n[0])); q3n[0]+=1
    def wd_addr(t):
        for i in range(1,4): t(f'v_add_u32 v{DA+i}, {i*7168}, v{DA}')
        t(f's_lshr_b32 s9, {sJ}, 2\ns_lshl_b32 s9, s9, 7')
    NIDLE=NREG if Q3AT<8 else 0
    a(f's_cmp_eq_u32 {sTY}, 2\ns_cbranch_scc1 L_Bidle')
    ool('L_Bidle:')
    wd_addr(ool)
    ool('s_barrier')
    if ABL&8: ool('s_branch L_Bwd')
    ool(f'v_lshlrev_b32 v26, 7, v1\ns_and_b32 s11, {sJ}, 1\ns_mul_i32 s11, s11, {704*1024}\ns_mul_i32 s12, {sXCD}, 11\ns_lshr_b32 s12, s12, 2\ns_mov_b32 s14, {NPF}')
    ool(f's_mul_i32 s13, {sXCD}, 6\ns_min_u32 s13, s13, 38\ns_lshl_b32 s13, s13, 13\ns_add_u32 s13, s13, s11\ns_add_u32 s13, s13, {176*1024}\ns_add_u32 s11, s11, {3*176*1024}')
    for i in range(6):
        ool(f'buffer_load_dword v28, v26, {sWd}, s13 offen')
        ool('s_add_u32 s13, s13, 8192')
    ool(f's_mov_b32 s15, {IDLEAT}')
    ool('L_Bi1:')
    ool('s_mov_b32 s13, 22')
    ool('L_Bi2:')
    ool('s_lshl_b32 s8, s12, 13\ns_add_u32 s8, s8, s11')
    ool(f'buffer_load_dword v28, v26, {sWd}, s8 offen')
    ool('s_add_u32 s12, s12, 1\ns_cmp_eq_u32 s12, 22\ns_cselect_b32 s12, 0, s12')
    ool('s_waitcnt vmcnt(4)')
    ool('s_sub_u32 s15, s15, 1\ns_cmp_lg_u32 s15, 0\ns_cbranch_scc1 L_Bi3')
    ool(f'v_mov_b32 v24, 32\nds_write_b32 v2, v24 offset:{WFULL}\nds_write_b32 v2, v24 offset:{ISSUED}')
    ool('L_Bi3:')
    ool('s_sub_u32 s13, s13, 1\ns_cmp_lg_u32 s13, 0\ns_cbranch_scc1 L_Bi2')
    ool(f's_sub_u32 s11, s11, {3*176*1024}\ns_sub_u32 s14, s14, 1\ns_cmp_lg_u32 s14, 0\ns_cbranch_scc1 L_Bi1')
    ool('s_waitcnt vmcnt(0)')
    for n in range(NIDLE): ool(q3ins(ool,n))
    ool('s_branch L_Bwd')
    def xins(r,g,i,setm):
        if setm: a(f's_mov_b32 m0, {XS[r&3]+4096*g}\ns_add_u32 s15, s11, {g*32768}')
        return a.vm(f'buffer_load_dwordx4 v{XD+i}, {sX}, s15 offen offset:{1024*i} lds')
    for g in range(4):
        for i in range(4): xins(0,g,i,i==0)
    for H in range(16):
        r=H>>1; hf=H&1; wb=WS_[H%5]
        if H>=5 and not ABL&32: free_chk(H-4)
        for k2 in range(2):
            ks=2*hf+k2
            for m in range(2):
                if 0<H<15:
                    g=(0 if hf else 2)+k2
                    xins((H+1)>>1,g,2*m,True); xins((H+1)>>1,g,2*m+1,False)
                for u in range(3):
                    a(f's_mov_b32 m0, {wb+m*6144+k2*3072+u*1024-64*u}')
                    n=k2*6+m*3+u
                    if m==0 and u==0: a(f's_add_u32 s8, s12, {ks*16*2752}')
                    elif n==9 and hf==0: a('s_add_u32 s10, s10, 1\ns_and_b32 s10, s10, 7')
                    elif n==10 and hf==0: a('s_lshl_b32 s11, s10, 7\ns_add_u32 s11, s11, s6')
                    elif n==7 and hf==1: a(f's_mul_i32 s12, s10, {64*2752}\ns_add_u32 s12, s12, s7')
                    elif n==2 and 4<=H<15: rd=a.ds(f'ds_read_b128 v[20:23], v2 offset:{PROG}')
                    elif n==8 and 4<=H<15:
                        a.wait_lg(rd); a('v_min3_u32 v20, v20, v21, v22\nv_min_u32 v20, v20, v23')
                    elif n==11 and 4<=H<15: a('v_readfirstlane_b32 s13, v20')
                    last=a.vm(f'buffer_load_dwordx4 v{WA+m}, {[sWg,sWu][m]}, s8 offen offset:{64*u} lds')
                if H>=2*Q3AT and q3n[0]<NIDLE and H<15: q3load()
                flush(LAG)
            if H==0 and k2==0:
                wd_addr(a); a('s_barrier')
        ev.append((last,2*H+2))
        if H==1 and not TAIL: stamp(a,1)
        if H==3 and not TAIL: stamp(a,2)
    signal(a,2,ISSUED,1,25)
    while q3n[0]<NIDLE: q3load()
    drain()
    a('L_Bwd:')
    stamp(a,3)
    if ABL&1:
        finish(a); a.l += ool.l; return a
    a('s_setprio 1')
    if T23:
        a(f'v_lshlrev_b32 v26, 7, v1')
        for i in range(3):
            a(f's_mul_i32 s11, {sJ}, 3\ns_add_u32 s11, s11, {i}\ns_min_u32 s11, s11, 87\ns_add_u32 s12, s11, 44\ns_cmp_lt_u32 s11, 44\ns_cselect_b32 s11, s11, s12\ns_lshl_b32 s11, s11, 13\ns_add_u32 s11, s11, {176*1024}')
            a.vm(f'buffer_load_dword v28, v26, {sWd}, s11 offen')
    for q in range(3):
        st=q*STG
        free({0:12,1:14,2:16}[q])
        for kh in range(2):
            for i in range(22):
                if i%4==0:
                    a(f's_mov_b32 m0, {st+kh*22528+1024*i}\ns_add_u32 s8, s9, {(q*176+kh*704+8*i)*1024}')
                last=a.vm(f'buffer_load_dwordx4 v{DA+(i&3)}, {sWd}, s8 offen offset:{1024*(i&3)} lds')
                if i%4==3:
                    if a.vm_issued-a.vm_done>LAG2: a.wait_vm(a.vm_issued-LAG2)
                    flush(LAG2)
        ev.append((last,33+q))
        if TAIL: stamp(a,[1,2,6][q])
    while q3n[0]<NREG: q3load()
    st=0
    a(f'v_mov_b32 v26, v5')
    drain()
    stamp(a,4)
    free(18)
    for i in range(12,22):
        if i%4==0:
            a(f's_mov_b32 m0, {st+22528+1024*i}\ns_add_u32 s8, s9, {(3*176+704+8*i)*1024}')
        a.vm(f'buffer_load_dwordx4 v{DA+(i&3)}, {sWd}, s8 offen offset:{1024*(i&3)} lds')
    a.wait_vm(a.vm_issued-10)
    for n in range(NREG): a.ds(f'ds_write_b128 v26, {P4(R3+4*n)} offset:{1024*n}')
    a.wait_vm_all()
    signal(a,2,WFULL,36,24)
    a.wait_lg_all()
    stamp(a,5)
    finish(a)
    a.l += ool.l
    return a

def wave_A():
    a = Asm()
    a('L_A:')
    if ABL&4: a('s_endpgm')
    a('s_setprio 2')
    SF=64; ST=96; ONE=20; D1=24; D2=28
    a(f'v_and_b32 v3, 3, v1\nv_lshlrev_b32 v3, 7, v3\nv_bfe_u32 v4, v1, 2, 1\nv_mul_u32_u24 v4, {SFL-HFL}, v4\nv_add_u32 v3, v3, v4')
    a(f's_lshl_b32 s6, s2, 9\ns_add_u32 s6, s6, {HFL}')
    a(f'buffer_load_dword v60, v3, {sWs}, s6 offen sc1')
    a('v_lshrrev_b32 v4, 4, v1')
    a(f'v_and_b32 v3, 7, v1\nv_mul_u32_u24 v3, 1056, v3\nv_bfe_u32 v6, v1, 3, 1\nv_lshl_add_u32 v3, v6, 9, v3\nv_lshl_add_u32 v3, v4, 4, v3\nv_add_u32 v3, {UB}, v3')
    a(f'v_bfe_u32 v6, v1, 2, 2\nv_cmp_eq_u32 s[14:15], v4, v6\nv_mul_u32_u24 v6, 1056, v6\nv_lshl_add_u32 v6, v4, 5, v6\nv_and_b32 v7, 3, v1\nv_lshl_add_u32 v6, v7, 3, v6\nv_add_u32 v6, {UB}, v6')
    a('v_cmp_eq_u32 s[8:9], 1, v7\nv_cmp_eq_u32 s[10:11], 2, v7\nv_cmp_eq_u32 s[12:13], 3, v7')
    for r in range(4): a(f'v_mov_b32 v{ONE+r}, 0x3f803f80')
    a('s_waitcnt lgkmcnt(0)\ns_barrier')
    a(f's_add_u32 {sTAG}, {sTAG}, 1')
    a('s_waitcnt vmcnt(1)')
    stamp(a,1)
    ld=[a.ds(f'ds_read_b128 {P4(SF+4*ks)}, v3 offset:{64*ks}') for ks in range(8)]
    for ks in range(8):
        a.wait_lg(ld[ks])
        f=P4(SF+4*ks)
        a(f'v_mfma_f32_16x16x32_bf16 {P4(D1)}, {f}, {f}, {"0" if ks==0 else P4(D1)}')
        a(f'v_mfma_f32_16x16x32_bf16 {P4(D2)}, {P4(ONE)}, {f}, {"0" if ks==0 else P4(D2)}')
    for i in range(16): a.ds(f'ds_read_b64_tr_b16 {P2(ST+2*i)}, v6 offset:{128*(i>>1)+4224*(i&1)}')
    a(f'v_cndmask_b32 v56, v{D1}, v{D1+1}, s[8:9]\nv_cndmask_b32 v56, v56, v{D1+2}, s[10:11]\nv_cndmask_b32 v56, v56, v{D1+3}, s[12:13]\nv_cndmask_b32 v56, 0, v56, s[14:15]')
    a('v_mov_b32 v57, v56\nv_permlane32_swap_b32 v56, v57\nv_add_f32 v56, v56, v57')
    a('v_mov_b32 v57, v56\nv_permlane16_swap_b32 v56, v57\nv_add_f32 v56, v56, v57')
    a('v_add_f32_dpp v56, v56, v56 row_ror:8 row_mask:0xf bank_mask:0xf')
    a(f'v_add_f32_dpp v57, v{D2}, v{D2} row_ror:8 row_mask:0xf bank_mask:0xf')
    a('v_mul_f32 v57, 0x3b000000, v57')
    a('v_mul_f32 v56, 0x3b000000, v56')
    a('v_fma_f32 v56, -v57, v57, v56\nv_max_f32 v56, 0, v56')
    a('v_cvt_pk_bf16_f32 v56, v56, v56\nv_and_b32 v56, 0xffff0000, v56')
    a('v_add_f32 v56, 0x3727c5ac, v56')
    a('v_cvt_pk_bf16_f32 v56, v56, v56\nv_and_b32 v56, 0xffff0000, v56')
    a('v_sqrt_f32 v56, v56')
    a('v_cvt_pk_bf16_f32 v58, v57, v56')
    a(f'v_mov_b32 v59, {sTAG}')
    a(f's_lshl_b32 s6, {sP}, 6\ns_add_u32 s6, s6, {STATS}')
    a('v_lshlrev_b32 v7, 3, v1')
    a('s_mov_b32 s14, s6')
    a('v_and_b32 v56, 0xffff0000, v58\nv_rcp_f32 v56, v56\nv_lshlrev_b32 v57, 16, v58\nv_mul_f32 v57, v57, v56')
    for r in range(8):
        a(f'v_mov_b32_dpp v{32+r}, v56 row_newbcast:{r} row_mask:0xf bank_mask:0xf')
        a(f'v_mov_b32_dpp v{40+r}, v57 row_newbcast:{r} row_mask:0xf bank_mask:0xf')
    a(f's_lshl_b32 s6, {sP}, 13\ns_add_u32 s6, s6, {XNT}\ns_add_u32 s7, s6, 4096')
    a.wait_lg_all()
    for i in range(8):
        s0=ST+4*i
        for q in range(4): a(f'v_lshlrev_b32 v{48+2*q}, 16, v{s0+q}\nv_and_b32 v{49+2*q}, 0xffff0000, v{s0+q}')
        for e in range(8): a(f'v_fma_f32 v{48+e}, v{48+e}, v{32+e}, -v{40+e}')
        for q in range(4): a(f'v_cvt_pk_bf16_f32 v{s0+q}, v{48+2*q}, v{49+2*q}')
    if STAT:
        L=lab('a')
        a(f's_cmp_eq_u32 {sTY}, 2\ns_cbranch_scc1 {L}')
        poll_lds(a, 2, WFULL, STAT, 24, sleep=2)
        a(f'{L}:')
    for i in range(8):
        a(f'buffer_store_dwordx4 {P4(ST+4*i)}, v5, {sWs}, {"s6" if i<4 else "s7"} offen offset:{1024*(i&3)} sc1')
    a('s_mov_b64 exec, 0xff')
    a(f'buffer_store_dwordx2 v[58:59], v7, {sWs}, s14 offen sc1')
    a('s_mov_b64 exec, -1')
    stamp(a,2)
    a(f'v_add_u32 v7, {UB}, v7\nv_mov_b32 v32, 0\nv_mov_b32 v33, 0')
    a.ds('ds_write_b64 v7, v[32:33]'); a.ds('ds_write_b64 v7, v[32:33] offset:4608')
    a('s_waitcnt vmcnt(0)')
    a(f's_lshl_b32 s6, s2, 2\ns_add_u32 s6, s6, {XF}\ns_mov_b64 exec, 1')
    a(f'buffer_store_dword v59, v32, {sWs}, s6 offen sc1')
    a('s_mov_b64 exec, -1')
    Lnc=lab('a')
    a(f's_cmp_eq_u32 {sTY}, 2\ns_cbranch_scc1 {Lnc}')
    a(f'v_and_b32 v30, 31, v1\nv_lshrrev_b32 v31, 5, v1\nv_mul_u32_u24 v7, 384, v31\nv_lshl_add_u32 v7, v30, 2, v7\nv_add_u32 v7, {CSA}, v7')
    poll_lds(a, 2, CSREADY, 2, 24, sleep=2)
    for e in range(3): a.ds(f'ds_read_b32 v{56+e}, v7 offset:{128*e}')
    a(f's_lshl_b32 s8, {sCG}, 14\ns_lshl_b32 s9, {sRB}, 10\ns_add_u32 s8, s8, s9\ns_add_u32 s8, s8, {CSUM}')
    a.wait_lg_all()
    a(f'buffer_store_dwordx4 v[56:59], v5, {sWs}, s8 offen sc1')
    a(f'{Lnc}:')
    stamp(a,3)
    if ABL&1: finish(a); return a
    CS=64; XG=96
    a('v_lshrrev_b32 v6, 1, v1\nv_lshlrev_b32 v34, 4, v6\nv_lshlrev_b32 v6, 13, v6\nv_and_b32 v3, 1, v1\nv_lshl_add_u32 v6, v3, 4, v6')
    a(f's_lshl_b32 s13, {sP}, 5\ns_add_u32 s13, s13, {XNT}')
    a(f'v_mul_u32_u24 v3, 4608, v3\nv_add_u32 v34, v34, v3\nv_add_u32 v34, {UB+512}, v34')
    a(f's_lshl_b32 s6, {sRB}, 10\ns_add_u32 s6, s6, {STATS}')
    a(f's_and_b32 s8, {sRB}, 8\ns_lshl_b32 s8, s8, 10\ns_lshl_b32 s7, {sCG}, 14\ns_add_u32 s7, s7, s8\ns_add_u32 s7, s7, {CSUM}\ns_add_u32 s15, s7, 4096')
    poll_lds(a, 2, WFULL, GAT, 28, sleep=2)
    L=lab('a'); E=lab('a')
    a('s_mov_b32 s12, 0x4000')
    a(f'{L}:')
    a(f's_mov_b32 s8, {XF}')
    a(f'buffer_load_dwordx4 v[52:55], v5, {sWs}, s8 offen sc1')
    a(f'buffer_load_dwordx4 v[24:27], v5, {sWs}, s6 offen sc1')
    for i in range(8): a(f'buffer_load_dwordx4 {P4(CS+4*i)}, v5, {sWs}, {"s7" if i<4 else "s15"} offen offset:{1024*(i&3)} sc1')
    a('s_waitcnt vmcnt(0)')
    a('v_min_u32 v30, v25, v27\nv_max_u32 v31, v25, v27')
    a('v_min3_u32 v30, v30, v52, v53\nv_max3_u32 v31, v31, v52, v53\nv_min3_u32 v30, v30, v54, v55\nv_max3_u32 v31, v31, v54, v55')
    for i in range(0,8,2):
        a(f'v_min3_u32 v30, v30, v{CS+4*i+3}, v{CS+4*i+7}\nv_max3_u32 v31, v31, v{CS+4*i+3}, v{CS+4*i+7}')
    a(f'v_cmp_ne_u32 vcc, {sTAG}, v30\nv_cmp_ne_u32 s[8:9], {sTAG}, v31\ns_or_b64 vcc, vcc, s[8:9]')
    a(f's_cbranch_vccz {E}')
    a(f's_sleep 4\ns_sub_u32 s12, s12, 1\ns_cmp_lg_u32 s12, 0\ns_cbranch_scc1 {L}')
    a(f'{E}:')
    for st in (4,2,1):
        for i in range(st):
            for e in range(3): a(f'v_add_f32 v{CS+4*i+e}, v{CS+4*i+e}, v{CS+4*(i+st)+e}')
    a(f'v_lshlrev_b32 v30, 3, v1\nv_add_u32 v30, {STL}, v30')
    a.ds('ds_write2_b32 v30, v24, v26 offset0:0 offset1:1')
    a(f'v_and_b32 v30, 31, v1\nv_lshlrev_b32 v30, 3, v30\nv_lshrrev_b32 v31, 5, v1\nv_mul_u32_u24 v31, 768, v31\nv_add_u32 v30, v30, v31\nv_add_u32 v30, {CSA}, v30')
    a('s_mov_b32 s8, 0x07060302')
    for e in range(3):
        v=CS+e; t=40+4*e
        a(f'v_and_b32 v{t}, 0xffff0000, v{v}\nv_sub_f32 v{t+1}, v{v}, v{t}\nv_and_b32 v{t+2}, 0xffff0000, v{t+1}\nv_sub_f32 v{t+3}, v{t+1}, v{t+2}')
        a(f'v_perm_b32 v{t+2}, v{t+2}, v{t}, s8\nv_lshrrev_b32 v{t+3}, 16, v{t+3}')
        a.ds(f'ds_write_b64 v30, {P2(t+2)} offset:{256*e}')
    signal(a, 2, STREADY, 1, 31)
    stamp(a,4)
    poll_lds(a, 2, ISSUED, 1, 28, sleep=1)
    for i in range(8):
        a(f's_add_u32 s8, s13, {i*32*8192}')
        a(f'buffer_load_dwordx4 {P4(XG+4*i)}, v6, {sWs}, s8 offen sc1')
    a(f'v_lshrrev_b32 v3, 3, v1\nv_mul_u32_u24 v3, 3072, v3\nv_add_u32 v12, v3, v{DA}')
    for i in range(1,4): a(f'v_add_u32 v{12+i}, {i*(32768-1024)}, v12')
    a(f's_lshl_b32 s6, {sXCD}, 2\ns_and_b32 s7, {sJ}, 3\ns_add_u32 s6, s6, s7\ns_lshr_b32 s7, {sJ}, 2')
    a(f's_lshr_b32 s12, s6, 4\ns_lshl_b32 s12, s12, 3\ns_add_u32 s12, s12, s7\ns_lshl_b32 s12, s12, 13\ns_add_u32 s12, s12, {SFL}')
    a(f's_lshl_b32 s11, s7, 18\ns_lshl_b32 s10, s6, 7\ns_add_u32 s11, s11, s10\ns_add_u32 s11, s11, {SB}')
    a('s_lshl_b32 s10, s6, 16\ns_lshl_b32 s9, s7, 7\ns_add_u32 s10, s10, s9')
    a('v_lshlrev_b32 v27, 7, v1')
    a('s_waitcnt vmcnt(0)')
    for i in range(8): a.ds(f'ds_write_b128 v34, {P4(XG+4*i)} offset:{512*i}')
    signal(a, 2, UREADY, 1, 31)
    stamp(a,5)
    poll_lds(a, 2, CFIN, 4, 28, sleep=2)
    for g in range(2):
        a(f's_mov_b32 m0, {HREG+8192+4096*g}\ns_add_u32 s8, s10, {g*32768}')
        for i in range(4): a(f'buffer_load_dwordx4 v{XD+i}, {sX}, s8 offen offset:{1024*i} lds')
    poll_lds(a, 2, PROG, SPOLL, 20, sleep=2, min4=True)
    poll_flags(a, 28, 27, 's12', sTAG, 4)
    stamp(a,6)
    for g in range(2):
        a(f's_mov_b32 m0, {HREG+4096*g}\ns_add_u32 s8, s11, {g*131072}')
        for i in range(4): a(f'buffer_load_dwordx4 v{12+i}, {sWs}, s8 offen offset:{1024*i} sc1 lds')
    poll_lds(a, 2, PROG, 19, 20, sleep=1, min4=True)
    a('s_waitcnt vmcnt(0)')
    signal(a,2,XSREADY,1,24)
    a.wait_lg_all()
    stamp(a,7)
    finish(a)
    return a

def wave_H():
    a = Asm()
    a('L_H:')
    if ABL&2: a('s_endpgm')
    a(f's_mul_i32 s13, s14, {KBS}\ns_add_u32 s13, s13, {KB0}')
    a('s_lshl_b32 s12, s15, 12\ns_add_u32 s12, s12, s13')
    WR=8; RA=4
    a('v_and_b32 v28, 15, v1\nv_lshrrev_b32 v29, 4, v1\nv_add_u32 v30, v28, v29\nv_lshlrev_b32 v30, 4, v30\nv_lshl_add_u32 v31, v28, 8, s12')
    for k in range(4): a(f'v_add_u32 v{RA+k}, {64*k}, v30\nv_and_b32 v{RA+k}, 0xff, v{RA+k}\nv_add_u32 v{RA+k}, v{RA+k}, v31')
    a('v_lshlrev_b32 v30, 2, v1')
    for r in range(16): a(f'v_add_u32 v{WR+r}, {16*r}, v30\nv_and_b32 v{WR+r}, 0xff, v{WR+r}\nv_add_u32 v{WR+r}, s12, v{WR+r}')
    a('s_waitcnt lgkmcnt(0)\ns_barrier')
    a('s_lshl_b32 s8, s76, 16\ns_and_b32 s9, s76, 0xffff0000\ns_lshl_b32 s10, s77, 16\ns_and_b32 s11, s77, 0xffff0000\ns_cmp_eq_u32 s14, 0\ns_cselect_b32 s8, s8, s9\ns_cselect_b32 s77, s10, s11')
    a(f'v_mov_b32 v28, s8\nv_mul_f32 v28, {LOG2E}, v28\nv_exp_f32 v28, v28\nv_cvt_pk_bf16_f32 v28, v28, v28\nv_and_b32 v28, 0xffff0000, v28\nv_add_f32 v29, v28, v28')
    W=lambda e: 32+2*e
    Pm=lambda m: (50+2*(m-1)) if m<8 else (64+2*(m&1))
    Bj=lambda j: 68+2*(j&1)
    TM=lambda k: 72+2*(k&3)
    PK=lambda t,r: 80+16*t+r
    a('s_waitcnt vmcnt(0)')
    stamp(a,1)
    for i in range(4): a(f'v_lshlrev_b32 v{24+i}, 16, v{24+i}')
    a(f'v_mul_f32 v24, {LOG2E}, v24\nv_mul_f32 v25, v25, v28\nv_exp_f32 v24, v24\nv_mul_f32 v{Bj(0)}, v26, v29\nv_mul_f32 v{Bj(0)+1}, v27, v29')
    a('v_mul_f32 v25, 0x3e22f983, v25\nv_cvt_pk_bf16_f32 v24, v24, v24\nv_mul_f32 v27, 0x43000000, v25\nv_and_b32 v24, 0xffff0000, v24\nv_fract_f32 v25, v25')
    a('v_mul_f32 v24, v24, v28\nv_fract_f32 v27, v27\nv_mul_f32 v24, 0xbfb8aa3b, v24')
    a(f'v_cos_f32 v{W(1)}, v25\nv_mul_f32 v26, 0x43000000, v24\nv_sin_f32 v{W(1)+1}, v25\nv_exp_f32 v24, v24\nv_cos_f32 v{Pm(1)}, v27\nv_exp_f32 v26, v26\nv_sin_f32 v{Pm(1)+1}, v27')
    a(f'v_pk_mul_f32 {P2(W(1))}, {P2(W(1))}, v[24:25] op_sel_hi:[1,0]\nv_pk_mul_f32 {P2(Pm(1))}, {P2(Pm(1))}, v[26:27] op_sel_hi:[1,0]')
    pend=[]
    nb=[0]
    def sinkA(src,t,r): return [('v',f'v_cvt_pk_bf16_f32 v{PK(t,r)}, v{src}, v{src+1}')]
    def sinkB(src,j):
        p=30+(nb[0]&1); nb[0]+=1
        return [('v',f'v_cvt_pk_bf16_f32 v{p}, v{src}, -v{src+1}'), ('d',f'ds_write_b32 v{WR+j}, v{p} offset:{256*j}')]
    def step(cm):
        nonlocal pend
        for d,x,y,_ in cm: a(f'v_pk_mul_f32 {P2(d)}, {P2(x)}, {P2(y)} op_sel_hi:[0,1]')
        late=[z for z in pend if z[0]=='d']
        for k,x in pend:
            if k=='v': a(x)
        for d,x,y,_ in cm: a(f'v_pk_fma_f32 {P2(d)}, {P2(x)}, {P2(y)}, {P2(d)} op_sel:[1,1,0] op_sel_hi:[1,0,1] neg_lo:[1,0,0]')
        for k,x in late: a.ds(x)
        pend=[]
        for d,x,y,s in cm: pend+=s
    def pos(m):
        if m==1: return (0,8)
        if m<4: return (1,4*(m-2))
        if m<8: return (1,8+2*(m-4))
        return (2,m-8)
    cP=lambda m: (Pm(m),Pm(m-1),Pm(1),sinkA(Pm(m),*pos(m)))
    cW=lambda e,x,y: (W(e),W(x),W(y),sinkA(W(e),0,e) if e<8 else [])
    a(f'v_mov_b32 v{PK(0,0)}, 0x3f80')
    pend=sinkA(W(1),0,1)+sinkA(Pm(1),0,8)+sinkB(Bj(0),0)
    step([cW(2,1,1), cP(2)])
    step([cW(4,2,2), cW(3,2,1), cP(3)])
    step([cW(8,4,4), cW(5,4,1), cW(6,4,2), cW(7,4,3), cP(4)])
    pool=[(1,e,0,8+e) for e in range(1,8)]+[(m,2*e,1,4*(m-2)+e) for m in (2,3) for e in (1,2,3)]+[(m,4,1,9+2*(m-4)) for m in range(4,8)]
    tk=0
    for j in range(1,16):
        cm=[(Bj(j),Bj(j-1),W(8),sinkB(Bj(j),j))]
        if j+4<=16: cm.append(cP(j+4))
        for _ in range(1 if j+4<=16 else 2):
            if pool:
                m,e,t,r=pool.pop(0); cm.append((TM(tk),Pm(m),W(e),sinkA(TM(tk),t,r))); tk+=1
        step(cm)
    assert not pool
    step([])
    BF=32; AF=lambda t: 48+16*t if t<2 else 128; DK=144
    for k in range(4): a.ds(f'ds_read_b128 {P4(BF+4*k)}, v{RA+k}')
    rd={}
    for t in range(3):
        for r in range(16 if t<2 else 9): a.ds(f'ds_write_b32 v{WR+r}, v{PK(t,r)} offset:{256*r}')
        for k in range(4): rd[t]=a.ds(f'ds_read_b128 {P4(AF(t)+4*k)}, v{RA+k}')
    for t in range(3):
        a.wait_lg(rd[t])
        for k in range(4): a(f'v_mfma_f32_16x16x32_bf16 {P4(DK+4*t)}, {P4(AF(t)+4*k)}, {P4(BF+4*k)}, {"0" if k==0 else P4(DK+4*t)}')
    a('s_add_u32 s8, s13, 4096\nv_lshl_add_u32 v28, v1, 4, s8')
    a('s_lshl_b32 s8, s14, 2\nv_add_u32 v29, s8, v2')
    a(f's_cmp_eq_u32 s15, 0\ns_cbranch_scc1 L_Kfin')
    for t in range(3): a(f'ds_write_b128 v28, {P4(DK+4*t)} offset:{1024*t}')
    a(f'v_mov_b32 v30, 1\nds_write_b32 v29, v30 offset:{KX}')
    a('s_branch L_conv')
    a('L_Kfin:')
    a('v_and_b32 v12, 15, v1\nv_lshrrev_b32 v13, 4, v1')
    a('s_add_u32 s12, s13, 64')
    a('v_lshrrev_b32 v14, 1, v13\nv_lshlrev_b32 v14, 7, v14\nv_and_b32 v15, 1, v13\nv_lshl_add_u32 v14, v15, 2, v14\nv_lshl_add_u32 v14, v12, 3, v14\nv_lshl_add_u32 v14, v14, 2, s12')
    a('v_cmp_gt_u32 vcc, 2, v13\nv_lshlrev_b32 v15, 1, v12\nv_lshlrev_b32 v16, 2, v12\nv_cndmask_b32 v15, v15, v16, vcc\nv_lshl_add_u32 v15, v13, 6, v15\nv_lshl_add_u32 v15, v15, 2, s12')
    a('v_mov_b32 v16, 128\nv_cndmask_b32 v16, v16, 8, vcc\nv_add_u32 v16, v16, v15')
    a('v_lshl_add_u32 v17, v13, 6, v12\nv_lshl_add_u32 v17, v17, 2, s12')
    a('v_lshl_add_u32 v18, v1, 3, s12')
    a('v_lshl_add_u32 v19, v1, 4, s13')
    a('v_cmp_eq_u32 vcc, 0, v1\nv_add_u32 v20, 4, v18\nv_cndmask_b32 v20, v20, v18, vcc')
    a('v_mov_b32 v21, 0\nv_mov_b32 v22, s13')
    a('v_sub_u32 v23, 63, v1')
    a('v_lshl_add_u32 v24, v23, 5, s13\nv_lshl_add_u32 v25, v23, 4, s13\nv_lshl_add_u32 v26, v23, 3, s13')
    a('v_and_b32 v27, 7, v1\nv_lshl_add_u32 v27, v27, 2, s13')
    poll_lds(a, 29, KX, 1, 30, sleep=0)
    for t in range(3): a.ds(f'ds_read_b128 {P4(32+4*t)}, v28 offset:{1024*t}')
    a.wait_lg_all()
    for r in range(12): a(f'v_add_f32 v{DK+r}, v{DK+r}, v{32+r}')
    a.ds(f'ds_write_b32 v22, v21 offset:60')
    a.ds(f'ds_write_b128 v14, {P4(DK)}')
    a.ds(f'ds_write_b64 v15, {P2(DK+4)} offset:1024')
    a.ds(f'ds_write_b64 v16, {P2(DK+6)} offset:1024')
    for r in range(4): a.ds(f'ds_write_b32 v17, v{DK+8+r} offset:{2048+64*r}')
    E=32
    a.ds(f'ds_read_b64 {P2(E)}, v18 offset:2048'); a.ds(f'ds_read_b32 v{E+2}, v18 offset:2056')
    a.ds(f'ds_read_b64 {P2(E+4)}, v18 offset:1536'); a.ds(f'ds_read_b32 v{E+6}, v18 offset:1544')
    a.ds(f'ds_read_b64 {P2(E+8)}, v18 offset:1024'); a.ds(f'ds_read_b32 v{E+10}, v18 offset:1032')
    a.ds(f'ds_read_b32 v{E+11}, v20 offset:1020')
    a.ds(f'ds_read_b128 {P4(E+12)}, v19 offset:64'); a.ds(f'ds_read_b32 v{E+16}, v19 offset:60')
    a.wait_lg_all()
    O=100
    def pk(d,lo,hi): a(f'v_cvt_pk_bf16_f32 v{d}, v{lo}, v{hi}')
    A_,B_,C_=E,E+1,E+2
    for k,(lo,hi) in enumerate([(C_,C_),(C_,C_),(B_,B_),(B_,B_),(B_,B_),(B_,A_),(A_,A_),(A_,A_)]): pk(O+k,lo,hi)
    for k,(lo,hi) in enumerate([(C_,C_),(C_,B_),(B_,B_),(B_,B_),(B_,B_),(A_,A_),(A_,A_),(A_,A_)]): pk(O+8+k,lo,hi)
    a.ds(f'ds_write_b128 v24, {P4(O)}'); a.ds(f'ds_write_b128 v24, {P4(O+4)} offset:16')
    a.ds(f'ds_write_b128 v24, {P4(O+8)} offset:4160'); a.ds(f'ds_write_b128 v24, {P4(O+12)} offset:4176')
    A_,B_,C_=E+4,E+5,E+6
    for k,(lo,hi) in enumerate([(C_,C_),(B_,B_),(B_,A_),(A_,A_),(C_,B_),(B_,B_),(A_,A_),(A_,A_)]): pk(O+16+k,lo,hi)
    a.ds(f'ds_write_b128 v25, {P4(O+16)} offset:2048'); a.ds(f'ds_write_b128 v25, {P4(O+20)} offset:{2048+4160}')
    A_,B_,C_=E+8,E+9,E+10
    for k,(lo,hi) in enumerate([(C_,B_),(A_,A_),(B_,A_),(A_,E+11)]): pk(O+24+k,lo,hi)
    a.ds(f'ds_write_b64 v26, {P2(O+24)} offset:3072'); a.ds(f'ds_write_b64 v26, {P2(O+26)} offset:{3072+4160}')
    k0=E+12
    for k,(lo,hi) in enumerate([(k0+3,k0+2),(k0+1,k0),(k0+2,k0+1),(k0,E+16)]): pk(O+28+k,lo,hi)
    a.ds(f'ds_write_b64 v26, {P2(O+28)} offset:3584'); a.ds(f'ds_write_b64 v26, {P2(O+30)} offset:{3584+4160}')
    a.ds('ds_write_b32 v27, v21 offset:4096'); a.ds(f'ds_write_b32 v27, v21 offset:{4096+4160}')
    signal(a, 29, KREADY, 1, 24)
    a('L_conv:')
    stamp(a,2)
    if ABL&1: finish(a); return a
    a(f's_mul_i32 s12, s14, 4608\ns_add_u32 s12, s12, {UB}')
    a('s_lshl_b32 s10, s15, 8')
    a('v_and_b32 v3, 15, v1\nv_lshrrev_b32 v4, 4, v1')
    a('v_lshrrev_b32 v5, 1, v3\nv_lshl_add_u32 v5, v4, 2, v5\nv_lshlrev_b32 v5, 2, v5\nv_and_b32 v6, 1, v3\nv_mul_u32_u24 v6, 4160, v6\nv_add_u32 v5, v5, v6')
    a(f's_add_u32 s8, s13, {4160+4108-512-192}\ns_sub_u32 s8, s8, s10')
    a('v_sub_u32 v8, s8, v5')
    for ap in range(1,4): a(f'v_subrev_u32 v{8+ap}, {1024*ap}, v8')
    a('v_lshlrev_b32 v5, 5, v3\nv_lshlrev_b32 v6, 4, v4\nv_sub_u32 v6, v5, v6')
    a(f's_add_u32 s8, s12, {528-192}\ns_sub_u32 s8, s8, s10')
    a('v_add_u32 v12, s8, v6')
    a(f's_lshl_b32 s8, {sWV}, 2\nv_add_u32 v14, s8, v2\ns_xor_b32 s8, s8, 8\nv_add_u32 v15, s8, v2')
    a('v_lshl_add_u32 v5, v4, 3, v5\nv_add_u32 v16, s12, v5')
    a('s_lshl_b32 s8, s15, 12\ns_add_u32 s8, s8, s13\nv_lshl_add_u32 v17, v1, 4, s8')
    a('s_xor_b32 s9, s15, 1\ns_lshl_b32 s9, s9, 12\ns_add_u32 s9, s9, s13\nv_lshl_add_u32 v18, v1, 4, s9\nv_add_u32 v19, s9, v5')
    a(f's_lshl_b32 s6, {sP}, 1\ns_add_u32 s6, s6, s14')
    a(f's_lshl_b32 s8, s15, 9\ns_add_u32 s7, s6, s8\ns_lshl_b32 s7, s7, 7\ns_add_u32 s7, s7, {SFL}')
    a(f's_lshl_b32 s6, s6, 12\ns_lshl_b32 s8, s15, 11\ns_add_u32 s6, s6, s8\ns_add_u32 s6, s6, {SB}')
    a(f'v_lshlrev_b32 v6, 4, v1\ns_add_u32 s8, {sTAG}, 1\nv_mov_b32 v24, s8\nv_mov_b32 v25, 0\nv_mov_b32 v26, 1')
    a('s_cmp_eq_u32 s15, 0\ns_cselect_b32 s10, s77, 0\ns_cselect_b32 s11, 0, s77')
    poll_lds(a, 29, KREADY, 1, 20, sleep=4)
    poll_lds(a, 2, UREADY, 1, 20, sleep=4)
    ACC=32; FA=lambda k: 64+4*k; FB=lambda k: 96+4*k
    for q in range(8): a.ds(f'ds_read_b64 {P2(128+2*q)}, v16 offset:{512+512*q}')
    a.wait_lg_all()
    ra={}; rb={}
    def rdA(it,k):
        ap=k>>1; o=(1-(k&1))*128+16*(3-it)
        a.ds(f'ds_read2_b32 {P2(FA(k))}, v{8+ap} offset0:{o} offset1:{o+1}')
        ra[it,k]=a.ds(f'ds_read2_b32 {P2(FA(k)+2)}, v{8+ap} offset0:{o+2} offset1:{o+3}')
    def rdB(it,k):
        rb[it,k]=a.ds(f'ds_read_b128 {P4(FB(k))}, v12 offset:{512*k+64*(3-it)}')
    for k in range(8): rdA(0,k); rdB(0,k)
    for r in range(32):
        src=128+(r>>1)
        a(f'v_lshlrev_b32 v{ACC+r}, 16, v{src}' if r%2==0 else f'v_and_b32 v{ACC+r}, 0xffff0000, v{src}')
    for r in range(32): a(f'v_mul_f32 v{ACC+r}, {"s10" if r<16 else "s11"}, v{ACC+r}')
    poll_lds(a, 2, PROG, 17, 20, sleep=1, min4=True)
    a(f's_setprio {CPRIO}')
    stamp(a,3)
    for it in range(4):
        for aa in range(8):
            for b in range(7-aa,-1,-1):
                d=P4(ACC+4*(aa+b))
                a.wait_lg(max(ra[it,aa], rb[it,b]))
                a(f'v_mfma_f32_16x16x32_bf16 {d}, {P4(FA(aa))}, {P4(FB(b))}, {d}')
                if it<3 and b==7-aa: rdB(it+1,b)
            if it<3: rdA(it+1,aa)
            if it==3 and aa==3: fl=a.ds(f'ds_read_b32 v20, v15 offset:{CDONE}')
        if it==2: a.ds(f'ds_write_b32 v14, v26 offset:{CDONE}')
    stamp(a,4)
    a.wait_lg(fl)
    L=lab('c')
    a(f'v_readfirstlane_b32 s4, v20\ns_cmp_ge_u32 s4, 1\ns_cbranch_scc1 {L}')
    poll_lds(a, 15, CDONE, 1, 20, sleep=0)
    a(f'{L}:')
    def tail(keep, send):
        for q in range(4): a(f'ds_write_b128 v17, {P4(send+4*q)} offset:{1024*q}')
        a(f'ds_write_b32 v14, v26 offset:{CXCH}')
        poll_lds(a, 15, CXCH, 1, 20, sleep=0)
        for q in range(4): a(f'ds_read_b128 {P4(64+4*q)}, v18 offset:{1024*q}')
        for q in range(4):
            a(f's_waitcnt lgkmcnt({3})')
            for e in range(4): a(f'v_add_f32 v{keep+4*q+e}, v{keep+4*q+e}, v{64+4*q+e}')
            a(f'v_cvt_pk_bf16_f32 v{80+2*q}, v{keep+4*q}, v{keep+4*q+1}\nv_cvt_pk_bf16_f32 v{81+2*q}, v{keep+4*q+2}, v{keep+4*q+3}')
            a(f'ds_write_b64 v19, {P2(80+2*q)} offset:{512*q}')
    L=lab('c'); L2=lab('c')
    a(f's_cmp_eq_u32 s15, 0\ns_cbranch_scc1 {L}')
    a('s_nop 3')
    tail(ACC+16, ACC)
    a(f's_branch {L2}')
    a(f'{L}:')
    a('s_nop 3')
    tail(ACC, ACC+16)
    a(f'{L2}:')
    a('ds_read_b128 v[88:91], v18\nds_read_b128 v[92:95], v18 offset:1024')
    a(f's_mov_b64 exec, 1\nds_add_u32 v2, v26 offset:{CFIN}\ns_mov_b64 exec, -1')
    a('s_waitcnt lgkmcnt(2)')
    a(f'buffer_store_dwordx4 v[88:91], v6, {sWs}, s6 offen sc1')
    a('s_waitcnt lgkmcnt(1)')
    a(f'buffer_store_dwordx4 v[92:95], v6, {sWs}, s6 offen offset:1024 sc1')
    stamp(a,5)
    a('s_mov_b64 exec, 1\ns_waitcnt vmcnt(0)')
    a(f'buffer_store_dword v24, v25, {sWs}, s7 offen sc1')
    stamp(a,6)
    finish(a)
    return a

def wave_G():
    a = Asm(); ool = Asm()
    a('L_G:')
    a('s_setprio 3')
    ACC=lambda tt,j: 72+16*(3*tt+j)
    FW=lambda par,j: 32+20*par+4*j
    FX=lambda par,tt: 32+20*par+12+4*tt
    CA=lambda j: 20+4*j
    SEL=16
    TR=3; XR=6; vP=10; vT=11; vL16=12; t0=13; t1=14; t2=15
    a(f's_sub_u32 s13, {sWV}, {WG_}\ns_and_b32 s14, s13, 1\ns_lshr_b32 s15, s13, 1')
    a(f'v_and_b32 v{t0}, 31, v1\nv_bfe_u32 v{t1}, v1, 1, 3\nv_lshrrev_b32 v{t2}, 5, v1\nv_xor_b32 v{t1}, v{t1}, v{t2}\nv_lshlrev_b32 v{t1}, 4, v{t1}\nv_lshl_add_u32 v{t0}, v{t0}, 7, v{t1}')
    a(f's_lshl_b32 s7, s14, 13\nv_add_u32 v{XR}, s7, v{t0}')
    for k in range(1,4): a(f'v_xor_b32 v{XR+k}, {32*k}, v{XR}')
    a(f'v_bfe_u32 v{t0}, v1, 4, 1\nv_bfe_u32 v{t1}, v1, 2, 2\nv_lshl_add_u32 v{t2}, v{t2}, 3, v{t1}\nv_lshlrev_b32 v{t2}, 6, v{t2}')
    a(f'v_and_b32 v{t1}, 3, v1\nv_lshl_add_u32 v{t2}, v{t1}, 3, v{t2}\nv_mul_u32_u24 v{t1}, {6144+32}, v{t0}\nv_add_u32 v{t2}, v{t2}, v{t1}')
    for j in range(3):
        a(f's_mul_i32 s8, s15, 3\ns_add_u32 s8, s8, {j}\ns_and_b32 s9, s8, 1\ns_lshl_b32 s9, s9, 5\ns_lshr_b32 s8, s8, 1\ns_lshl_b32 s8, s8, 10\ns_add_u32 s8, s8, {WS_[0]}')
        a(f'v_xor_b32 v{TR+j}, s9, v{t2}\nv_add_u32 v{TR+j}, s8, v{TR+j}')
    a(f's_lshl_b32 s8, s13, 2\nv_add_u32 v{vP}, s8, v2')
    a(f'v_lshlrev_b32 v{vL16}, 4, v1')
    a(f's_lshl_b32 s8, {sRB}, 1\ns_add_u32 s8, s8, s14\ns_mul_i32 s76, s8, {2*HROW}\ns_add_u32 s76, s76, {HB}')
    a(f's_lshl_b32 s8, s8, 5\ns_lshl_b32 s9, {sCG}, 1\ns_add_u32 s9, s9, s15\ns_add_u32 s8, s8, s9\ns_lshl_b32 s8, s8, 7\ns_add_u32 s78, s8, {HFL}')
    a(f's_mul_i32 s9, s9, 3072\ns_add_u32 s76, s76, s9\ns_add_u32 s77, s76, {HROW}')
    a(f'v_and_b32 v{t1}, 1, v1\nv_cmp_eq_u32 vcc, v{t0}, v{t1}\nv_mov_b32 v{t1}, 0x3f803f80\nv_cndmask_b32 v{t0}, 0, v{t1}, vcc')
    a(f's_bfe_u32 s11, {sRB}, 0x10002\ns_cmp_eq_u32 s11, 0\ns_cselect_b32 s10, -1, 0\ns_cselect_b32 s11, 0, -1')
    for r in range(4): a(f'v_and_b32 v{SEL+r}, s10, v{t0}')
    a('s_waitcnt lgkmcnt(0)\ns_barrier')
    a(f's_add_u32 {sTAG}, {sTAG}, 1')
    a(f's_add_u32 s8, {sTY}, s15\ns_cmp_ge_u32 s8, 2\ns_cselect_b32 s8, {sTY}, 0\ns_cmp_lg_u32 s8, 0\ns_cbranch_scc1 L_Gskip')
    ool('L_Gskip:')
    ool(f's_xor_b32 s8, s14, 1\nv_mov_b32 v{t1}, s8\ns_mov_b64 exec, 1')
    ool(f'ds_add_u32 v2, v{t1} offset:{CSREADY}')
    ool('s_mov_b64 exec, -1')
    ool(f's_cmp_eq_u32 {sTY}, 2\ns_cbranch_scc1 L_Gepi')
    for r in range(72,76): ool(f'v_mov_b32 v{r}, 0')
    ool('s_sub_u32 s76, s76, 1024\ns_sub_u32 s77, s77, 1024')
    for sb_ in ('s76','s77'):
        for o in (0,1024): ool(f'buffer_store_dwordx4 v[72:75], v{vL16}, {sWs}, {sb_} offen offset:{o} sc1')
    ool('s_branch L_Gepi')
    def chk(val, off=WFULL):
        if ABL&16: val=0
        S=lab('gs'); R=lab('gr')
        a(f's_cmp_lt_u32 s4, {val}\ns_cbranch_scc1 {S}')
        a(f'{R}:')
        ool(f'{S}:')
        poll_lds(ool, 2, off, val, vT, sleep=0)
        ool(f's_branch {R}')
    def rd_flag(off=WFULL): return a.ds(f'ds_read_b32 v{vT}, v2 offset:{off}')
    def get_flag(rd):
        a.wait_lg(rd); a(f'v_readfirstlane_b32 s4, v{vT}')
    def prog(v):
        a(f'v_mov_b32 v{t1}, {v}')
        a.ds(f'ds_write_b32 v{vP}, v{t1} offset:{PROG}')
    fr={}
    def rdx(ks,tt):
        fr[ks,'x',tt]=a.ds(f'ds_read_b128 {P4(FX(ks&1,tt))}, v{XR+(ks&3)} offset:{4096*tt}')
    def rdw(ks,j):
        for n in range(2): fr[ks,'w',j]=a.ds(f'ds_read_b64_tr_b16 {P2(FW(ks&1,j)+2*n)}, v{TR+j} offset:{(ks&1)*3072+256*n}')
    def addc(regs_, d):
        op='v_add_u32' if d>0 else 'v_subrev_u32'
        for x in regs_: a(f'{op} v{x}, {abs(d)}, v{x}')
    def adv(regs_, r):
        if r<7: addc(regs_, XS[(r+1)&3]-XS[r&3])
    def advw(H):
        if H<15: addc([TR,TR+1,TR+2], WS_[(H+1)%5]-WS_[H%5])
    vC1=[16,17]; vQ=[18,19]; vM=[20,22]; CSF=24
    if not ABL&64: poll_lds(a, 2, WFULL, 2, vT, sleep=1)
    if not TAIL: stamp(a,1)
    for ks in range(2):
        rdx(ks,0); rdw(ks,0); rdw(ks,1); rdw(ks,2); rdx(ks,1); adv([XR+ks],0)
    fl=rd_flag()
    for ks in range(32):
        r=ks>>2; kk=ks&3; par=ks&1; k2=ks+2
        for n,(tt,j) in enumerate([(tt,j) for tt in range(2) for j in range(3)]):
            a.wait_lg(max(fr[ks,'x',tt], fr[ks,'w',j]))
            d=P16(ACC(tt,j))
            a(f'v_mfma_f32_32x32x16_bf16 {d}, {P4(FW(par,j))}, {P4(FX(par,tt))}, {"0" if ks==0 else d}')
            if r<2 and tt==1:
                c=P4(CA(j))
                a(f'v_mfma_f32_16x16x32_bf16 {c}, {P4(SEL)}, {P4(FW(par,j))}, {"0" if ks==0 else c}')
            if not (ks&1) and n==0: prog((ks>>1)+1)
            if k2<32:
                if not (ks&1):
                    if n==0: get_flag(fl)
                    if n==1: chk(ks+4)
                    if n==2: advw(ks>>1)
                elif n==0 and ks<29: fl=rd_flag()
                if n==2: rdx(k2,0)
                if n>=3: rdw(k2,n-3)
                if n==5: rdx(k2,1)
            if n==1 and ks>=1 and ks+1<32: adv([XR+((ks+1)&3)], (ks+1)>>2)
            if not ABL&1:
                if ks==29 and n==3: fl=rd_flag(STREADY)
                if ks==29 and n==1: a(f'v_and_b32 v{t0}, 31, v1\ns_lshl_b32 s8, s14, 8\ns_add_u32 s8, s8, {STL}\nv_lshl_add_u32 v{t2}, v{t0}, 2, s8')
                if ks==30 and n==1: get_flag(fl)
                if ks==30 and n==2:
                    chk(1,STREADY)
                    a.ds(f'ds_read2_b32 v[30:31], v{t2} offset0:0 offset1:32')
                    a(f's_mul_i32 s8, s15, 768\ns_add_u32 s8, s8, {CSA}\nv_lshl_add_u32 v{t0}, v{t0}, 3, s8')
                if ks==30 and n==3:
                    for jj in range(3): cs=a.ds(f'ds_read_b64 {P2(CSF+2*jj)}, v{t0} offset:{256*jj}')
                    a('v_cmp_gt_u32 vcc, 32, v1')
                if ks==31 and n in (0,2):
                    z=n>>1; s_=30+z
                    if n==0: a.wait_lg(cs)
                    a(f'v_and_b32 v{vQ[z]}, 0xffff0000, v{s_}\nv_and_b32 v{s_}, 0xffff, v{s_}\nv_xor_b32 v{s_}, 0x8000, v{s_}\nv_rcp_f32 v{vC1[z]}, v{vQ[z]}')
                if ks==31 and n in (1,3):
                    z=n>>1; s_=30+z
                    a(f'v_lshl_or_b32 v{vM[z]}, v{s_}, 16, v{s_}\nv_cndmask_b32 v{vM[z]+1}, 0, v{s_}, vcc\nv_cndmask_b32 v{vM[z]}, 0, v{vM[z]}, vcc\nv_mul_f32 v{vQ[z]}, v{vQ[z]}, v{vQ[z]}\nv_mul_f32 v{vC1[z]}, 0xbfb8aa3b, v{vC1[z]}')
        if ks==3:
            for rr in range(4): a(f'v_and_b32 v{SEL+rr}, s11, v{t0}')
        if ks==8:
            L=lab('g')
            a(f's_cmp_eq_u32 s14, 1\ns_cbranch_scc1 {L}')
            a(f's_mul_i32 s8, s15, 384\ns_add_u32 s8, s8, {CSA}\nv_lshl_add_u32 v{t2}, v1, 2, s8\nv_mov_b32 v{t1}, 1')
            a('s_mov_b64 exec, 0xffff')
            for j in range(3): a(f'ds_write2_b32 v{t2}, v{CA(j)}, v{CA(j)+1} offset0:{32*j} offset1:{32*j+16}')
            a('s_mov_b64 exec, 1')
            a(f'ds_add_u32 v2, v{t1} offset:{CSREADY}')
            a('s_mov_b64 exec, -1')
            a(f'{L}:')
        if ks==7 and not TAIL: stamp(a,2)
    stamp(a,3)
    if ABL&1:
        a('L_Gepi:'); prog(17); finish(a); a.l += ool.l
        return a
    for j in range(3):
        for tt in range(2):
            d=P16(ACC(tt,j))
            a(f'v_mfma_f32_32x32x8_bf16 {d}, {P2(CSF+2*j)}, {P2(vM[tt])}, {d}')
    def epi(tt,j):
        A=ACC(tt,j); l=[]
        sel='op_sel_hi:[1,0]' if tt==0 else 'op_sel:[0,1]'
        sel3='op_sel_hi:[1,0,0]' if tt==0 else 'op_sel:[0,1,1]'
        for r in range(0,8,2): l.append(f'v_pk_mul_f32 {P2(A+8+r)}, {P2(A+r)}, {P2(A+8+r)}')
        for r in range(0,8,2): l.append(f'v_pk_mul_f32 {P2(A+r)}, {P2(A+r)}, {P2(vC1[0])} {sel}')
        for r in range(8): l.append(f'v_exp_f32 v{A+r}, v{A+r}')
        for r in range(0,8,2): l.append(f'v_pk_fma_f32 {P2(A+r)}, {P2(A+r)}, {P2(vQ[0])}, {P2(vQ[0])} {sel3}')
        for r in range(8): l.append(f'v_rcp_f32 v{A+r}, v{A+r}')
        for r in range(0,8,2): l.append(f'v_pk_mul_f32 {P2(A+8+r)}, {P2(A+8+r)}, {P2(A+r)}')
        for q in range(4): l.append(f'v_cvt_pk_bf16_f32 v{A+q}, v{A+8+2*q}, v{A+9+2*q}')
        l.append(f'buffer_store_dwordx4 {P4(A)}, v{vL16}, {sWs}, {["s76","s77"][tt]} offen offset:{1024*j} sc1')
        return l
    for j in range(3):
        if j==2: a(f's_cmp_eq_u32 {sTY}, 1\ns_cbranch_scc1 L_Gepi')
        for tt in range(2):
            for x in epi(tt,j): a(x)
    a('L_Gepi:')
    prog(17)
    stamp(a,4)
    a(f'v_lshrrev_b32 v{t2}, 5, v1\nv_bfe_u32 v{t1}, v1, 2, 2\nv_lshl_add_u32 v{t2}, v{t2}, 2, v{t1}\nv_lshlrev_b32 v{t2}, 7, v{t2}')
    a(f'v_bfe_u32 v{t1}, v1, 3, 1\nv_lshl_add_u32 v{t2}, v{t1}, 6, v{t2}\nv_bfe_u32 v{t1}, v1, 4, 1\nv_lshl_add_u32 v{t2}, v{t1}, 5, v{t2}\nv_and_b32 v{t1}, 3, v1\nv_lshl_add_u32 v{t2}, v{t1}, 3, v{t2}')
    a(f's_mul_i32 s8, s15, 22528\nv_add_u32 v{TR}, s8, v{t2}\nv_xor_b32 v{TR+1}, 64, v{TR}')
    a(f'v_mov_b32 v{t0}, {sTAG}\nv_mov_b32 v{t1}, 0')
    L=lab('g')
    a(f's_cmp_eq_u32 {sTY}, 2\ns_cbranch_scc1 {L}')
    a('s_mov_b64 exec, 1\ns_waitcnt vmcnt(0)')
    a(f'buffer_store_dword v{t0}, v{t1}, {sWs}, s78 offen sc1')
    a('s_mov_b64 exec, -1')
    a(f'{L}:')
    if TAIL: stamp(a,2)
    a(f's_lshl_b32 s8, {sXCD}, 3\ns_and_b32 s9, {sJ}, 3\ns_lshl_b32 s9, s9, 1\ns_add_u32 s8, s8, s9\ns_add_u32 s76, s8, s14')
    a(f's_mul_i32 s77, s76, {HROW}\ns_mul_i32 s8, s15, {44*1024}\ns_add_u32 s77, s77, s8\ns_add_u32 s77, s77, {HB}')
    HR=8
    WF=lambda k: (112+4*(k-8)) if 8<=k<22 else 16+4*(k&7)
    HF=lambda n: 80+4*(n%HR)
    curs=[0]
    def trw(k):
        q=k//22; kk=k%22; st=q%3
        if st!=curs[0]:
            d=(st-curs[0])*STG; op='v_add_u32' if d>0 else 'v_subrev_u32'
            a(f'{op} v{TR}, {abs(d)}, v{TR}\n{op} v{TR+1}, {abs(d)}, v{TR+1}'); curs[0]=st
        for nn in range(2):
            r_=a.ds(f'ds_read_b64_tr_b16 {P2(WF(k)+2*nn)}, v{TR+(k&1)} offset:{2048*(kk>>1)+1024*nn}')
        return r_
    poll_lds(a, 2, WFULL, 33, vT, sleep=1)
    for k in range(22): trw(k)
    prog(18)
    a(f's_add_u32 s9, s15, 14\nv_min_u32 v{t0}, s9, v1\nv_lshlrev_b32 v{t0}, 7, v{t0}')
    a(f's_lshr_b32 s8, s76, 1\ns_lshl_b32 s8, s8, 5\ns_mul_i32 s9, s15, 14\ns_add_u32 s8, s8, s9\ns_lshl_b32 s8, s8, 7\ns_add_u32 s8, s8, {HFL}')
    a('s_mov_b64 exec, 0xffff')
    poll_flags(a, t1, t0, 's8', sTAG, PSLEEP)
    a('s_mov_b64 exec, -1')
    if TAIL: stamp(a,1)
    hl={}
    def hload(n):
        if n%4==0: a(f's_add_u32 s8, s77, {1024*n}')
        hl[n]=a.vm(f'buffer_load_dwordx4 {P4(HF(n))}, v{vL16}, {sWs}, s8 offen offset:{1024*(n&3)} sc1')
    if HPF:
        a(f'v_min_u32 v{t0}, 43, v1\nv_lshlrev_b32 v{t0}, 10, v{t0}\ns_lshr_b32 s8, {sJ}, 2\ns_lshl_b32 s8, s8, 7\ns_add_u32 s9, s8, s77')
    for n in range(HR):
        hload(n)
        if HPF and n==HPF-1: a.vm(f'buffer_load_dword v9, v{t0}, {sWs}, s9 offen sc1')
    if CPRIO: a('s_setprio 0')
    a.wait_lg_all()
    AC2=lambda dq: 48+16*dq
    wf={}
    for k in range(88):
        n=k>>1
        if k%2==0: a.wait_vm(hl[n])
        if k==0: stamp(a,5)
        if k in wf: a.wait_lg(wf[k])
        d=P16(AC2(k&1))
        a(f'v_mfma_f32_32x32x16_bf16 {d}, {P4(WF(k))}, {P4(HF(n))}, {"0" if k<2 else d}')
        if k in (8,30,52): fl=rd_flag()
        if k in (14,36,58): get_flag(fl)
        if k in (15,37,59): chk(34+(k-15)//22)
        if 22<=k+6<88: wf[k+6]=trw(k+6)
        if k%2==1 and n+HR<44: hload(n+HR)
        if k+6==43: prog(19)
        if k==82: fl=rd_flag(XSREADY)
        if k==83:
            a(f'v_and_b32 v3, 31, v1\nv_bfe_u32 v{t0}, v1, 1, 3\ns_lshl_b32 s8, s15, 2\nv_xor_b32 v{t0}, s8, v{t0}\nv_lshlrev_b32 v{t0}, 4, v{t0}')
        if k==84:
            a(f'v_lshl_add_u32 v{t0}, v3, 7, v{t0}\nv_lshrrev_b32 v4, 5, v1\nv_lshl_add_u32 v{t0}, v4, 3, v{t0}\ns_lshl_b32 s8, s14, 12\ns_add_u32 s8, s8, {HREG+8192}\nv_add_u32 v6, s8, v{t0}')
        if k==85:
            a('v_xor_b32 v7, 16, v6\nv_xor_b32 v8, 32, v6\nv_xor_b32 v9, 48, v6')
            a(f's_lshl_b32 s8, s14, 6\nv_xor_b32 v5, s8, v{t2}\ns_lshl_b32 s8, s15, 12\ns_add_u32 s8, s8, {HREG}\nv_add_u32 v5, s8, v5')
        if k==86:
            get_flag(fl)
            a(f's_lshl_b32 s12, s13, 12\ns_add_u32 s12, s12, 0xc000\nv_add_u32 v{t1}, s12, v{vL16}\nv_xor_b32 v10, 0x2000, v{t1}')
    stamp(a,6)
    chk(1,XSREADY)
    for q in range(4): a.ds(f'ds_read_b64 {P2(128+2*q)}, v{6+q}')
    for q in range(4): a.ds(f'ds_read_b64_tr_b16 {P2(136+2*q)}, v5 offset:{1024*q}')
    L=lab('g'); L2=lab('g')
    a(f's_cmp_eq_u32 s15, 0\ns_cbranch_scc1 {L}')
    for q in range(4): a(f'ds_write_b128 v{t1}, {P4(48+4*q)} offset:{1024*q}')
    for r in range(0,16,2): a(f'v_pk_mov_b32 {P2(48+r)}, {P2(64+r)}, {P2(64+r)} op_sel:[0,1]')
    a(f's_branch {L2}')
    a(f'{L}:')
    a('s_nop 3')
    for q in range(4): a(f'ds_write_b128 v{t1}, {P4(64+4*q)} offset:{1024*q}')
    a(f'{L2}:')
    a.wait_lg_all()
    a('s_barrier')
    for q in range(4): a.ds(f'ds_read_b128 {P4(64+4*q)}, v10 offset:{1024*q}')
    for r in range(16):
        sx=128+(r>>1); ss=136+(r>>1)
        if r%2==0: a(f'v_lshlrev_b32 v{112+r}, 16, v{sx}\nv_lshlrev_b32 v{96+r}, 16, v{ss}')
        else: a(f'v_and_b32 v{112+r}, 0xffff0000, v{sx}\nv_and_b32 v{96+r}, 0xffff0000, v{ss}')
    a(f's_lshl_b32 s12, s13, 11\ns_add_u32 s12, s12, 0x10000\nv_lshlrev_b32 v3, 6, v3\nv_lshl_add_u32 v3, v4, 3, v3\nv_add_u32 v3, s12, v3\nv_add_u32 v4, s12, v{vL16}')
    a(f'v_lshrrev_b32 v{t0}, 2, v1\nv_and_b32 v{t1}, 3, v1\nv_lshlrev_b32 v{t1}, 4, v{t1}\nv_lshl_add_u32 v6, v{t0}, 10, v{t1}')
    a(f's_lshr_b32 s9, {sJ}, 2\ns_lshl_b32 s9, s9, 1\ns_add_u32 s9, s9, s15\ns_lshl_b32 s10, s76, 15\ns_lshl_b32 s11, s9, 6\ns_add_u32 s10, s10, s11\ns_add_u32 s11, s10, 16384')
    a('v_mov_b32 v16, 0xbfb8aa3b\nv_mov_b32 v18, 1.0')
    a.wait_lg_all()
    for r in range(0,16,2): a(f'v_pk_add_f32 {P2(48+r)}, {P2(48+r)}, {P2(64+r)}')
    for r in range(0,16,2): a(f'v_pk_mul_f32 {P2(64+r)}, {P2(48+r)}, v[16:17] op_sel_hi:[1,0]')
    for r in range(16): a(f'v_exp_f32 v{64+r}, v{64+r}')
    for r in range(0,16,2): a(f'v_pk_add_f32 {P2(64+r)}, {P2(64+r)}, v[18:19] op_sel_hi:[1,0]')
    for r in range(0,16,2): a(f'v_pk_mul_f32 {P2(48+r)}, {P2(48+r)}, {P2(96+r)}')
    for r in range(16): a(f'v_rcp_f32 v{64+r}, v{64+r}')
    for r in range(0,16,2): a(f'v_pk_fma_f32 {P2(64+r)}, {P2(48+r)}, {P2(64+r)}, {P2(112+r)}')
    for q in range(8): a(f'v_cvt_pk_bf16_f32 v{48+q}, v{64+2*q}, v{65+2*q}')
    for q in range(4): a(f'ds_write_b64 v3, {P2(48+2*q)} offset:{16*q}')
    a('ds_read_b128 v[56:59], v4\nds_read_b128 v[60:63], v4 offset:1024')
    a('s_waitcnt lgkmcnt(1)')
    a(f'buffer_store_dwordx4 v[56:59], v6, {sOut}, s10 offen {OUTSC}')
    a('s_waitcnt lgkmcnt(0)')
    a(f'buffer_store_dwordx4 v[60:63], v6, {sOut}, s11 offen {OUTSC}')
    L=lab('g')
    a(f's_lshl_b32 s8, s2, 4\ns_add_u32 s8, s8, s13\ns_cmp_lg_u32 s8, 0\ns_cbranch_scc1 {L}')
    a(f'v_mov_b32 v{t0}, {sTAG}\nv_mov_b32 v{t1}, {EPOCH}\ns_mov_b64 exec, 1')
    a(f'buffer_store_dword v{t0}, v{t1}, {sWs}, 0 offen')
    a('s_mov_b64 exec, -1')
    a(f'{L}:')
    if SPIN:
        a('Lspin:')
        a(f's_memrealtime s[82:83]\ns_waitcnt lgkmcnt(0)\ns_sub_u32 s82, s82, s80\ns_cmp_lt_u32 s82, {SPIN*100}\ns_cbranch_scc1 Lspin')
    if STAMPS:
        a('s_waitcnt vmcnt(0)')
        stamp(a,7)
    finish(a)
    a.l += ool.l
    return a

main = Asm()
prologue(main)
parts = [main, wave_B(), wave_A(), wave_H(), wave_G()]
lines=[]; tot=0
for p in parts:
    l, added = hazard_pass(p.l, verbose='--vpad' in sys.argv)
    tot+=added
    lines += l
lines += ['L_exit:', 's_endpgm', 'L_end:']
body = Asm(); body.l = lines
k = kernel_text(KN, body.text(), vgpr=168, sgpr=100)
open(OUT,'w').write(file_text([(KN,256,640,163840)],[k], single=True))
print('nop states added', tot, 'lines', len(lines))
```

```python
import sys, math
from asmlib import *

def opt(name, default):
    for x in sys.argv:
        if x.startswith(f'--{name}='): return int(x.split('=')[1])
    return default
STAMPS = '--stamps' in sys.argv
TAIL = '--tail' in sys.argv
TIMER = 's_memtime' if '--clk' in sys.argv else 's_memrealtime'
SPIN = opt('spin', 0)
ABL = opt('abl', 0)
LAG = opt('lag', 30); LAG2 = opt('lag2', 40)
GAT = opt('gat', 22)
Q3AT = opt('q3at', 3); Q3N = opt('q3n', 9)
T23 = opt('t23', 1); NPF = opt('npf', 2)
PSLEEP = opt('psleep', 2)
CPRIO = opt('cprio', 1)
STAT = opt('stat', 8)
SPOLL = opt('spoll', 19)
HRR = opt('hr', 8)
IDLEAT = opt('idleat', 30)
HPF = opt('hpf', 0)
OUTSC = 'sc1' if opt('outsc', 0) else ''
OUT = [x for x in sys.argv[1:] if not x.startswith('--')][0]

EPOCH=0; XF=0x8000; STATS=0x10000; CSUM=0x20000; HFL=0x60000; SFL=0xA0000; XNT=0x100000; HB=0x800000; SB=0xE00000; STAMP=0xF000000
HROW=88*1024
STG=45056
XS=[0,16384,STG+24576,2*STG+24576]
WS_=[2*STG+12288,32768,STG,STG+12288,2*STG]
HREG=135168
KB0=HREG; KBS=8448
UB=HREG+16896
CSA=HREG+26112; STL=CSA+1536; SYNC=STL+512
WFULL=0; PROG=16; STREADY=32; UREADY=36; KREADY=40; CDONE=48; CXCH=64; CFIN=80; CSREADY=84; ISSUED=88; XSREADY=92; KX=96
LOG2E=0x3fb8aa3b
sX='s[44:47]'; sWg='s[48:51]'; sWu='s[52:55]'; sWd='s[56:59]'; sOut='s[60:63]'; sWs='s[64:67]'
sTAG='s68'; sXCD='s69'; sJ='s70'; sRB='s71'; sCG='s72'; sU0='s73'; sTY='s74'; sP='s75'; sWV='s3'
WA_, WB_, WG_ = 4, 5, 6
uid=[0]
def lab(p):
    uid[0]+=1; return f'L{p}{uid[0]}'
P2=lambda r: f'v[{r}:{r+1}]'
P4=lambda r: f'v[{r}:{r+3}]'
P16=lambda r: f'v[{r}:{r+15}]'

def stamp(a, k):
    if not STAMPS: return
    a(f'{TIMER} s[{80+2*k}:{81+2*k}]')
    a.wait_lg_all()
def finish(a):
    if STAMPS:
        a('s_mov_b64 exec, 1')
        a(f's_lshl_b32 s4, {sWV}, 3')
        for k in range(8):
            a(f's_add_u32 s5, s4, {k}\ns_lshl_b32 s5, s5, 11\ns_lshl_b32 s6, s2, 3\ns_add_u32 s5, s5, s6\ns_add_u32 s5, s5, {STAMP}')
            a(f'v_mov_b32 v4, s{80+2*k}\nv_mov_b32 v5, s{81+2*k}\nv_mov_b32 v3, 0')
            a(f'buffer_store_dwordx2 v[4:5], v3, {sWs}, s5 offen')
        a('s_waitcnt vmcnt(0)')
    a('s_endpgm')

def poll_lds(a, vaddr, off, val, vt, sleep=1, min4=False):
    L=lab('p'); E=lab('pe')
    a('s_mov_b32 s5, 0x8000')
    a(f'{L}:')
    if min4:
        a(f'ds_read_b128 {P4(vt)}, v{vaddr} offset:{off}')
        a('s_waitcnt lgkmcnt(0)')
        a(f'v_min3_u32 v{vt}, v{vt}, v{vt+1}, v{vt+2}\nv_min_u32 v{vt}, v{vt}, v{vt+3}')
    else:
        a(f'ds_read_b32 v{vt}, v{vaddr} offset:{off}')
        a('s_waitcnt lgkmcnt(0)')
    a(f'v_readfirstlane_b32 s4, v{vt}')
    a(f's_cmp_ge_u32 s4, {val}\ns_cbranch_scc1 {E}')
    if sleep: a(f's_sleep {sleep}')
    a(f's_sub_u32 s5, s5, 1\ns_cmp_lg_u32 s5, 0\ns_cbranch_scc1 {L}')
    a(f'{E}:')
    a.lg_done = a.lg_issued

def poll_flags(a, vdst, vaddr, soff, stag, sleep):
    L=lab('f'); E=lab('fe')
    a('s_mov_b32 s5, 0x4000')
    a(f'{L}:')
    a(f'buffer_load_dword v{vdst}, v{vaddr}, {sWs}, {soff} offen sc1')
    a('s_waitcnt vmcnt(0)')
    a(f'v_cmp_ne_u32 vcc, {stag}, v{vdst}')
    a(f's_cbranch_vccz {E}')
    a(f's_sleep {sleep}\ns_sub_u32 s5, s5, 1\ns_cmp_lg_u32 s5, 0\ns_cbranch_scc1 {L}')
    a(f'{E}:')
    a.vm_done = a.vm_issued

def signal(a, vaddr, off, val, vt):
    a(f'v_mov_b32 v{vt}, {val}')
    a.ds(f'ds_write_b32 v{vaddr}, v{vt} offset:{off}')

XD=8; WA=12; DA=16
def prologue(a):
    a('s_cmp_ge_u32 s2, 256\ns_cbranch_scc1 L_exit')
    a('s_load_dwordx16 s[16:31], s[0:1], 0')
    a('s_load_dwordx8 s[32:39], s[0:1], 64')
    a('s_load_dwordx4 s[40:43], s[0:1], 96')
    if STAMPS or SPIN: a(f'{TIMER} s[80:81]')
    a('v_lshrrev_b32 v2, 6, v0')
    a('v_and_b32 v1, 63, v0')
    a(f'v_readfirstlane_b32 {sWV}, v2')
    a(f's_and_b32 {sXCD}, s2, 7\ns_lshr_b32 {sJ}, s2, 3')
    if opt('maxj',0): a(f's_cmp_ge_u32 {sJ}, {opt("maxj",0)}\ns_cbranch_scc1 L_exit')
    if opt('maxx',0): a(f's_cmp_ge_u32 {sXCD}, {opt("maxx",0)}\ns_cbranch_scc1 L_exit')
    a(f'v_mov_b32 v2, {SYNC}')
    a(f's_cmp_lg_u32 {sWV}, 0\ns_cbranch_scc1 L_pfdone')
    a('s_getpc_b64 s[4:5]')
    a('L_pc:')
    a(f'v_and_b32 v3, 15, v1\nv_lshlrev_b32 v3, 5, v3\nv_add_u32 v3, {sJ}, v3\nv_lshlrev_b32 v3, 7, v3')
    a('v_min_u32 v3, L_end-L_pc-4, v3')
    a('global_load_dword v167, v3, s[4:5]')
    a('v_lshl_add_u32 v3, v1, 2, v2\nv_mov_b32 v4, 0\nds_write_b32 v3, v4')
    a('L_pfdone:')
    a(f's_and_b32 s4, {sXCD}, 3\ns_mul_i32 s5, s4, 28\ns_add_u32 s5, s5, {sJ}')
    a(f's_lshl_b32 s6, s4, 1\ns_add_u32 s6, s6, {sJ}\ns_add_u32 s6, s6, {112-28}')
    a(f's_cmp_lt_u32 {sJ}, 28\ns_cselect_b32 s5, s5, s6\ns_cselect_b32 {sTY}, 0, 1')
    a(f's_cmp_lt_u32 {sJ}, 30\ns_cselect_b32 {sTY}, {sTY}, 2\ns_cselect_b32 s5, s5, 112')
    a(f's_lshr_b32 {sCG}, s5, 3\ns_and_b32 s5, s5, 7\ns_lshr_b32 s4, {sXCD}, 2\ns_lshl_b32 s4, s4, 3\ns_add_u32 {sRB}, s4, s5')
    a(f's_mul_i32 {sU0}, {sCG}, 3')
    a(f's_lshl_b32 s4, {sXCD}, 5\ns_add_u32 {sP}, s4, {sJ}')
    for r, sz in [(44,2097152),(48,1409024),(52,1409024),(56,1409024),(60,2097152),(64,0x10000000)]:
        a(f's_mov_b32 s{r+2}, {sz}\ns_mov_b32 s{r+3}, 0x20000')
    a('v_lshrrev_b32 v3, 3, v1\nv_lshlrev_b32 v3, 10, v3\nv_and_b32 v4, 7, v1\nv_lshrrev_b32 v5, 4, v1\nv_xor_b32 v5, v4, v5')
    a(f'v_lshl_add_u32 v{XD}, v5, 4, v3\nv_xor_b32 v{XD+1}, 64, v{XD}\nv_add_u32 v{XD+1}, 7168, v{XD+1}\nv_add_u32 v{XD+2}, {2*7168}, v{XD}\nv_add_u32 v{XD+3}, {2*7168}, v{XD+1}')
    a(f'v_bfe_u32 v5, v1, 4, 1\nv_lshlrev_b32 v5, 2, v5\nv_xor_b32 v4, v4, v5\nv_lshl_add_u32 v{DA}, v4, 4, v3')
    a(f'v_lshrrev_b32 v6, 2, v1\nv_mul_u32_u24 v6, 2752, v6\nv_and_b32 v7, 3, v1\nv_lshl_add_u32 v{WA}, v7, 4, v6\nv_xor_b32 v7, 2, v7\nv_lshl_add_u32 v{WA+1}, v7, 4, v6')
    a(f's_add_u32 s10, {sRB}, {sCG}\ns_and_b32 s10, s10, 3\ns_lshl_b32 s10, s10, 1')
    a(f's_lshr_b32 s4, {sRB}, 3\ns_lshr_b32 s5, {sCG}, 2\ns_add_u32 s5, s5, s4\ns_and_b32 s5, s5, 1\ns_add_u32 s10, s10, s5')
    a(f's_lshl_b32 s6, {sRB}, 17\ns_lshl_b32 s7, {sU0}, 6')
    a('s_lshl_b32 s11, s10, 7\ns_add_u32 s11, s11, s6')
    a(f's_mul_i32 s12, s10, {64*2752}\ns_add_u32 s12, s12, s7')
    a(f's_and_b32 s14, {sWV}, 1\ns_lshr_b32 s15, {sWV}, 1')
    a(f's_lshl_b32 s4, {sP}, 1\ns_add_u32 s4, s4, s14\ns_lshl_b32 s4, s4, 8\ns_lshl_b32 s5, s15, 7\ns_add_u32 s4, s4, s5\nv_lshl_add_u32 v3, v1, 1, s4')
    a('v_lshlrev_b32 v5, 4, v1')
    a(f's_lshl_b32 s13, {sP}, 13\ns_mov_b32 m0, {UB}')
    a('s_waitcnt lgkmcnt(0)')
    for r, b in [(44,16),(48,32),(52,34),(56,36),(60,38),(64,42)]:
        a(f's_mov_b64 s[{r}:{r+1}], s[{b}:{b+1}]')
    a(f's_cmp_eq_u32 {sWV}, {WB_}\ns_cbranch_scc1 L_B')
    a(f's_cmp_ge_u32 {sWV}, {WA_}\ns_cbranch_scc1 L_notH')
    for i in range(4): a(f'global_load_ushort v{24+i}, v3, s[{18+2*i}:{19+2*i}]')
    a(f's_lshl_b32 s4, {sP}, 2')
    a(f's_load_dword {sTAG}, s[42:43], {EPOCH}\ns_load_dword s76, s[26:27], s4\ns_load_dword s77, s[28:29], s4')
    a('s_branch L_H')
    a('L_notH:')
    a(f's_load_dword {sTAG}, s[42:43], {EPOCH}')
    a(f's_cmp_gt_u32 {sWV}, {WA_}\ns_cbranch_scc1 L_G')
    for r in range(8):
        a(f'buffer_load_dwordx4 v5, {sX}, s13 offen lds')
        if r<7: a(f's_mov_b32 m0, {UB+1056*(r+1)}\ns_add_u32 s13, s13, 1024')
    a('s_branch L_A')

def wave_B():
    a = Asm(); ool=Asm()
    a('L_B:')
    if ABL&64: a('s_endpgm')
    a('s_setprio 3')
    ev=[]; sent=[0]
    def flush(lag):
        best=None
        for idx,val in ev:
            if val>sent[0] and a.vm_issued-idx>=lag: best=(idx,val)
        if best:
            a.wait_vm(best[0]); signal(a,2,WFULL,best[1],24); sent[0]=best[1]
    def drain():
        for idx,val in ev:
            if val>sent[0]:
                a.wait_vm(idx); signal(a,2,WFULL,val,24); sent[0]=val
    def free(v): poll_lds(a, 2, PROG, v, 20, sleep=1, min4=True)
    def free_chk(v):
        S=lab('bs'); R=lab('br')
        a(f's_cmp_lt_u32 s13, {v}\ns_cbranch_scc1 {S}')
        a(f'{R}:')
        ool(f'{S}:')
        poll_lds(ool, 2, PROG, v, 20, sleep=0, min4=True)
        ool(f's_branch {R}')
    NREG=34; R3=32; q3n=[0]
    def q3ins(t,n):
        t(f's_add_u32 s14, s9, {(3*176+(n//22)*704+8*(n%22))*1024}')
        return f'buffer_load_dwordx4 {P4(R3+4*n)}, v{DA}, {sWd}, s14 offen'
    def q3load():
        a.vm(q3ins(a,q3n[0])); q3n[0]+=1
    def wd_addr(t):
        for i in range(1,4): t(f'v_add_u32 v{DA+i}, {i*7168}, v{DA}')
        t(f's_lshr_b32 s9, {sJ}, 2\ns_lshl_b32 s9, s9, 7')
    NIDLE=NREG if Q3AT<8 else 0
    a(f's_cmp_eq_u32 {sTY}, 2\ns_cbranch_scc1 L_Bidle')
    ool('L_Bidle:')
    wd_addr(ool)
    ool('s_barrier')
    if ABL&8: ool('s_branch L_Bwd')
    ool(f'v_lshlrev_b32 v26, 7, v1\ns_and_b32 s11, {sJ}, 1\ns_mul_i32 s11, s11, {704*1024}\ns_mul_i32 s12, {sXCD}, 11\ns_lshr_b32 s12, s12, 2\ns_mov_b32 s14, {NPF}')
    ool(f's_mul_i32 s13, {sXCD}, 6\ns_min_u32 s13, s13, 38\ns_lshl_b32 s13, s13, 13\ns_add_u32 s13, s13, s11\ns_add_u32 s13, s13, {176*1024}\ns_add_u32 s11, s11, {3*176*1024}')
    for i in range(6):
        ool(f'buffer_load_dword v28, v26, {sWd}, s13 offen')
        ool('s_add_u32 s13, s13, 8192')
    ool(f's_mov_b32 s15, {IDLEAT}')
    ool('L_Bi1:')
    ool('s_mov_b32 s13, 22')
    ool('L_Bi2:')
    ool('s_lshl_b32 s8, s12, 13\ns_add_u32 s8, s8, s11')
    ool(f'buffer_load_dword v28, v26, {sWd}, s8 offen')
    ool('s_add_u32 s12, s12, 1\ns_cmp_eq_u32 s12, 22\ns_cselect_b32 s12, 0, s12')
    ool('s_waitcnt vmcnt(4)')
    ool('s_sub_u32 s15, s15, 1\ns_cmp_lg_u32 s15, 0\ns_cbranch_scc1 L_Bi3')
    ool(f'v_mov_b32 v24, 32\nds_write_b32 v2, v24 offset:{WFULL}\nds_write_b32 v2, v24 offset:{ISSUED}')
    ool('L_Bi3:')
    ool('s_sub_u32 s13, s13, 1\ns_cmp_lg_u32 s13, 0\ns_cbranch_scc1 L_Bi2')
    ool(f's_sub_u32 s11, s11, {3*176*1024}\ns_sub_u32 s14, s14, 1\ns_cmp_lg_u32 s14, 0\ns_cbranch_scc1 L_Bi1')
    ool('s_waitcnt vmcnt(0)')
    for n in range(NIDLE): ool(q3ins(ool,n))
    ool('s_branch L_Bwd')
    def xins(r,g,i,setm):
        if setm: a(f's_mov_b32 m0, {XS[r&3]+4096*g}\ns_add_u32 s15, s11, {g*32768}')
        return a.vm(f'buffer_load_dwordx4 v{XD+i}, {sX}, s15 offen offset:{1024*i} lds')
    for g in range(4):
        for i in range(4): xins(0,g,i,i==0)
    for H in range(16):
        r=H>>1; hf=H&1; wb=WS_[H%5]
        if H>=5 and not ABL&32: free_chk(H-4)
        for k2 in range(2):
            ks=2*hf+k2
            for m in range(2):
                if 0<H<15:
                    g=(0 if hf else 2)+k2
                    xins((H+1)>>1,g,2*m,True); xins((H+1)>>1,g,2*m+1,False)
                for u in range(3):
                    a(f's_mov_b32 m0, {wb+m*6144+k2*3072+u*1024-64*u}')
                    n=k2*6+m*3+u
                    if m==0 and u==0: a(f's_add_u32 s8, s12, {ks*16*2752}')
                    elif n==9 and hf==0: a('s_add_u32 s10, s10, 1\ns_and_b32 s10, s10, 7')
                    elif n==10 and hf==0: a('s_lshl_b32 s11, s10, 7\ns_add_u32 s11, s11, s6')
                    elif n==7 and hf==1: a(f's_mul_i32 s12, s10, {64*2752}\ns_add_u32 s12, s12, s7')
                    elif n==2 and 4<=H<15: rd=a.ds(f'ds_read_b128 v[20:23], v2 offset:{PROG}')
                    elif n==8 and 4<=H<15:
                        a.wait_lg(rd); a('v_min3_u32 v20, v20, v21, v22\nv_min_u32 v20, v20, v23')
                    elif n==11 and 4<=H<15: a('v_readfirstlane_b32 s13, v20')
                    last=a.vm(f'buffer_load_dwordx4 v{WA+m}, {[sWg,sWu][m]}, s8 offen offset:{64*u} lds')
                if H>=2*Q3AT and q3n[0]<NIDLE and H<15: q3load()
                flush(LAG)
            if H==0 and k2==0:
                wd_addr(a); a('s_barrier')
        ev.append((last,2*H+2))
        if H==1 and not TAIL: stamp(a,1)
        if H==3 and not TAIL: stamp(a,2)
    signal(a,2,ISSUED,1,25)
    while q3n[0]<NIDLE: q3load()
    drain()
    a('L_Bwd:')
    stamp(a,3)
    if ABL&1:
        finish(a); a.l += ool.l; return a
    a('s_setprio 1')
    if T23:
        a(f'v_lshlrev_b32 v26, 7, v1')
        for i in range(3):
            a(f's_mul_i32 s11, {sJ}, 3\ns_add_u32 s11, s11, {i}\ns_min_u32 s11, s11, 87\ns_add_u32 s12, s11, 44\ns_cmp_lt_u32 s11, 44\ns_cselect_b32 s11, s11, s12\ns_lshl_b32 s11, s11, 13\ns_add_u32 s11, s11, {176*1024}')
            a.vm(f'buffer_load_dword v28, v26, {sWd}, s11 offen')
    for q in range(3):
        st=q*STG
        free({0:12,1:14,2:16}[q])
        for kh in range(2):
            for i in range(22):
                if i%4==0:
                    a(f's_mov_b32 m0, {st+kh*22528+1024*i}\ns_add_u32 s8, s9, {(q*176+kh*704+8*i)*1024}')
                last=a.vm(f'buffer_load_dwordx4 v{DA+(i&3)}, {sWd}, s8 offen offset:{1024*(i&3)} lds')
                if i%4==3:
                    if a.vm_issued-a.vm_done>LAG2: a.wait_vm(a.vm_issued-LAG2)
                    flush(LAG2)
        ev.append((last,33+q))
        if TAIL: stamp(a,[1,2,6][q])
    while q3n[0]<NREG: q3load()
    st=0
    a(f'v_mov_b32 v26, v5')
    drain()
    stamp(a,4)
    free(18)
    for i in range(12,22):
        if i%4==0:
            a(f's_mov_b32 m0, {st+22528+1024*i}\ns_add_u32 s8, s9, {(3*176+704+8*i)*1024}')
        a.vm(f'buffer_load_dwordx4 v{DA+(i&3)}, {sWd}, s8 offen offset:{1024*(i&3)} lds')
    a.wait_vm(a.vm_issued-10)
    for n in range(NREG): a.ds(f'ds_write_b128 v26, {P4(R3+4*n)} offset:{1024*n}')
    a.wait_vm_all()
    signal(a,2,WFULL,36,24)
    a.wait_lg_all()
    stamp(a,5)
    finish(a)
    a.l += ool.l
    return a

def wave_A():
    a = Asm()
    a('L_A:')
    if ABL&4: a('s_endpgm')
    a('s_setprio 2')
    SF=64; ST=96; ONE=20; D1=24; D2=28
    a(f'v_and_b32 v3, 3, v1\nv_lshlrev_b32 v3, 7, v3\nv_bfe_u32 v4, v1, 2, 1\nv_mul_u32_u24 v4, {SFL-HFL}, v4\nv_add_u32 v3, v3, v4')
    a(f's_lshl_b32 s6, s2, 9\ns_add_u32 s6, s6, {HFL}')
    a(f'buffer_load_dword v60, v3, {sWs}, s6 offen sc1')
    a('v_lshrrev_b32 v4, 4, v1')
    a(f'v_and_b32 v3, 7, v1\nv_mul_u32_u24 v3, 1056, v3\nv_bfe_u32 v6, v1, 3, 1\nv_lshl_add_u32 v3, v6, 9, v3\nv_lshl_add_u32 v3, v4, 4, v3\nv_add_u32 v3, {UB}, v3')
    a(f'v_bfe_u32 v6, v1, 2, 2\nv_cmp_eq_u32 s[14:15], v4, v6\nv_mul_u32_u24 v6, 1056, v6\nv_lshl_add_u32 v6, v4, 5, v6\nv_and_b32 v7, 3, v1\nv_lshl_add_u32 v6, v7, 3, v6\nv_add_u32 v6, {UB}, v6')
    a('v_cmp_eq_u32 s[8:9], 1, v7\nv_cmp_eq_u32 s[10:11], 2, v7\nv_cmp_eq_u32 s[12:13], 3, v7')
    for r in range(4): a(f'v_mov_b32 v{ONE+r}, 0x3f803f80')
    a('s_waitcnt lgkmcnt(0)\ns_barrier')
    a(f's_add_u32 {sTAG}, {sTAG}, 1')
    a('s_waitcnt vmcnt(1)')
    stamp(a,1)
    ld=[a.ds(f'ds_read_b128 {P4(SF+4*ks)}, v3 offset:{64*ks}') for ks in range(8)]
    for ks in range(8):
        a.wait_lg(ld[ks])
        f=P4(SF+4*ks)
        a(f'v_mfma_f32_16x16x32_bf16 {P4(D1)}, {f}, {f}, {"0" if ks==0 else P4(D1)}')
        a(f'v_mfma_f32_16x16x32_bf16 {P4(D2)}, {P4(ONE)}, {f}, {"0" if ks==0 else P4(D2)}')
    for i in range(16): a.ds(f'ds_read_b64_tr_b16 {P2(ST+2*i)}, v6 offset:{128*(i>>1)+4224*(i&1)}')
    a(f'v_cndmask_b32 v56, v{D1}, v{D1+1}, s[8:9]\nv_cndmask_b32 v56, v56, v{D1+2}, s[10:11]\nv_cndmask_b32 v56, v56, v{D1+3}, s[12:13]\nv_cndmask_b32 v56, 0, v56, s[14:15]')
    a('v_mov_b32 v57, v56\nv_permlane32_swap_b32 v56, v57\nv_add_f32 v56, v56, v57')
    a('v_mov_b32 v57, v56\nv_permlane16_swap_b32 v56, v57\nv_add_f32 v56, v56, v57')
    a('v_add_f32_dpp v56, v56, v56 row_ror:8 row_mask:0xf bank_mask:0xf')
    a(f'v_add_f32_dpp v57, v{D2}, v{D2} row_ror:8 row_mask:0xf bank_mask:0xf')
    a('v_mul_f32 v57, 0x3b000000, v57')
    a('v_mul_f32 v56, 0x3b000000, v56')
    a('v_fma_f32 v56, -v57, v57, v56\nv_max_f32 v56, 0, v56')
    a('v_cvt_pk_bf16_f32 v56, v56, v56\nv_and_b32 v56, 0xffff0000, v56')
    a('v_add_f32 v56, 0x3727c5ac, v56')
    a('v_cvt_pk_bf16_f32 v56, v56, v56\nv_and_b32 v56, 0xffff0000, v56')
    a('v_sqrt_f32 v56, v56')
    a('v_cvt_pk_bf16_f32 v58, v57, v56')
    a(f'v_mov_b32 v59, {sTAG}')
    a(f's_lshl_b32 s6, {sP}, 6\ns_add_u32 s6, s6, {STATS}')
    a('v_lshlrev_b32 v7, 3, v1')
    a('s_mov_b32 s14, s6')
    a('v_and_b32 v56, 0xffff0000, v58\nv_rcp_f32 v56, v56\nv_lshlrev_b32 v57, 16, v58\nv_mul_f32 v57, v57, v56')
    for r in range(8):
        a(f'v_mov_b32_dpp v{32+r}, v56 row_newbcast:{r} row_mask:0xf bank_mask:0xf')
        a(f'v_mov_b32_dpp v{40+r}, v57 row_newbcast:{r} row_mask:0xf bank_mask:0xf')
    a(f's_lshl_b32 s6, {sP}, 13\ns_add_u32 s6, s6, {XNT}\ns_add_u32 s7, s6, 4096')
    a.wait_lg_all()
    for i in range(8):
        s0=ST+4*i
        for q in range(4): a(f'v_lshlrev_b32 v{48+2*q}, 16, v{s0+q}\nv_and_b32 v{49+2*q}, 0xffff0000, v{s0+q}')
        for e in range(8): a(f'v_fma_f32 v{48+e}, v{48+e}, v{32+e}, -v{40+e}')
        for q in range(4): a(f'v_cvt_pk_bf16_f32 v{s0+q}, v{48+2*q}, v{49+2*q}')
    if STAT:
        L=lab('a')
        a(f's_cmp_eq_u32 {sTY}, 2\ns_cbranch_scc1 {L}')
        poll_lds(a, 2, WFULL, STAT, 24, sleep=2)
        a(f'{L}:')
    for i in range(8):
        a(f'buffer_store_dwordx4 {P4(ST+4*i)}, v5, {sWs}, {"s6" if i<4 else "s7"} offen offset:{1024*(i&3)} sc1')
    a('s_mov_b64 exec, 0xff')
    a(f'buffer_store_dwordx2 v[58:59], v7, {sWs}, s14 offen sc1')
    a('s_mov_b64 exec, -1')
    stamp(a,2)
    a(f'v_add_u32 v7, {UB}, v7\nv_mov_b32 v32, 0\nv_mov_b32 v33, 0')
    a.ds('ds_write_b64 v7, v[32:33]'); a.ds('ds_write_b64 v7, v[32:33] offset:4608')
    a('s_waitcnt vmcnt(0)')
    a(f's_lshl_b32 s6, s2, 2\ns_add_u32 s6, s6, {XF}\ns_mov_b64 exec, 1')
    a(f'buffer_store_dword v59, v32, {sWs}, s6 offen sc1')
    a('s_mov_b64 exec, -1')
    Lnc=lab('a')
    a(f's_cmp_eq_u32 {sTY}, 2\ns_cbranch_scc1 {Lnc}')
    a(f'v_and_b32 v30, 31, v1\nv_lshrrev_b32 v31, 5, v1\nv_mul_u32_u24 v7, 384, v31\nv_lshl_add_u32 v7, v30, 2, v7\nv_add_u32 v7, {CSA}, v7')
    poll_lds(a, 2, CSREADY, 2, 24, sleep=2)
    for e in range(3): a.ds(f'ds_read_b32 v{56+e}, v7 offset:{128*e}')
    a(f's_lshl_b32 s8, {sCG}, 14\ns_lshl_b32 s9, {sRB}, 10\ns_add_u32 s8, s8, s9\ns_add_u32 s8, s8, {CSUM}')
    a.wait_lg_all()
    a(f'buffer_store_dwordx4 v[56:59], v5, {sWs}, s8 offen sc1')
    a(f'{Lnc}:')
    stamp(a,3)
    if ABL&1: finish(a); return a
    CS=64; XG=96
    a('v_lshrrev_b32 v6, 1, v1\nv_lshlrev_b32 v34, 4, v6\nv_lshlrev_b32 v6, 13, v6\nv_and_b32 v3, 1, v1\nv_lshl_add_u32 v6, v3, 4, v6')
    a(f's_lshl_b32 s13, {sP}, 5\ns_add_u32 s13, s13, {XNT}')
    a(f'v_mul_u32_u24 v3, 4608, v3\nv_add_u32 v34, v34, v3\nv_add_u32 v34, {UB+512}, v34')
    a(f's_lshl_b32 s6, {sRB}, 10\ns_add_u32 s6, s6, {STATS}')
    a(f's_and_b32 s8, {sRB}, 8\ns_lshl_b32 s8, s8, 10\ns_lshl_b32 s7, {sCG}, 14\ns_add_u32 s7, s7, s8\ns_add_u32 s7, s7, {CSUM}\ns_add_u32 s15, s7, 4096')
    poll_lds(a, 2, WFULL, GAT, 28, sleep=2)
    L=lab('a'); E=lab('a')
    a('s_mov_b32 s12, 0x4000')
    a(f'{L}:')
    a(f's_mov_b32 s8, {XF}')
    a(f'buffer_load_dwordx4 v[52:55], v5, {sWs}, s8 offen sc1')
    a(f'buffer_load_dwordx4 v[24:27], v5, {sWs}, s6 offen sc1')
    for i in range(8): a(f'buffer_load_dwordx4 {P4(CS+4*i)}, v5, {sWs}, {"s7" if i<4 else "s15"} offen offset:{1024*(i&3)} sc1')
    a('s_waitcnt vmcnt(0)')
    a('v_min_u32 v30, v25, v27\nv_max_u32 v31, v25, v27')
    a('v_min3_u32 v30, v30, v52, v53\nv_max3_u32 v31, v31, v52, v53\nv_min3_u32 v30, v30, v54, v55\nv_max3_u32 v31, v31, v54, v55')
    for i in range(0,8,2):
        a(f'v_min3_u32 v30, v30, v{CS+4*i+3}, v{CS+4*i+7}\nv_max3_u32 v31, v31, v{CS+4*i+3}, v{CS+4*i+7}')
    a(f'v_cmp_ne_u32 vcc, {sTAG}, v30\nv_cmp_ne_u32 s[8:9], {sTAG}, v31\ns_or_b64 vcc, vcc, s[8:9]')
    a(f's_cbranch_vccz {E}')
    a(f's_sleep 4\ns_sub_u32 s12, s12, 1\ns_cmp_lg_u32 s12, 0\ns_cbranch_scc1 {L}')
    a(f'{E}:')
    for st in (4,2,1):
        for i in range(st):
            for e in range(3): a(f'v_add_f32 v{CS+4*i+e}, v{CS+4*i+e}, v{CS+4*(i+st)+e}')
    a(f'v_lshlrev_b32 v30, 3, v1\nv_add_u32 v30, {STL}, v30')
    a.ds('ds_write2_b32 v30, v24, v26 offset0:0 offset1:1')
    a(f'v_and_b32 v30, 31, v1\nv_lshlrev_b32 v30, 3, v30\nv_lshrrev_b32 v31, 5, v1\nv_mul_u32_u24 v31, 768, v31\nv_add_u32 v30, v30, v31\nv_add_u32 v30, {CSA}, v30')
    a('s_mov_b32 s8, 0x07060302')
    for e in range(3):
        v=CS+e; t=40+4*e
        a(f'v_and_b32 v{t}, 0xffff0000, v{v}\nv_sub_f32 v{t+1}, v{v}, v{t}\nv_and_b32 v{t+2}, 0xffff0000, v{t+1}\nv_sub_f32 v{t+3}, v{t+1}, v{t+2}')
        a(f'v_perm_b32 v{t+2}, v{t+2}, v{t}, s8\nv_lshrrev_b32 v{t+3}, 16, v{t+3}')
        a.ds(f'ds_write_b64 v30, {P2(t+2)} offset:{256*e}')
    signal(a, 2, STREADY, 1, 31)
    stamp(a,4)
    poll_lds(a, 2, ISSUED, 1, 28, sleep=1)
    for i in range(8):
        a(f's_add_u32 s8, s13, {i*32*8192}')
        a(f'buffer_load_dwordx4 {P4(XG+4*i)}, v6, {sWs}, s8 offen sc1')
    a(f'v_lshrrev_b32 v3, 3, v1\nv_mul_u32_u24 v3, 3072, v3\nv_add_u32 v12, v3, v{DA}')
    for i in range(1,4): a(f'v_add_u32 v{12+i}, {i*(32768-1024)}, v12')
    a(f's_lshl_b32 s6, {sXCD}, 2\ns_and_b32 s7, {sJ}, 3\ns_add_u32 s6, s6, s7\ns_lshr_b32 s7, {sJ}, 2')
    a(f's_lshr_b32 s12, s6, 4\ns_lshl_b32 s12, s12, 3\ns_add_u32 s12, s12, s7\ns_lshl_b32 s12, s12, 13\ns_add_u32 s12, s12, {SFL}')
    a(f's_lshl_b32 s11, s7, 18\ns_lshl_b32 s10, s6, 7\ns_add_u32 s11, s11, s10\ns_add_u32 s11, s11, {SB}')
    a('s_lshl_b32 s10, s6, 16\ns_lshl_b32 s9, s7, 7\ns_add_u32 s10, s10, s9')
    a('v_lshlrev_b32 v27, 7, v1')
    a('s_waitcnt vmcnt(0)')
    for i in range(8): a.ds(f'ds_write_b128 v34, {P4(XG+4*i)} offset:{512*i}')
    signal(a, 2, UREADY, 1, 31)
    stamp(a,5)
    poll_lds(a, 2, CFIN, 4, 28, sleep=2)
    for g in range(2):
        a(f's_mov_b32 m0, {HREG+8192+4096*g}\ns_add_u32 s8, s10, {g*32768}')
        for i in range(4): a(f'buffer_load_dwordx4 v{XD+i}, {sX}, s8 offen offset:{1024*i} lds')
    poll_lds(a, 2, PROG, SPOLL, 20, sleep=2, min4=True)
    poll_flags(a, 28, 27, 's12', sTAG, 4)
    stamp(a,6)
    for g in range(2):
        a(f's_mov_b32 m0, {HREG+4096*g}\ns_add_u32 s8, s11, {g*131072}')
        for i in range(4): a(f'buffer_load_dwordx4 v{12+i}, {sWs}, s8 offen offset:{1024*i} sc1 lds')
    poll_lds(a, 2, PROG, 19, 20, sleep=1, min4=True)
    a('s_waitcnt vmcnt(0)')
    signal(a,2,XSREADY,1,24)
    a.wait_lg_all()
    stamp(a,7)
    finish(a)
    return a

def wave_H():
    a = Asm()
    a('L_H:')
    if ABL&2: a('s_endpgm')
    a(f's_mul_i32 s13, s14, {KBS}\ns_add_u32 s13, s13, {KB0}')
    a('s_lshl_b32 s12, s15, 12\ns_add_u32 s12, s12, s13')
    WR=8; RA=4
    a('v_and_b32 v28, 15, v1\nv_lshrrev_b32 v29, 4, v1\nv_add_u32 v30, v28, v29\nv_lshlrev_b32 v30, 4, v30\nv_lshl_add_u32 v31, v28, 8, s12')
    for k in range(4): a(f'v_add_u32 v{RA+k}, {64*k}, v30\nv_and_b32 v{RA+k}, 0xff, v{RA+k}\nv_add_u32 v{RA+k}, v{RA+k}, v31')
    a('v_lshlrev_b32 v30, 2, v1')
    for r in range(16): a(f'v_add_u32 v{WR+r}, {16*r}, v30\nv_and_b32 v{WR+r}, 0xff, v{WR+r}\nv_add_u32 v{WR+r}, s12, v{WR+r}')
    a('s_waitcnt lgkmcnt(0)\ns_barrier')
    a('s_lshl_b32 s8, s76, 16\ns_and_b32 s9, s76, 0xffff0000\ns_lshl_b32 s10, s77, 16\ns_and_b32 s11, s77, 0xffff0000\ns_cmp_eq_u32 s14, 0\ns_cselect_b32 s8, s8, s9\ns_cselect_b32 s77, s10, s11')
    a(f'v_mov_b32 v28, s8\nv_mul_f32 v28, {LOG2E}, v28\nv_exp_f32 v28, v28\nv_cvt_pk_bf16_f32 v28, v28, v28\nv_and_b32 v28, 0xffff0000, v28\nv_add_f32 v29, v28, v28')
    W=lambda e: 32+2*e
    Pm=lambda m: (50+2*(m-1)) if m<8 else (64+2*(m&1))
    Bj=lambda j: 68+2*(j&1)
    TM=lambda k: 72+2*(k&3)
    PK=lambda t,r: 80+16*t+r
    a('s_waitcnt vmcnt(0)')
    stamp(a,1)
    for i in range(4): a(f'v_lshlrev_b32 v{24+i}, 16, v{24+i}')
    a(f'v_mul_f32 v24, {LOG2E}, v24\nv_mul_f32 v25, v25, v28\nv_exp_f32 v24, v24\nv_mul_f32 v{Bj(0)}, v26, v29\nv_mul_f32 v{Bj(0)+1}, v27, v29')
    a('v_mul_f32 v25, 0x3e22f983, v25\nv_cvt_pk_bf16_f32 v24, v24, v24\nv_mul_f32 v27, 0x43000000, v25\nv_and_b32 v24, 0xffff0000, v24\nv_fract_f32 v25, v25')
    a('v_mul_f32 v24, v24, v28\nv_fract_f32 v27, v27\nv_mul_f32 v24, 0xbfb8aa3b, v24')
    a(f'v_cos_f32 v{W(1)}, v25\nv_mul_f32 v26, 0x43000000, v24\nv_sin_f32 v{W(1)+1}, v25\nv_exp_f32 v24, v24\nv_cos_f32 v{Pm(1)}, v27\nv_exp_f32 v26, v26\nv_sin_f32 v{Pm(1)+1}, v27')
    a(f'v_pk_mul_f32 {P2(W(1))}, {P2(W(1))}, v[24:25] op_sel_hi:[1,0]\nv_pk_mul_f32 {P2(Pm(1))}, {P2(Pm(1))}, v[26:27] op_sel_hi:[1,0]')
    pend=[]
    nb=[0]
    def sinkA(src,t,r): return [('v',f'v_cvt_pk_bf16_f32 v{PK(t,r)}, v{src}, v{src+1}')]
    def sinkB(src,j):
        p=30+(nb[0]&1); nb[0]+=1
        return [('v',f'v_cvt_pk_bf16_f32 v{p}, v{src}, -v{src+1}'), ('d',f'ds_write_b32 v{WR+j}, v{p} offset:{256*j}')]
    def step(cm):
        nonlocal pend
        for d,x,y,_ in cm: a(f'v_pk_mul_f32 {P2(d)}, {P2(x)}, {P2(y)} op_sel_hi:[0,1]')
        late=[z for z in pend if z[0]=='d']
        for k,x in pend:
            if k=='v': a(x)
        for d,x,y,_ in cm: a(f'v_pk_fma_f32 {P2(d)}, {P2(x)}, {P2(y)}, {P2(d)} op_sel:[1,1,0] op_sel_hi:[1,0,1] neg_lo:[1,0,0]')
        for k,x in late: a.ds(x)
        pend=[]
        for d,x,y,s in cm: pend+=s
    def pos(m):
        if m==1: return (0,8)
        if m<4: return (1,4*(m-2))
        if m<8: return (1,8+2*(m-4))
        return (2,m-8)
    cP=lambda m: (Pm(m),Pm(m-1),Pm(1),sinkA(Pm(m),*pos(m)))
    cW=lambda e,x,y: (W(e),W(x),W(y),sinkA(W(e),0,e) if e<8 else [])
    a(f'v_mov_b32 v{PK(0,0)}, 0x3f80')
    pend=sinkA(W(1),0,1)+sinkA(Pm(1),0,8)+sinkB(Bj(0),0)
    step([cW(2,1,1), cP(2)])
    step([cW(4,2,2), cW(3,2,1), cP(3)])
    step([cW(8,4,4), cW(5,4,1), cW(6,4,2), cW(7,4,3), cP(4)])
    pool=[(1,e,0,8+e) for e in range(1,8)]+[(m,2*e,1,4*(m-2)+e) for m in (2,3) for e in (1,2,3)]+[(m,4,1,9+2*(m-4)) for m in range(4,8)]
    tk=0
    for j in range(1,16):
        cm=[(Bj(j),Bj(j-1),W(8),sinkB(Bj(j),j))]
        if j+4<=16: cm.append(cP(j+4))
        for _ in range(1 if j+4<=16 else 2):
            if pool:
                m,e,t,r=pool.pop(0); cm.append((TM(tk),Pm(m),W(e),sinkA(TM(tk),t,r))); tk+=1
        step(cm)
    assert not pool
    step([])
    BF=32; AF=lambda t: 48+16*t if t<2 else 128; DK=144
    for k in range(4): a.ds(f'ds_read_b128 {P4(BF+4*k)}, v{RA+k}')
    rd={}
    for t in range(3):
        for r in range(16 if t<2 else 9): a.ds(f'ds_write_b32 v{WR+r}, v{PK(t,r)} offset:{256*r}')
        for k in range(4): rd[t]=a.ds(f'ds_read_b128 {P4(AF(t)+4*k)}, v{RA+k}')
    for t in range(3):
        a.wait_lg(rd[t])
        for k in range(4): a(f'v_mfma_f32_16x16x32_bf16 {P4(DK+4*t)}, {P4(AF(t)+4*k)}, {P4(BF+4*k)}, {"0" if k==0 else P4(DK+4*t)}')
    a('s_add_u32 s8, s13, 4096\nv_lshl_add_u32 v28, v1, 4, s8')
    a('s_lshl_b32 s8, s14, 2\nv_add_u32 v29, s8, v2')
    a(f's_cmp_eq_u32 s15, 0\ns_cbranch_scc1 L_Kfin')
    for t in range(3): a(f'ds_write_b128 v28, {P4(DK+4*t)} offset:{1024*t}')
    a(f'v_mov_b32 v30, 1\nds_write_b32 v29, v30 offset:{KX}')
    a('s_branch L_conv')
    a('L_Kfin:')
    a('v_and_b32 v12, 15, v1\nv_lshrrev_b32 v13, 4, v1')
    a('s_add_u32 s12, s13, 64')
    a('v_lshrrev_b32 v14, 1, v13\nv_lshlrev_b32 v14, 7, v14\nv_and_b32 v15, 1, v13\nv_lshl_add_u32 v14, v15, 2, v14\nv_lshl_add_u32 v14, v12, 3, v14\nv_lshl_add_u32 v14, v14, 2, s12')
    a('v_cmp_gt_u32 vcc, 2, v13\nv_lshlrev_b32 v15, 1, v12\nv_lshlrev_b32 v16, 2, v12\nv_cndmask_b32 v15, v15, v16, vcc\nv_lshl_add_u32 v15, v13, 6, v15\nv_lshl_add_u32 v15, v15, 2, s12')
    a('v_mov_b32 v16, 128\nv_cndmask_b32 v16, v16, 8, vcc\nv_add_u32 v16, v16, v15')
    a('v_lshl_add_u32 v17, v13, 6, v12\nv_lshl_add_u32 v17, v17, 2, s12')
    a('v_lshl_add_u32 v18, v1, 3, s12')
    a('v_lshl_add_u32 v19, v1, 4, s13')
    a('v_cmp_eq_u32 vcc, 0, v1\nv_add_u32 v20, 4, v18\nv_cndmask_b32 v20, v20, v18, vcc')
    a('v_mov_b32 v21, 0\nv_mov_b32 v22, s13')
    a('v_sub_u32 v23, 63, v1')
    a('v_lshl_add_u32 v24, v23, 5, s13\nv_lshl_add_u32 v25, v23, 4, s13\nv_lshl_add_u32 v26, v23, 3, s13')
    a('v_and_b32 v27, 7, v1\nv_lshl_add_u32 v27, v27, 2, s13')
    poll_lds(a, 29, KX, 1, 30, sleep=0)
    for t in range(3): a.ds(f'ds_read_b128 {P4(32+4*t)}, v28 offset:{1024*t}')
    a.wait_lg_all()
    for r in range(12): a(f'v_add_f32 v{DK+r}, v{DK+r}, v{32+r}')
    a.ds(f'ds_write_b32 v22, v21 offset:60')
    a.ds(f'ds_write_b128 v14, {P4(DK)}')
    a.ds(f'ds_write_b64 v15, {P2(DK+4)} offset:1024')
    a.ds(f'ds_write_b64 v16, {P2(DK+6)} offset:1024')
    for r in range(4): a.ds(f'ds_write_b32 v17, v{DK+8+r} offset:{2048+64*r}')
    E=32
    a.ds(f'ds_read_b64 {P2(E)}, v18 offset:2048'); a.ds(f'ds_read_b32 v{E+2}, v18 offset:2056')
    a.ds(f'ds_read_b64 {P2(E+4)}, v18 offset:1536'); a.ds(f'ds_read_b32 v{E+6}, v18 offset:1544')
    a.ds(f'ds_read_b64 {P2(E+8)}, v18 offset:1024'); a.ds(f'ds_read_b32 v{E+10}, v18 offset:1032')
    a.ds(f'ds_read_b32 v{E+11}, v20 offset:1020')
    a.ds(f'ds_read_b128 {P4(E+12)}, v19 offset:64'); a.ds(f'ds_read_b32 v{E+16}, v19 offset:60')
    a.wait_lg_all()
    O=100
    def pk(d,lo,hi): a(f'v_cvt_pk_bf16_f32 v{d}, v{lo}, v{hi}')
    A_,B_,C_=E,E+1,E+2
    for k,(lo,hi) in enumerate([(C_,C_),(C_,C_),(B_,B_),(B_,B_),(B_,B_),(B_,A_),(A_,A_),(A_,A_)]): pk(O+k,lo,hi)
    for k,(lo,hi) in enumerate([(C_,C_),(C_,B_),(B_,B_),(B_,B_),(B_,B_),(A_,A_),(A_,A_),(A_,A_)]): pk(O+8+k,lo,hi)
    a.ds(f'ds_write_b128 v24, {P4(O)}'); a.ds(f'ds_write_b128 v24, {P4(O+4)} offset:16')
    a.ds(f'ds_write_b128 v24, {P4(O+8)} offset:4160'); a.ds(f'ds_write_b128 v24, {P4(O+12)} offset:4176')
    A_,B_,C_=E+4,E+5,E+6
    for k,(lo,hi) in enumerate([(C_,C_),(B_,B_),(B_,A_),(A_,A_),(C_,B_),(B_,B_),(A_,A_),(A_,A_)]): pk(O+16+k,lo,hi)
    a.ds(f'ds_write_b128 v25, {P4(O+16)} offset:2048'); a.ds(f'ds_write_b128 v25, {P4(O+20)} offset:{2048+4160}')
    A_,B_,C_=E+8,E+9,E+10
    for k,(lo,hi) in enumerate([(C_,B_),(A_,A_),(B_,A_),(A_,E+11)]): pk(O+24+k,lo,hi)
    a.ds(f'ds_write_b64 v26, {P2(O+24)} offset:3072'); a.ds(f'ds_write_b64 v26, {P2(O+26)} offset:{3072+4160}')
    k0=E+12
    for k,(lo,hi) in enumerate([(k0+3,k0+2),(k0+1,k0),(k0+2,k0+1),(k0,E+16)]): pk(O+28+k,lo,hi)
    a.ds(f'ds_write_b64 v26, {P2(O+28)} offset:3584'); a.ds(f'ds_write_b64 v26, {P2(O+30)} offset:{3584+4160}')
    a.ds('ds_write_b32 v27, v21 offset:4096'); a.ds(f'ds_write_b32 v27, v21 offset:{4096+4160}')
    signal(a, 29, KREADY, 1, 24)
    a('L_conv:')
    stamp(a,2)
    if ABL&1: finish(a); return a
    a(f's_mul_i32 s12, s14, 4608\ns_add_u32 s12, s12, {UB}')
    a('s_lshl_b32 s10, s15, 8')
    a('v_and_b32 v3, 15, v1\nv_lshrrev_b32 v4, 4, v1')
    a('v_lshrrev_b32 v5, 1, v3\nv_lshl_add_u32 v5, v4, 2, v5\nv_lshlrev_b32 v5, 2, v5\nv_and_b32 v6, 1, v3\nv_mul_u32_u24 v6, 4160, v6\nv_add_u32 v5, v5, v6')
    a(f's_add_u32 s8, s13, {4160+4108-512-192}\ns_sub_u32 s8, s8, s10')
    a('v_sub_u32 v8, s8, v5')
    for ap in range(1,4): a(f'v_subrev_u32 v{8+ap}, {1024*ap}, v8')
    a('v_lshlrev_b32 v5, 5, v3\nv_lshlrev_b32 v6, 4, v4\nv_sub_u32 v6, v5, v6')
    a(f's_add_u32 s8, s12, {528-192}\ns_sub_u32 s8, s8, s10')
    a('v_add_u32 v12, s8, v6')
    a(f's_lshl_b32 s8, {sWV}, 2\nv_add_u32 v14, s8, v2\ns_xor_b32 s8, s8, 8\nv_add_u32 v15, s8, v2')
    a('v_lshl_add_u32 v5, v4, 3, v5\nv_add_u32 v16, s12, v5')
    a('s_lshl_b32 s8, s15, 12\ns_add_u32 s8, s8, s13\nv_lshl_add_u32 v17, v1, 4, s8')
    a('s_xor_b32 s9, s15, 1\ns_lshl_b32 s9, s9, 12\ns_add_u32 s9, s9, s13\nv_lshl_add_u32 v18, v1, 4, s9\nv_add_u32 v19, s9, v5')
    a(f's_lshl_b32 s6, {sP}, 1\ns_add_u32 s6, s6, s14')
    a(f's_lshl_b32 s8, s15, 9\ns_add_u32 s7, s6, s8\ns_lshl_b32 s7, s7, 7\ns_add_u32 s7, s7, {SFL}')
    a(f's_lshl_b32 s6, s6, 12\ns_lshl_b32 s8, s15, 11\ns_add_u32 s6, s6, s8\ns_add_u32 s6, s6, {SB}')
    a(f'v_lshlrev_b32 v6, 4, v1\ns_add_u32 s8, {sTAG}, 1\nv_mov_b32 v24, s8\nv_mov_b32 v25, 0\nv_mov_b32 v26, 1')
    a('s_cmp_eq_u32 s15, 0\ns_cselect_b32 s10, s77, 0\ns_cselect_b32 s11, 0, s77')
    poll_lds(a, 29, KREADY, 1, 20, sleep=4)
    poll_lds(a, 2, UREADY, 1, 20, sleep=4)
    ACC=32; FA=lambda k: 64+4*k; FB=lambda k: 96+4*k
    for q in range(8): a.ds(f'ds_read_b64 {P2(128+2*q)}, v16 offset:{512+512*q}')
    a.wait_lg_all()
    ra={}; rb={}
    def rdA(it,k):
        ap=k>>1; o=(1-(k&1))*128+16*(3-it)
        a.ds(f'ds_read2_b32 {P2(FA(k))}, v{8+ap} offset0:{o} offset1:{o+1}')
        ra[it,k]=a.ds(f'ds_read2_b32 {P2(FA(k)+2)}, v{8+ap} offset0:{o+2} offset1:{o+3}')
    def rdB(it,k):
        rb[it,k]=a.ds(f'ds_read_b128 {P4(FB(k))}, v12 offset:{512*k+64*(3-it)}')
    for k in range(8): rdA(0,k); rdB(0,k)
    for r in range(32):
        src=128+(r>>1)
        a(f'v_lshlrev_b32 v{ACC+r}, 16, v{src}' if r%2==0 else f'v_and_b32 v{ACC+r}, 0xffff0000, v{src}')
    for r in range(32): a(f'v_mul_f32 v{ACC+r}, {"s10" if r<16 else "s11"}, v{ACC+r}')
    poll_lds(a, 2, PROG, 17, 20, sleep=1, min4=True)
    a(f's_setprio {CPRIO}')
    stamp(a,3)
    for it in range(4):
        for aa in range(8):
            for b in range(7-aa,-1,-1):
                d=P4(ACC+4*(aa+b))
                a.wait_lg(max(ra[it,aa], rb[it,b]))
                a(f'v_mfma_f32_16x16x32_bf16 {d}, {P4(FA(aa))}, {P4(FB(b))}, {d}')
                if it<3 and b==7-aa: rdB(it+1,b)
            if it<3: rdA(it+1,aa)
            if it==3 and aa==3: fl=a.ds(f'ds_read_b32 v20, v15 offset:{CDONE}')
        if it==2: a.ds(f'ds_write_b32 v14, v26 offset:{CDONE}')
    stamp(a,4)
    a.wait_lg(fl)
    L=lab('c')
    a(f'v_readfirstlane_b32 s4, v20\ns_cmp_ge_u32 s4, 1\ns_cbranch_scc1 {L}')
    poll_lds(a, 15, CDONE, 1, 20, sleep=0)
    a(f'{L}:')
    def tail(keep, send):
        for q in range(4): a(f'ds_write_b128 v17, {P4(send+4*q)} offset:{1024*q}')
        a(f'ds_write_b32 v14, v26 offset:{CXCH}')
        poll_lds(a, 15, CXCH, 1, 20, sleep=0)
        for q in range(4): a(f'ds_read_b128 {P4(64+4*q)}, v18 offset:{1024*q}')
        for q in range(4):
            a(f's_waitcnt lgkmcnt({3})')
            for e in range(4): a(f'v_add_f32 v{keep+4*q+e}, v{keep+4*q+e}, v{64+4*q+e}')
            a(f'v_cvt_pk_bf16_f32 v{80+2*q}, v{keep+4*q}, v{keep+4*q+1}\nv_cvt_pk_bf16_f32 v{81+2*q}, v{keep+4*q+2}, v{keep+4*q+3}')
            a(f'ds_write_b64 v19, {P2(80+2*q)} offset:{512*q}')
    L=lab('c'); L2=lab('c')
    a(f's_cmp_eq_u32 s15, 0\ns_cbranch_scc1 {L}')
    a('s_nop 3')
    tail(ACC+16, ACC)
    a(f's_branch {L2}')
    a(f'{L}:')
    a('s_nop 3')
    tail(ACC, ACC+16)
    a(f'{L2}:')
    a('ds_read_b128 v[88:91], v18\nds_read_b128 v[92:95], v18 offset:1024')
    a(f's_mov_b64 exec, 1\nds_add_u32 v2, v26 offset:{CFIN}\ns_mov_b64 exec, -1')
    a('s_waitcnt lgkmcnt(2)')
    a(f'buffer_store_dwordx4 v[88:91], v6, {sWs}, s6 offen sc1')
    a('s_waitcnt lgkmcnt(1)')
    a(f'buffer_store_dwordx4 v[92:95], v6, {sWs}, s6 offen offset:1024 sc1')
    stamp(a,5)
    a('s_mov_b64 exec, 1\ns_waitcnt vmcnt(0)')
    a(f'buffer_store_dword v24, v25, {sWs}, s7 offen sc1')
    stamp(a,6)
    finish(a)
    return a

def wave_G():
    a = Asm(); ool = Asm()
    a('L_G:')
    a('s_setprio 3')
    ACC=lambda tt,j: 72+16*(3*tt+j)
    FW=lambda par,j: 32+20*par+4*j
    FX=lambda par,tt: 32+20*par+12+4*tt
    CA=lambda j: 20+4*j
    SEL=16
    TR=3; XR=6; vP=10; vT=11; vL16=12; t0=13; t1=14; t2=15
    a(f's_sub_u32 s13, {sWV}, {WG_}\ns_and_b32 s14, s13, 1\ns_lshr_b32 s15, s13, 1')
    a(f'v_and_b32 v{t0}, 31, v1\nv_bfe_u32 v{t1}, v1, 1, 3\nv_lshrrev_b32 v{t2}, 5, v1\nv_xor_b32 v{t1}, v{t1}, v{t2}\nv_lshlrev_b32 v{t1}, 4, v{t1}\nv_lshl_add_u32 v{t0}, v{t0}, 7, v{t1}')
    a(f's_lshl_b32 s7, s14, 13\nv_add_u32 v{XR}, s7, v{t0}')
    for k in range(1,4): a(f'v_xor_b32 v{XR+k}, {32*k}, v{XR}')
    a(f'v_bfe_u32 v{t0}, v1, 4, 1\nv_bfe_u32 v{t1}, v1, 2, 2\nv_lshl_add_u32 v{t2}, v{t2}, 3, v{t1}\nv_lshlrev_b32 v{t2}, 6, v{t2}')
    a(f'v_and_b32 v{t1}, 3, v1\nv_lshl_add_u32 v{t2}, v{t1}, 3, v{t2}\nv_mul_u32_u24 v{t1}, {6144+32}, v{t0}\nv_add_u32 v{t2}, v{t2}, v{t1}')
    for j in range(3):
        a(f's_mul_i32 s8, s15, 3\ns_add_u32 s8, s8, {j}\ns_and_b32 s9, s8, 1\ns_lshl_b32 s9, s9, 5\ns_lshr_b32 s8, s8, 1\ns_lshl_b32 s8, s8, 10\ns_add_u32 s8, s8, {WS_[0]}')
        a(f'v_xor_b32 v{TR+j}, s9, v{t2}\nv_add_u32 v{TR+j}, s8, v{TR+j}')
    a(f's_lshl_b32 s8, s13, 2\nv_add_u32 v{vP}, s8, v2')
    a(f'v_lshlrev_b32 v{vL16}, 4, v1')
    a(f's_lshl_b32 s8, {sRB}, 1\ns_add_u32 s8, s8, s14\ns_mul_i32 s76, s8, {2*HROW}\ns_add_u32 s76, s76, {HB}')
    a(f's_lshl_b32 s8, s8, 5\ns_lshl_b32 s9, {sCG}, 1\ns_add_u32 s9, s9, s15\ns_add_u32 s8, s8, s9\ns_lshl_b32 s8, s8, 7\ns_add_u32 s78, s8, {HFL}')
    a(f's_mul_i32 s9, s9, 3072\ns_add_u32 s76, s76, s9\ns_add_u32 s77, s76, {HROW}')
    a(f'v_and_b32 v{t1}, 1, v1\nv_cmp_eq_u32 vcc, v{t0}, v{t1}\nv_mov_b32 v{t1}, 0x3f803f80\nv_cndmask_b32 v{t0}, 0, v{t1}, vcc')
    a(f's_bfe_u32 s11, {sRB}, 0x10002\ns_cmp_eq_u32 s11, 0\ns_cselect_b32 s10, -1, 0\ns_cselect_b32 s11, 0, -1')
    for r in range(4): a(f'v_and_b32 v{SEL+r}, s10, v{t0}')
    a('s_waitcnt lgkmcnt(0)\ns_barrier')
    a(f's_add_u32 {sTAG}, {sTAG}, 1')
    a(f's_add_u32 s8, {sTY}, s15\ns_cmp_ge_u32 s8, 2\ns_cselect_b32 s8, {sTY}, 0\ns_cmp_lg_u32 s8, 0\ns_cbranch_scc1 L_Gskip')
    ool('L_Gskip:')
    ool(f's_xor_b32 s8, s14, 1\nv_mov_b32 v{t1}, s8\ns_mov_b64 exec, 1')
    ool(f'ds_add_u32 v2, v{t1} offset:{CSREADY}')
    ool('s_mov_b64 exec, -1')
    ool(f's_cmp_eq_u32 {sTY}, 2\ns_cbranch_scc1 L_Gepi')
    for r in range(72,76): ool(f'v_mov_b32 v{r}, 0')
    ool('s_sub_u32 s76, s76, 1024\ns_sub_u32 s77, s77, 1024')
    for sb_ in ('s76','s77'):
        for o in (0,1024): ool(f'buffer_store_dwordx4 v[72:75], v{vL16}, {sWs}, {sb_} offen offset:{o} sc1')
    ool('s_branch L_Gepi')
    def chk(val, off=WFULL):
        if ABL&16: val=0
        S=lab('gs'); R=lab('gr')
        a(f's_cmp_lt_u32 s4, {val}\ns_cbranch_scc1 {S}')
        a(f'{R}:')
        ool(f'{S}:')
        poll_lds(ool, 2, off, val, vT, sleep=0)
        ool(f's_branch {R}')
    def rd_flag(off=WFULL): return a.ds(f'ds_read_b32 v{vT}, v2 offset:{off}')
    def get_flag(rd):
        a.wait_lg(rd); a(f'v_readfirstlane_b32 s4, v{vT}')
    def prog(v):
        a(f'v_mov_b32 v{t1}, {v}')
        a.ds(f'ds_write_b32 v{vP}, v{t1} offset:{PROG}')
    fr={}
    def rdx(ks,tt):
        fr[ks,'x',tt]=a.ds(f'ds_read_b128 {P4(FX(ks&1,tt))}, v{XR+(ks&3)} offset:{4096*tt}')
    def rdw(ks,j):
        for n in range(2): fr[ks,'w',j]=a.ds(f'ds_read_b64_tr_b16 {P2(FW(ks&1,j)+2*n)}, v{TR+j} offset:{(ks&1)*3072+256*n}')
    def addc(regs_, d):
        op='v_add_u32' if d>0 else 'v_subrev_u32'
        for x in regs_: a(f'{op} v{x}, {abs(d)}, v{x}')
    def adv(regs_, r):
        if r<7: addc(regs_, XS[(r+1)&3]-XS[r&3])
    def advw(H):
        if H<15: addc([TR,TR+1,TR+2], WS_[(H+1)%5]-WS_[H%5])
    vC1=[16,17]; vQ=[18,19]; vM=[20,22]; CSF=24
    if not ABL&64: poll_lds(a, 2, WFULL, 2, vT, sleep=1)
    if not TAIL: stamp(a,1)
    for ks in range(2):
        rdx(ks,0); rdw(ks,0); rdw(ks,1); rdw(ks,2); rdx(ks,1); adv([XR+ks],0)
    fl=rd_flag()
    for ks in range(32):
        r=ks>>2; kk=ks&3; par=ks&1; k2=ks+2
        for n,(tt,j) in enumerate([(tt,j) for tt in range(2) for j in range(3)]):
            a.wait_lg(max(fr[ks,'x',tt], fr[ks,'w',j]))
            d=P16(ACC(tt,j))
            a(f'v_mfma_f32_32x32x16_bf16 {d}, {P4(FW(par,j))}, {P4(FX(par,tt))}, {"0" if ks==0 else d}')
            if r<2 and tt==1:
                c=P4(CA(j))
                a(f'v_mfma_f32_16x16x32_bf16 {c}, {P4(SEL)}, {P4(FW(par,j))}, {"0" if ks==0 else c}')
            if not (ks&1) and n==0: prog((ks>>1)+1)
            if k2<32:
                if not (ks&1):
                    if n==0: get_flag(fl)
                    if n==1: chk(ks+4)
                    if n==2: advw(ks>>1)
                elif n==0 and ks<29: fl=rd_flag()
                if n==2: rdx(k2,0)
                if n>=3: rdw(k2,n-3)
                if n==5: rdx(k2,1)
            if n==1 and ks>=1 and ks+1<32: adv([XR+((ks+1)&3)], (ks+1)>>2)
            if not ABL&1:
                if ks==29 and n==3: fl=rd_flag(STREADY)
                if ks==29 and n==1: a(f'v_and_b32 v{t0}, 31, v1\ns_lshl_b32 s8, s14, 8\ns_add_u32 s8, s8, {STL}\nv_lshl_add_u32 v{t2}, v{t0}, 2, s8')
                if ks==30 and n==1: get_flag(fl)
                if ks==30 and n==2:
                    chk(1,STREADY)
                    a.ds(f'ds_read2_b32 v[30:31], v{t2} offset0:0 offset1:32')
                    a(f's_mul_i32 s8, s15, 768\ns_add_u32 s8, s8, {CSA}\nv_lshl_add_u32 v{t0}, v{t0}, 3, s8')
                if ks==30 and n==3:
                    for jj in range(3): cs=a.ds(f'ds_read_b64 {P2(CSF+2*jj)}, v{t0} offset:{256*jj}')
                    a('v_cmp_gt_u32 vcc, 32, v1')
                if ks==31 and n in (0,2):
                    z=n>>1; s_=30+z
                    if n==0: a.wait_lg(cs)
                    a(f'v_and_b32 v{vQ[z]}, 0xffff0000, v{s_}\nv_and_b32 v{s_}, 0xffff, v{s_}\nv_xor_b32 v{s_}, 0x8000, v{s_}\nv_rcp_f32 v{vC1[z]}, v{vQ[z]}')
                if ks==31 and n in (1,3):
                    z=n>>1; s_=30+z
                    a(f'v_lshl_or_b32 v{vM[z]}, v{s_}, 16, v{s_}\nv_cndmask_b32 v{vM[z]+1}, 0, v{s_}, vcc\nv_cndmask_b32 v{vM[z]}, 0, v{vM[z]}, vcc\nv_mul_f32 v{vQ[z]}, v{vQ[z]}, v{vQ[z]}\nv_mul_f32 v{vC1[z]}, 0xbfb8aa3b, v{vC1[z]}')
        if ks==3:
            for rr in range(4): a(f'v_and_b32 v{SEL+rr}, s11, v{t0}')
        if ks==8:
            L=lab('g')
            a(f's_cmp_eq_u32 s14, 1\ns_cbranch_scc1 {L}')
            a(f's_mul_i32 s8, s15, 384\ns_add_u32 s8, s8, {CSA}\nv_lshl_add_u32 v{t2}, v1, 2, s8\nv_mov_b32 v{t1}, 1')
            a('s_mov_b64 exec, 0xffff')
            for j in range(3): a(f'ds_write2_b32 v{t2}, v{CA(j)}, v{CA(j)+1} offset0:{32*j} offset1:{32*j+16}')
            a('s_mov_b64 exec, 1')
            a(f'ds_add_u32 v2, v{t1} offset:{CSREADY}')
            a('s_mov_b64 exec, -1')
            a(f'{L}:')
        if ks==7 and not TAIL: stamp(a,2)
    stamp(a,3)
    if ABL&1:
        a('L_Gepi:'); prog(17); finish(a); a.l += ool.l
        return a
    for j in range(3):
        for tt in range(2):
            d=P16(ACC(tt,j))
            a(f'v_mfma_f32_32x32x8_bf16 {d}, {P2(CSF+2*j)}, {P2(vM[tt])}, {d}')
    def epi(tt,j):
        A=ACC(tt,j); l=[]
        sel='op_sel_hi:[1,0]' if tt==0 else 'op_sel:[0,1]'
        sel3='op_sel_hi:[1,0,0]' if tt==0 else 'op_sel:[0,1,1]'
        for r in range(0,8,2): l.append(f'v_pk_mul_f32 {P2(A+8+r)}, {P2(A+r)}, {P2(A+8+r)}')
        for r in range(0,8,2): l.append(f'v_pk_mul_f32 {P2(A+r)}, {P2(A+r)}, {P2(vC1[0])} {sel}')
        for r in range(8): l.append(f'v_exp_f32 v{A+r}, v{A+r}')
        for r in range(0,8,2): l.append(f'v_pk_fma_f32 {P2(A+r)}, {P2(A+r)}, {P2(vQ[0])}, {P2(vQ[0])} {sel3}')
        for r in range(8): l.append(f'v_rcp_f32 v{A+r}, v{A+r}')
        for r in range(0,8,2): l.append(f'v_pk_mul_f32 {P2(A+8+r)}, {P2(A+8+r)}, {P2(A+r)}')
        for q in range(4): l.append(f'v_cvt_pk_bf16_f32 v{A+q}, v{A+8+2*q}, v{A+9+2*q}')
        l.append(f'buffer_store_dwordx4 {P4(A)}, v{vL16}, {sWs}, {["s76","s77"][tt]} offen offset:{1024*j} sc1')
        return l
    for j in range(3):
        if j==2: a(f's_cmp_eq_u32 {sTY}, 1\ns_cbranch_scc1 L_Gepi')
        for tt in range(2):
            for x in epi(tt,j): a(x)
    a('L_Gepi:')
    prog(17)
    stamp(a,4)
    a(f'v_lshrrev_b32 v{t2}, 5, v1\nv_bfe_u32 v{t1}, v1, 2, 2\nv_lshl_add_u32 v{t2}, v{t2}, 2, v{t1}\nv_lshlrev_b32 v{t2}, 7, v{t2}')
    a(f'v_bfe_u32 v{t1}, v1, 3, 1\nv_lshl_add_u32 v{t2}, v{t1}, 6, v{t2}\nv_bfe_u32 v{t1}, v1, 4, 1\nv_lshl_add_u32 v{t2}, v{t1}, 5, v{t2}\nv_and_b32 v{t1}, 3, v1\nv_lshl_add_u32 v{t2}, v{t1}, 3, v{t2}')
    a(f's_mul_i32 s8, s15, 22528\nv_add_u32 v{TR}, s8, v{t2}\nv_xor_b32 v{TR+1}, 64, v{TR}')
    a(f'v_mov_b32 v{t0}, {sTAG}\nv_mov_b32 v{t1}, 0')
    L=lab('g')
    a(f's_cmp_eq_u32 {sTY}, 2\ns_cbranch_scc1 {L}')
    a('s_mov_b64 exec, 1\ns_waitcnt vmcnt(0)')
    a(f'buffer_store_dword v{t0}, v{t1}, {sWs}, s78 offen sc1')
    a('s_mov_b64 exec, -1')
    a(f'{L}:')
    if TAIL: stamp(a,2)
    a(f's_lshl_b32 s8, {sXCD}, 3\ns_and_b32 s9, {sJ}, 3\ns_lshl_b32 s9, s9, 1\ns_add_u32 s8, s8, s9\ns_add_u32 s76, s8, s14')
    a(f's_mul_i32 s77, s76, {HROW}\ns_mul_i32 s8, s15, {44*1024}\ns_add_u32 s77, s77, s8\ns_add_u32 s77, s77, {HB}')
    HR=8
    WF=lambda k: (112+4*(k-8)) if 8<=k<22 else 16+4*(k&7)
    HF=lambda n: 80+4*(n%HR)
    curs=[0]
    def trw(k):
        q=k//22; kk=k%22; st=q%3
        if st!=curs[0]:
            d=(st-curs[0])*STG; op='v_add_u32' if d>0 else 'v_subrev_u32'
            a(f'{op} v{TR}, {abs(d)}, v{TR}\n{op} v{TR+1}, {abs(d)}, v{TR+1}'); curs[0]=st
        for nn in range(2):
            r_=a.ds(f'ds_read_b64_tr_b16 {P2(WF(k)+2*nn)}, v{TR+(k&1)} offset:{2048*(kk>>1)+1024*nn}')
        return r_
    poll_lds(a, 2, WFULL, 33, vT, sleep=1)
    for k in range(22): trw(k)
    prog(18)
    a(f's_add_u32 s9, s15, 14\nv_min_u32 v{t0}, s9, v1\nv_lshlrev_b32 v{t0}, 7, v{t0}')
    a(f's_lshr_b32 s8, s76, 1\ns_lshl_b32 s8, s8, 5\ns_mul_i32 s9, s15, 14\ns_add_u32 s8, s8, s9\ns_lshl_b32 s8, s8, 7\ns_add_u32 s8, s8, {HFL}')
    a('s_mov_b64 exec, 0xffff')
    poll_flags(a, t1, t0, 's8', sTAG, PSLEEP)
    a('s_mov_b64 exec, -1')
    if TAIL: stamp(a,1)
    hl={}
    def hload(n):
        if n%4==0: a(f's_add_u32 s8, s77, {1024*n}')
        hl[n]=a.vm(f'buffer_load_dwordx4 {P4(HF(n))}, v{vL16}, {sWs}, s8 offen offset:{1024*(n&3)} sc1')
    if HPF:
        a(f'v_min_u32 v{t0}, 43, v1\nv_lshlrev_b32 v{t0}, 10, v{t0}\ns_lshr_b32 s8, {sJ}, 2\ns_lshl_b32 s8, s8, 7\ns_add_u32 s9, s8, s77')
    for n in range(HR):
        hload(n)
        if HPF and n==HPF-1: a.vm(f'buffer_load_dword v9, v{t0}, {sWs}, s9 offen sc1')
    if CPRIO: a('s_setprio 0')
    a.wait_lg_all()
    AC2=lambda dq: 48+16*dq
    wf={}
    for k in range(88):
        n=k>>1
        if k%2==0: a.wait_vm(hl[n])
        if k==0: stamp(a,5)
        if k in wf: a.wait_lg(wf[k])
        d=P16(AC2(k&1))
        a(f'v_mfma_f32_32x32x16_bf16 {d}, {P4(WF(k))}, {P4(HF(n))}, {"0" if k<2 else d}')
        if k in (8,30,52): fl=rd_flag()
        if k in (14,36,58): get_flag(fl)
        if k in (15,37,59): chk(34+(k-15)//22)
        if 22<=k+6<88: wf[k+6]=trw(k+6)
        if k%2==1 and n+HR<44: hload(n+HR)
        if k+6==43: prog(19)
        if k==82: fl=rd_flag(XSREADY)
        if k==83:
            a(f'v_and_b32 v3, 31, v1\nv_bfe_u32 v{t0}, v1, 1, 3\ns_lshl_b32 s8, s15, 2\nv_xor_b32 v{t0}, s8, v{t0}\nv_lshlrev_b32 v{t0}, 4, v{t0}')
        if k==84:
            a(f'v_lshl_add_u32 v{t0}, v3, 7, v{t0}\nv_lshrrev_b32 v4, 5, v1\nv_lshl_add_u32 v{t0}, v4, 3, v{t0}\ns_lshl_b32 s8, s14, 12\ns_add_u32 s8, s8, {HREG+8192}\nv_add_u32 v6, s8, v{t0}')
        if k==85:
            a('v_xor_b32 v7, 16, v6\nv_xor_b32 v8, 32, v6\nv_xor_b32 v9, 48, v6')
            a(f's_lshl_b32 s8, s14, 6\nv_xor_b32 v5, s8, v{t2}\ns_lshl_b32 s8, s15, 12\ns_add_u32 s8, s8, {HREG}\nv_add_u32 v5, s8, v5')
        if k==86:
            get_flag(fl)
            a(f's_lshl_b32 s12, s13, 12\ns_add_u32 s12, s12, 0xc000\nv_add_u32 v{t1}, s12, v{vL16}\nv_xor_b32 v10, 0x2000, v{t1}')
    stamp(a,6)
    chk(1,XSREADY)
    for q in range(4): a.ds(f'ds_read_b64 {P2(128+2*q)}, v{6+q}')
    for q in range(4): a.ds(f'ds_read_b64_tr_b16 {P2(136+2*q)}, v5 offset:{1024*q}')
    L=lab('g'); L2=lab('g')
    a(f's_cmp_eq_u32 s15, 0\ns_cbranch_scc1 {L}')
    for q in range(4): a(f'ds_write_b128 v{t1}, {P4(48+4*q)} offset:{1024*q}')
    for r in range(0,16,2): a(f'v_pk_mov_b32 {P2(48+r)}, {P2(64+r)}, {P2(64+r)} op_sel:[0,1]')
    a(f's_branch {L2}')
    a(f'{L}:')
    a('s_nop 3')
    for q in range(4): a(f'ds_write_b128 v{t1}, {P4(64+4*q)} offset:{1024*q}')
    a(f'{L2}:')
    a.wait_lg_all()
    a('s_barrier')
    for q in range(4): a.ds(f'ds_read_b128 {P4(64+4*q)}, v10 offset:{1024*q}')
    for r in range(16):
        sx=128+(r>>1); ss=136+(r>>1)
        if r%2==0: a(f'v_lshlrev_b32 v{112+r}, 16, v{sx}\nv_lshlrev_b32 v{96+r}, 16, v{ss}')
        else: a(f'v_and_b32 v{112+r}, 0xffff0000, v{sx}\nv_and_b32 v{96+r}, 0xffff0000, v{ss}')
    a(f's_lshl_b32 s12, s13, 11\ns_add_u32 s12, s12, 0x10000\nv_lshlrev_b32 v3, 6, v3\nv_lshl_add_u32 v3, v4, 3, v3\nv_add_u32 v3, s12, v3\nv_add_u32 v4, s12, v{vL16}')
    a(f'v_lshrrev_b32 v{t0}, 2, v1\nv_and_b32 v{t1}, 3, v1\nv_lshlrev_b32 v{t1}, 4, v{t1}\nv_lshl_add_u32 v6, v{t0}, 10, v{t1}')
    a(f's_lshr_b32 s9, {sJ}, 2\ns_lshl_b32 s9, s9, 1\ns_add_u32 s9, s9, s15\ns_lshl_b32 s10, s76, 15\ns_lshl_b32 s11, s9, 6\ns_add_u32 s10, s10, s11\ns_add_u32 s11, s10, 16384')
    a('v_mov_b32 v16, 0xbfb8aa3b\nv_mov_b32 v18, 1.0')
    a.wait_lg_all()
    for r in range(0,16,2): a(f'v_pk_add_f32 {P2(48+r)}, {P2(48+r)}, {P2(64+r)}')
    for r in range(0,16,2): a(f'v_pk_mul_f32 {P2(64+r)}, {P2(48+r)}, v[16:17] op_sel_hi:[1,0]')
    for r in range(16): a(f'v_exp_f32 v{64+r}, v{64+r}')
    for r in range(0,16,2): a(f'v_pk_add_f32 {P2(64+r)}, {P2(64+r)}, v[18:19] op_sel_hi:[1,0]')
    for r in range(0,16,2): a(f'v_pk_mul_f32 {P2(48+r)}, {P2(48+r)}, {P2(96+r)}')
    for r in range(16): a(f'v_rcp_f32 v{64+r}, v{64+r}')
    for r in range(0,16,2): a(f'v_pk_fma_f32 {P2(64+r)}, {P2(48+r)}, {P2(64+r)}, {P2(112+r)}')
    for q in range(8): a(f'v_cvt_pk_bf16_f32 v{48+q}, v{64+2*q}, v{65+2*q}')
    for q in range(4): a(f'ds_write_b64 v3, {P2(48+2*q)} offset:{16*q}')
    a('ds_read_b128 v[56:59], v4\nds_read_b128 v[60:63], v4 offset:1024')
    a('s_waitcnt lgkmcnt(1)')
    a(f'buffer_store_dwordx4 v[56:59], v6, {sOut}, s10 offen {OUTSC}')
    a('s_waitcnt lgkmcnt(0)')
    a(f'buffer_store_dwordx4 v[60:63], v6, {sOut}, s11 offen {OUTSC}')
    L=lab('g')
    a(f's_lshl_b32 s8, s2, 4\ns_add_u32 s8, s8, s13\ns_cmp_lg_u32 s8, 0\ns_cbranch_scc1 {L}')
    a(f'v_mov_b32 v{t0}, {sTAG}\nv_mov_b32 v{t1}, {EPOCH}\ns_mov_b64 exec, 1')
    a(f'buffer_store_dword v{t0}, v{t1}, {sWs}, 0 offen')
    a('s_mov_b64 exec, -1')
    a(f'{L}:')
    if SPIN:
        if opt('spinwg',-1)>=0: a(f's_cmp_lg_u32 s2, {opt("spinwg",-1)}\ns_cbranch_scc1 Lnospin')
        a('Lspin:')
        a(f's_memrealtime s[82:83]\ns_waitcnt lgkmcnt(0)\ns_sub_u32 s82, s82, s80\ns_cmp_lt_u32 s82, {SPIN*100}\ns_cbranch_scc1 Lspin')
        a('Lnospin:')
    if STAMPS:
        a('s_waitcnt vmcnt(0)')
        stamp(a,7)
    finish(a)
    a.l += ool.l
    return a

main = Asm()
prologue(main)
parts = [main, wave_B(), wave_A(), wave_H(), wave_G()]
lines=[]; tot=0
for p in parts:
    l, added = hazard_pass(p.l, verbose='--vpad' in sys.argv)
    tot+=added
    lines += l
lines += ['L_exit:', 's_endpgm', 'L_end:']
body = Asm(); body.l = lines
k = kernel_text(KN, body.text(), vgpr=168, sgpr=100)
open(OUT,'w').write(file_text([(KN,256,640,163840)],[k], single=True))
print('nop states added', tot, 'lines', len(lines))
```

```python
import sys, math
from asmlib import *

def opt(name, default):
    for x in sys.argv:
        if x.startswith(f'--{name}='): return int(x.split('=')[1])
    return default
STAMPS = '--stamps' in sys.argv
TAIL = '--tail' in sys.argv
TIMER = 's_memtime' if '--clk' in sys.argv else 's_memrealtime'
SPIN = opt('spin', 0)
PROF = opt('prof', 0)
PWG = opt('pwg', 37)
if PROF: SPIN=30
ABL = opt('abl', 0)
LAG = opt('lag', 30); LAG2 = opt('lag2', 40)
GAT = opt('gat', 22)
Q3AT = opt('q3at', 3); Q3N = opt('q3n', 9)
T23 = opt('t23', 1); NPF = opt('npf', 2)
PSLEEP = opt('psleep', 2)
CPRIO = opt('cprio', 1)
STAT = opt('stat', 8)
SPOLL = opt('spoll', 19)
HRR = opt('hr', 8)
IDLEAT = opt('idleat', 30)
HPF = opt('hpf', 0)
OUTSC = 'sc1' if opt('outsc', 0) else ''
OUT = [x for x in sys.argv[1:] if not x.startswith('--')][0]

EPOCH=0; XF=0x8000; STATS=0x10000; CSUM=0x20000; HFL=0x60000; SFL=0xA0000; XNT=0x100000; HB=0x800000; SB=0xE00000; STAMP=0xF000000
HROW=88*1024
STG=45056
XS=[0,16384,STG+24576,2*STG+24576]
WS_=[2*STG+12288,32768,STG,STG+12288,2*STG]
HREG=135168
KB0=HREG; KBS=8448
UB=HREG+16896
CSA=HREG+26112; STL=CSA+1536; SYNC=STL+512
WFULL=0; PROG=16; STREADY=32; UREADY=36; KREADY=40; CDONE=48; CXCH=64; CFIN=80; CSREADY=84; ISSUED=88; XSREADY=92; KX=96
LOG2E=0x3fb8aa3b
sX='s[44:47]'; sWg='s[48:51]'; sWu='s[52:55]'; sWd='s[56:59]'; sOut='s[60:63]'; sWs='s[64:67]'
sTAG='s68'; sXCD='s69'; sJ='s70'; sRB='s71'; sCG='s72'; sU0='s73'; sTY='s74'; sP='s75'; sWV='s3'
WA_, WB_, WG_ = 4, 5, 6
uid=[0]
def lab(p):
    uid[0]+=1; return f'L{p}{uid[0]}'
P2=lambda r: f'v[{r}:{r+1}]'
P4=lambda r: f'v[{r}:{r+3}]'
P16=lambda r: f'v[{r}:{r+15}]'

def stamp(a, k):
    if PROF and getattr(a,'isG',False) and k==PROF:
        a('s_memrealtime s[84:85]'); a.wait_lg_all()
    if not STAMPS: return
    a(f'{TIMER} s[{80+2*k}:{81+2*k}]')
    a.wait_lg_all()
def finish(a):
    if STAMPS:
        a('s_mov_b64 exec, 1')
        a(f's_lshl_b32 s4, {sWV}, 3')
        for k in range(8):
            a(f's_add_u32 s5, s4, {k}\ns_lshl_b32 s5, s5, 11\ns_lshl_b32 s6, s2, 3\ns_add_u32 s5, s5, s6\ns_add_u32 s5, s5, {STAMP}')
            a(f'v_mov_b32 v4, s{80+2*k}\nv_mov_b32 v5, s{81+2*k}\nv_mov_b32 v3, 0')
            a(f'buffer_store_dwordx2 v[4:5], v3, {sWs}, s5 offen')
        a('s_waitcnt vmcnt(0)')
    a('s_endpgm')

def poll_lds(a, vaddr, off, val, vt, sleep=1, min4=False):
    L=lab('p'); E=lab('pe')
    a('s_mov_b32 s5, 0x8000')
    a(f'{L}:')
    if min4:
        a(f'ds_read_b128 {P4(vt)}, v{vaddr} offset:{off}')
        a('s_waitcnt lgkmcnt(0)')
        a(f'v_min3_u32 v{vt}, v{vt}, v{vt+1}, v{vt+2}\nv_min_u32 v{vt}, v{vt}, v{vt+3}')
    else:
        a(f'ds_read_b32 v{vt}, v{vaddr} offset:{off}')
        a('s_waitcnt lgkmcnt(0)')
    a(f'v_readfirstlane_b32 s4, v{vt}')
    a(f's_cmp_ge_u32 s4, {val}\ns_cbranch_scc1 {E}')
    if sleep: a(f's_sleep {sleep}')
    a(f's_sub_u32 s5, s5, 1\ns_cmp_lg_u32 s5, 0\ns_cbranch_scc1 {L}')
    a(f'{E}:')
    a.lg_done = a.lg_issued

def poll_flags(a, vdst, vaddr, soff, stag, sleep):
    L=lab('f'); E=lab('fe')
    a('s_mov_b32 s5, 0x4000')
    a(f'{L}:')
    a(f'buffer_load_dword v{vdst}, v{vaddr}, {sWs}, {soff} offen sc1')
    a('s_waitcnt vmcnt(0)')
    a(f'v_cmp_ne_u32 vcc, {stag}, v{vdst}')
    a(f's_cbranch_vccz {E}')
    a(f's_sleep {sleep}\ns_sub_u32 s5, s5, 1\ns_cmp_lg_u32 s5, 0\ns_cbranch_scc1 {L}')
    a(f'{E}:')
    a.vm_done = a.vm_issued

def signal(a, vaddr, off, val, vt):
    a(f'v_mov_b32 v{vt}, {val}')
    a.ds(f'ds_write_b32 v{vaddr}, v{vt} offset:{off}')

XD=8; WA=12; DA=16
def prologue(a):
    a('s_cmp_ge_u32 s2, 256\ns_cbranch_scc1 L_exit')
    a('s_load_dwordx16 s[16:31], s[0:1], 0')
    a('s_load_dwordx8 s[32:39], s[0:1], 64')
    a('s_load_dwordx4 s[40:43], s[0:1], 96')
    if STAMPS or SPIN: a(f'{TIMER} s[80:81]')
    a('v_lshrrev_b32 v2, 6, v0')
    a('v_and_b32 v1, 63, v0')
    a(f'v_readfirstlane_b32 {sWV}, v2')
    a(f's_and_b32 {sXCD}, s2, 7\ns_lshr_b32 {sJ}, s2, 3')
    if opt('maxj',0): a(f's_cmp_ge_u32 {sJ}, {opt("maxj",0)}\ns_cbranch_scc1 L_exit')
    if opt('maxx',0): a(f's_cmp_ge_u32 {sXCD}, {opt("maxx",0)}\ns_cbranch_scc1 L_exit')
    a(f'v_mov_b32 v2, {SYNC}')
    a(f's_cmp_lg_u32 {sWV}, 0\ns_cbranch_scc1 L_pfdone')
    a('s_getpc_b64 s[4:5]')
    a('L_pc:')
    a(f'v_and_b32 v3, 15, v1\nv_lshlrev_b32 v3, 5, v3\nv_add_u32 v3, {sJ}, v3\nv_lshlrev_b32 v3, 7, v3')
    a('v_min_u32 v3, L_end-L_pc-4, v3')
    a('global_load_dword v167, v3, s[4:5]')
    a('v_lshl_add_u32 v3, v1, 2, v2\nv_mov_b32 v4, 0\nds_write_b32 v3, v4')
    a('L_pfdone:')
    a(f's_and_b32 s4, {sXCD}, 3\ns_mul_i32 s5, s4, 28\ns_add_u32 s5, s5, {sJ}')
    a(f's_lshl_b32 s6, s4, 1\ns_add_u32 s6, s6, {sJ}\ns_add_u32 s6, s6, {112-28}')
    a(f's_cmp_lt_u32 {sJ}, 28\ns_cselect_b32 s5, s5, s6\ns_cselect_b32 {sTY}, 0, 1')
    a(f's_cmp_lt_u32 {sJ}, 30\ns_cselect_b32 {sTY}, {sTY}, 2\ns_cselect_b32 s5, s5, 112')
    a(f's_lshr_b32 {sCG}, s5, 3\ns_and_b32 s5, s5, 7\ns_lshr_b32 s4, {sXCD}, 2\ns_lshl_b32 s4, s4, 3\ns_add_u32 {sRB}, s4, s5')
    a(f's_mul_i32 {sU0}, {sCG}, 3')
    a(f's_lshl_b32 s4, {sXCD}, 5\ns_add_u32 {sP}, s4, {sJ}')
    for r, sz in [(44,2097152),(48,1409024),(52,1409024),(56,1409024),(60,2097152),(64,0x10000000)]:
        a(f's_mov_b32 s{r+2}, {sz}\ns_mov_b32 s{r+3}, 0x20000')
    a('v_lshrrev_b32 v3, 3, v1\nv_lshlrev_b32 v3, 10, v3\nv_and_b32 v4, 7, v1\nv_lshrrev_b32 v5, 4, v1\nv_xor_b32 v5, v4, v5')
    a(f'v_lshl_add_u32 v{XD}, v5, 4, v3\nv_xor_b32 v{XD+1}, 64, v{XD}\nv_add_u32 v{XD+1}, 7168, v{XD+1}\nv_add_u32 v{XD+2}, {2*7168}, v{XD}\nv_add_u32 v{XD+3}, {2*7168}, v{XD+1}')
    a(f'v_bfe_u32 v5, v1, 4, 1\nv_lshlrev_b32 v5, 2, v5\nv_xor_b32 v4, v4, v5\nv_lshl_add_u32 v{DA}, v4, 4, v3')
    a(f'v_lshrrev_b32 v6, 2, v1\nv_mul_u32_u24 v6, 2752, v6\nv_and_b32 v7, 3, v1\nv_lshl_add_u32 v{WA}, v7, 4, v6\nv_xor_b32 v7, 2, v7\nv_lshl_add_u32 v{WA+1}, v7, 4, v6')
    a(f's_add_u32 s10, {sRB}, {sCG}\ns_and_b32 s10, s10, 3\ns_lshl_b32 s10, s10, 1')
    a(f's_lshr_b32 s4, {sRB}, 3\ns_lshr_b32 s5, {sCG}, 2\ns_add_u32 s5, s5, s4\ns_and_b32 s5, s5, 1\ns_add_u32 s10, s10, s5')
    a(f's_lshl_b32 s6, {sRB}, 17\ns_lshl_b32 s7, {sU0}, 6')
    a('s_lshl_b32 s11, s10, 7\ns_add_u32 s11, s11, s6')
    a(f's_mul_i32 s12, s10, {64*2752}\ns_add_u32 s12, s12, s7')
    a(f's_and_b32 s14, {sWV}, 1\ns_lshr_b32 s15, {sWV}, 1')
    a(f's_lshl_b32 s4, {sP}, 1\ns_add_u32 s4, s4, s14\ns_lshl_b32 s4, s4, 8\ns_lshl_b32 s5, s15, 7\ns_add_u32 s4, s4, s5\nv_lshl_add_u32 v3, v1, 1, s4')
    a('v_lshlrev_b32 v5, 4, v1')
    a(f's_lshl_b32 s13, {sP}, 13\ns_mov_b32 m0, {UB}')
    a('s_waitcnt lgkmcnt(0)')
    for r, b in [(44,16),(48,32),(52,34),(56,36),(60,38),(64,42)]:
        a(f's_mov_b64 s[{r}:{r+1}], s[{b}:{b+1}]')
    a(f's_cmp_eq_u32 {sWV}, {WB_}\ns_cbranch_scc1 L_B')
    a(f's_cmp_ge_u32 {sWV}, {WA_}\ns_cbranch_scc1 L_notH')
    for i in range(4): a(f'global_load_ushort v{24+i}, v3, s[{18+2*i}:{19+2*i}]')
    a(f's_lshl_b32 s4, {sP}, 2')
    a(f's_load_dword {sTAG}, s[42:43], {EPOCH}\ns_load_dword s76, s[26:27], s4\ns_load_dword s77, s[28:29], s4')
    a('s_branch L_H')
    a('L_notH:')
    a(f's_load_dword {sTAG}, s[42:43], {EPOCH}')
    a(f's_cmp_gt_u32 {sWV}, {WA_}\ns_cbranch_scc1 L_G')
    for r in range(8):
        a(f'buffer_load_dwordx4 v5, {sX}, s13 offen lds')
        if r<7: a(f's_mov_b32 m0, {UB+1056*(r+1)}\ns_add_u32 s13, s13, 1024')
    a('s_branch L_A')

def wave_B():
    a = Asm(); ool=Asm()
    a('L_B:')
    if ABL&64: a('s_endpgm')
    a('s_setprio 3')
    ev=[]; sent=[0]
    def flush(lag):
        best=None
        for idx,val in ev:
            if val>sent[0] and a.vm_issued-idx>=lag: best=(idx,val)
        if best:
            a.wait_vm(best[0]); signal(a,2,WFULL,best[1],24); sent[0]=best[1]
    def drain():
        for idx,val in ev:
            if val>sent[0]:
                a.wait_vm(idx); signal(a,2,WFULL,val,24); sent[0]=val
    def free(v): poll_lds(a, 2, PROG, v, 20, sleep=1, min4=True)
    def free_chk(v):
        S=lab('bs'); R=lab('br')
        a(f's_cmp_lt_u32 s13, {v}\ns_cbranch_scc1 {S}')
        a(f'{R}:')
        ool(f'{S}:')
        poll_lds(ool, 2, PROG, v, 20, sleep=0, min4=True)
        ool(f's_branch {R}')
    NREG=34; R3=32; q3n=[0]
    def q3ins(t,n):
        t(f's_add_u32 s14, s9, {(3*176+(n//22)*704+8*(n%22))*1024}')
        return f'buffer_load_dwordx4 {P4(R3+4*n)}, v{DA}, {sWd}, s14 offen'
    def q3load():
        a.vm(q3ins(a,q3n[0])); q3n[0]+=1
    def wd_addr(t):
        for i in range(1,4): t(f'v_add_u32 v{DA+i}, {i*7168}, v{DA}')
        t(f's_lshr_b32 s9, {sJ}, 2\ns_lshl_b32 s9, s9, 7')
    NIDLE=NREG if Q3AT<8 else 0
    a(f's_cmp_eq_u32 {sTY}, 2\ns_cbranch_scc1 L_Bidle')
    ool('L_Bidle:')
    wd_addr(ool)
    ool('s_barrier')
    if ABL&8: ool('s_branch L_Bwd')
    ool(f'v_lshlrev_b32 v26, 7, v1\ns_and_b32 s11, {sJ}, 1\ns_mul_i32 s11, s11, {704*1024}\ns_mul_i32 s12, {sXCD}, 11\ns_lshr_b32 s12, s12, 2\ns_mov_b32 s14, {NPF}')
    ool(f's_mul_i32 s13, {sXCD}, 6\ns_min_u32 s13, s13, 38\ns_lshl_b32 s13, s13, 13\ns_add_u32 s13, s13, s11\ns_add_u32 s13, s13, {176*1024}\ns_add_u32 s11, s11, {3*176*1024}')
    for i in range(6):
        ool(f'buffer_load_dword v28, v26, {sWd}, s13 offen')
        ool('s_add_u32 s13, s13, 8192')
    ool(f's_mov_b32 s15, {IDLEAT}')
    ool('L_Bi1:')
    ool('s_mov_b32 s13, 22')
    ool('L_Bi2:')
    ool('s_lshl_b32 s8, s12, 13\ns_add_u32 s8, s8, s11')
    ool(f'buffer_load_dword v28, v26, {sWd}, s8 offen')
    ool('s_add_u32 s12, s12, 1\ns_cmp_eq_u32 s12, 22\ns_cselect_b32 s12, 0, s12')
    ool('s_waitcnt vmcnt(4)')
    ool('s_sub_u32 s15, s15, 1\ns_cmp_lg_u32 s15, 0\ns_cbranch_scc1 L_Bi3')
    ool(f'v_mov_b32 v24, 32\nds_write_b32 v2, v24 offset:{WFULL}\nds_write_b32 v2, v24 offset:{ISSUED}')
    ool('L_Bi3:')
    ool('s_sub_u32 s13, s13, 1\ns_cmp_lg_u32 s13, 0\ns_cbranch_scc1 L_Bi2')
    ool(f's_sub_u32 s11, s11, {3*176*1024}\ns_sub_u32 s14, s14, 1\ns_cmp_lg_u32 s14, 0\ns_cbranch_scc1 L_Bi1')
    ool('s_waitcnt vmcnt(0)')
    for n in range(NIDLE): ool(q3ins(ool,n))
    ool('s_branch L_Bwd')
    def xins(r,g,i,setm):
        if setm: a(f's_mov_b32 m0, {XS[r&3]+4096*g}\ns_add_u32 s15, s11, {g*32768}')
        return a.vm(f'buffer_load_dwordx4 v{XD+i}, {sX}, s15 offen offset:{1024*i} lds')
    for g in range(4):
        for i in range(4): xins(0,g,i,i==0)
    for H in range(16):
        r=H>>1; hf=H&1; wb=WS_[H%5]
        if H>=5 and not ABL&32: free_chk(H-4)
        for k2 in range(2):
            ks=2*hf+k2
            for m in range(2):
                if 0<H<15:
                    g=(0 if hf else 2)+k2
                    xins((H+1)>>1,g,2*m,True); xins((H+1)>>1,g,2*m+1,False)
                for u in range(3):
                    a(f's_mov_b32 m0, {wb+m*6144+k2*3072+u*1024-64*u}')
                    n=k2*6+m*3+u
                    if m==0 and u==0: a(f's_add_u32 s8, s12, {ks*16*2752}')
                    elif n==9 and hf==0: a('s_add_u32 s10, s10, 1\ns_and_b32 s10, s10, 7')
                    elif n==10 and hf==0: a('s_lshl_b32 s11, s10, 7\ns_add_u32 s11, s11, s6')
                    elif n==7 and hf==1: a(f's_mul_i32 s12, s10, {64*2752}\ns_add_u32 s12, s12, s7')
                    elif n==2 and 4<=H<15: rd=a.ds(f'ds_read_b128 v[20:23], v2 offset:{PROG}')
                    elif n==8 and 4<=H<15:
                        a.wait_lg(rd); a('v_min3_u32 v20, v20, v21, v22\nv_min_u32 v20, v20, v23')
                    elif n==11 and 4<=H<15: a('v_readfirstlane_b32 s13, v20')
                    last=a.vm(f'buffer_load_dwordx4 v{WA+m}, {[sWg,sWu][m]}, s8 offen offset:{64*u} lds')
                if H>=2*Q3AT and q3n[0]<NIDLE and H<15: q3load()
                flush(LAG)
            if H==0 and k2==0:
                wd_addr(a); a('s_barrier')
        ev.append((last,2*H+2))
        if H==1 and not TAIL: stamp(a,1)
        if H==3 and not TAIL: stamp(a,2)
    signal(a,2,ISSUED,1,25)
    while q3n[0]<NIDLE: q3load()
    drain()
    a('L_Bwd:')
    stamp(a,3)
    if ABL&1:
        finish(a); a.l += ool.l; return a
    a('s_setprio 1')
    if T23:
        a(f'v_lshlrev_b32 v26, 7, v1')
        for i in range(3):
            a(f's_mul_i32 s11, {sJ}, 3\ns_add_u32 s11, s11, {i}\ns_min_u32 s11, s11, 87\ns_add_u32 s12, s11, 44\ns_cmp_lt_u32 s11, 44\ns_cselect_b32 s11, s11, s12\ns_lshl_b32 s11, s11, 13\ns_add_u32 s11, s11, {176*1024}')
            a.vm(f'buffer_load_dword v28, v26, {sWd}, s11 offen')
    for q in range(3):
        st=q*STG
        free({0:12,1:14,2:16}[q])
        for kh in range(2):
            for i in range(22):
                if i%4==0:
                    a(f's_mov_b32 m0, {st+kh*22528+1024*i}\ns_add_u32 s8, s9, {(q*176+kh*704+8*i)*1024}')
                last=a.vm(f'buffer_load_dwordx4 v{DA+(i&3)}, {sWd}, s8 offen offset:{1024*(i&3)} lds')
                if i%4==3:
                    if a.vm_issued-a.vm_done>LAG2: a.wait_vm(a.vm_issued-LAG2)
                    flush(LAG2)
        ev.append((last,33+q))
        if TAIL: stamp(a,[1,2,6][q])
    while q3n[0]<NREG: q3load()
    st=0
    a(f'v_mov_b32 v26, v5')
    drain()
    stamp(a,4)
    free(18)
    for i in range(12,22):
        if i%4==0:
            a(f's_mov_b32 m0, {st+22528+1024*i}\ns_add_u32 s8, s9, {(3*176+704+8*i)*1024}')
        a.vm(f'buffer_load_dwordx4 v{DA+(i&3)}, {sWd}, s8 offen offset:{1024*(i&3)} lds')
    a.wait_vm(a.vm_issued-10)
    for n in range(NREG): a.ds(f'ds_write_b128 v26, {P4(R3+4*n)} offset:{1024*n}')
    a.wait_vm_all()
    signal(a,2,WFULL,36,24)
    a.wait_lg_all()
    stamp(a,5)
    finish(a)
    a.l += ool.l
    return a

def wave_A():
    a = Asm()
    a('L_A:')
    if ABL&4: a('s_endpgm')
    a('s_setprio 2')
    SF=64; ST=96; ONE=20; D1=24; D2=28
    a(f'v_and_b32 v3, 3, v1\nv_lshlrev_b32 v3, 7, v3\nv_bfe_u32 v4, v1, 2, 1\nv_mul_u32_u24 v4, {SFL-HFL}, v4\nv_add_u32 v3, v3, v4')
    a(f's_lshl_b32 s6, s2, 9\ns_add_u32 s6, s6, {HFL}')
    a(f'buffer_load_dword v60, v3, {sWs}, s6 offen sc1')
    a('v_lshrrev_b32 v4, 4, v1')
    a(f'v_and_b32 v3, 7, v1\nv_mul_u32_u24 v3, 1056, v3\nv_bfe_u32 v6, v1, 3, 1\nv_lshl_add_u32 v3, v6, 9, v3\nv_lshl_add_u32 v3, v4, 4, v3\nv_add_u32 v3, {UB}, v3')
    a(f'v_bfe_u32 v6, v1, 2, 2\nv_cmp_eq_u32 s[14:15], v4, v6\nv_mul_u32_u24 v6, 1056, v6\nv_lshl_add_u32 v6, v4, 5, v6\nv_and_b32 v7, 3, v1\nv_lshl_add_u32 v6, v7, 3, v6\nv_add_u32 v6, {UB}, v6')
    a('v_cmp_eq_u32 s[8:9], 1, v7\nv_cmp_eq_u32 s[10:11], 2, v7\nv_cmp_eq_u32 s[12:13], 3, v7')
    for r in range(4): a(f'v_mov_b32 v{ONE+r}, 0x3f803f80')
    a('s_waitcnt lgkmcnt(0)\ns_barrier')
    a(f's_add_u32 {sTAG}, {sTAG}, 1')
    a('s_waitcnt vmcnt(1)')
    stamp(a,1)
    ld=[a.ds(f'ds_read_b128 {P4(SF+4*ks)}, v3 offset:{64*ks}') for ks in range(8)]
    for ks in range(8):
        a.wait_lg(ld[ks])
        f=P4(SF+4*ks)
        a(f'v_mfma_f32_16x16x32_bf16 {P4(D1)}, {f}, {f}, {"0" if ks==0 else P4(D1)}')
        a(f'v_mfma_f32_16x16x32_bf16 {P4(D2)}, {P4(ONE)}, {f}, {"0" if ks==0 else P4(D2)}')
    for i in range(16): a.ds(f'ds_read_b64_tr_b16 {P2(ST+2*i)}, v6 offset:{128*(i>>1)+4224*(i&1)}')
    a(f'v_cndmask_b32 v56, v{D1}, v{D1+1}, s[8:9]\nv_cndmask_b32 v56, v56, v{D1+2}, s[10:11]\nv_cndmask_b32 v56, v56, v{D1+3}, s[12:13]\nv_cndmask_b32 v56, 0, v56, s[14:15]')
    a('v_mov_b32 v57, v56\nv_permlane32_swap_b32 v56, v57\nv_add_f32 v56, v56, v57')
    a('v_mov_b32 v57, v56\nv_permlane16_swap_b32 v56, v57\nv_add_f32 v56, v56, v57')
    a('v_add_f32_dpp v56, v56, v56 row_ror:8 row_mask:0xf bank_mask:0xf')
    a(f'v_add_f32_dpp v57, v{D2}, v{D2} row_ror:8 row_mask:0xf bank_mask:0xf')
    a('v_mul_f32 v57, 0x3b000000, v57')
    a('v_mul_f32 v56, 0x3b000000, v56')
    a('v_fma_f32 v56, -v57, v57, v56\nv_max_f32 v56, 0, v56')
    a('v_cvt_pk_bf16_f32 v56, v56, v56\nv_and_b32 v56, 0xffff0000, v56')
    a('v_add_f32 v56, 0x3727c5ac, v56')
    a('v_cvt_pk_bf16_f32 v56, v56, v56\nv_and_b32 v56, 0xffff0000, v56')
    a('v_sqrt_f32 v56, v56')
    a('v_cvt_pk_bf16_f32 v58, v57, v56')
    a(f'v_mov_b32 v59, {sTAG}')
    a(f's_lshl_b32 s6, {sP}, 6\ns_add_u32 s6, s6, {STATS}')
    a('v_lshlrev_b32 v7, 3, v1')
    a('s_mov_b32 s14, s6')
    a('v_and_b32 v56, 0xffff0000, v58\nv_rcp_f32 v56, v56\nv_lshlrev_b32 v57, 16, v58\nv_mul_f32 v57, v57, v56')
    for r in range(8):
        a(f'v_mov_b32_dpp v{32+r}, v56 row_newbcast:{r} row_mask:0xf bank_mask:0xf')
        a(f'v_mov_b32_dpp v{40+r}, v57 row_newbcast:{r} row_mask:0xf bank_mask:0xf')
    a(f's_lshl_b32 s6, {sP}, 13\ns_add_u32 s6, s6, {XNT}\ns_add_u32 s7, s6, 4096')
    a.wait_lg_all()
    for i in range(8):
        s0=ST+4*i
        for q in range(4): a(f'v_lshlrev_b32 v{48+2*q}, 16, v{s0+q}\nv_and_b32 v{49+2*q}, 0xffff0000, v{s0+q}')
        for e in range(8): a(f'v_fma_f32 v{48+e}, v{48+e}, v{32+e}, -v{40+e}')
        for q in range(4): a(f'v_cvt_pk_bf16_f32 v{s0+q}, v{48+2*q}, v{49+2*q}')
    if STAT:
        L=lab('a')
        a(f's_cmp_eq_u32 {sTY}, 2\ns_cbranch_scc1 {L}')
        poll_lds(a, 2, WFULL, STAT, 24, sleep=2)
        a(f'{L}:')
    for i in range(8):
        a(f'buffer_store_dwordx4 {P4(ST+4*i)}, v5, {sWs}, {"s6" if i<4 else "s7"} offen offset:{1024*(i&3)} sc1')
    a('s_mov_b64 exec, 0xff')
    a(f'buffer_store_dwordx2 v[58:59], v7, {sWs}, s14 offen sc1')
    a('s_mov_b64 exec, -1')
    stamp(a,2)
    a(f'v_add_u32 v7, {UB}, v7\nv_mov_b32 v32, 0\nv_mov_b32 v33, 0')
    a.ds('ds_write_b64 v7, v[32:33]'); a.ds('ds_write_b64 v7, v[32:33] offset:4608')
    a('s_waitcnt vmcnt(0)')
    a(f's_lshl_b32 s6, s2, 2\ns_add_u32 s6, s6, {XF}\ns_mov_b64 exec, 1')
    a(f'buffer_store_dword v59, v32, {sWs}, s6 offen sc1')
    a('s_mov_b64 exec, -1')
    Lnc=lab('a')
    a(f's_cmp_eq_u32 {sTY}, 2\ns_cbranch_scc1 {Lnc}')
    a(f'v_and_b32 v30, 31, v1\nv_lshrrev_b32 v31, 5, v1\nv_mul_u32_u24 v7, 384, v31\nv_lshl_add_u32 v7, v30, 2, v7\nv_add_u32 v7, {CSA}, v7')
    poll_lds(a, 2, CSREADY, 2, 24, sleep=2)
    for e in range(3): a.ds(f'ds_read_b32 v{56+e}, v7 offset:{128*e}')
    a(f's_lshl_b32 s8, {sCG}, 14\ns_lshl_b32 s9, {sRB}, 10\ns_add_u32 s8, s8, s9\ns_add_u32 s8, s8, {CSUM}')
    a.wait_lg_all()
    a(f'buffer_store_dwordx4 v[56:59], v5, {sWs}, s8 offen sc1')
    a(f'{Lnc}:')
    stamp(a,3)
    if ABL&1: finish(a); return a
    CS=64; XG=96
    a('v_lshrrev_b32 v6, 1, v1\nv_lshlrev_b32 v34, 4, v6\nv_lshlrev_b32 v6, 13, v6\nv_and_b32 v3, 1, v1\nv_lshl_add_u32 v6, v3, 4, v6')
    a(f's_lshl_b32 s13, {sP}, 5\ns_add_u32 s13, s13, {XNT}')
    a(f'v_mul_u32_u24 v3, 4608, v3\nv_add_u32 v34, v34, v3\nv_add_u32 v34, {UB+512}, v34')
    a(f's_lshl_b32 s6, {sRB}, 10\ns_add_u32 s6, s6, {STATS}')
    a(f's_and_b32 s8, {sRB}, 8\ns_lshl_b32 s8, s8, 10\ns_lshl_b32 s7, {sCG}, 14\ns_add_u32 s7, s7, s8\ns_add_u32 s7, s7, {CSUM}\ns_add_u32 s15, s7, 4096')
    poll_lds(a, 2, WFULL, GAT, 28, sleep=2)
    L=lab('a'); E=lab('a')
    a('s_mov_b32 s12, 0x4000')
    a(f'{L}:')
    a(f's_mov_b32 s8, {XF}')
    a(f'buffer_load_dwordx4 v[52:55], v5, {sWs}, s8 offen sc1')
    a(f'buffer_load_dwordx4 v[24:27], v5, {sWs}, s6 offen sc1')
    for i in range(8): a(f'buffer_load_dwordx4 {P4(CS+4*i)}, v5, {sWs}, {"s7" if i<4 else "s15"} offen offset:{1024*(i&3)} sc1')
    a('s_waitcnt vmcnt(0)')
    a('v_min_u32 v30, v25, v27\nv_max_u32 v31, v25, v27')
    a('v_min3_u32 v30, v30, v52, v53\nv_max3_u32 v31, v31, v52, v53\nv_min3_u32 v30, v30, v54, v55\nv_max3_u32 v31, v31, v54, v55')
    for i in range(0,8,2):
        a(f'v_min3_u32 v30, v30, v{CS+4*i+3}, v{CS+4*i+7}\nv_max3_u32 v31, v31, v{CS+4*i+3}, v{CS+4*i+7}')
    a(f'v_cmp_ne_u32 vcc, {sTAG}, v30\nv_cmp_ne_u32 s[8:9], {sTAG}, v31\ns_or_b64 vcc, vcc, s[8:9]')
    a(f's_cbranch_vccz {E}')
    a(f's_sleep 4\ns_sub_u32 s12, s12, 1\ns_cmp_lg_u32 s12, 0\ns_cbranch_scc1 {L}')
    a(f'{E}:')
    for st in (4,2,1):
        for i in range(st):
            for e in range(3): a(f'v_add_f32 v{CS+4*i+e}, v{CS+4*i+e}, v{CS+4*(i+st)+e}')
    a(f'v_lshlrev_b32 v30, 3, v1\nv_add_u32 v30, {STL}, v30')
    a.ds('ds_write2_b32 v30, v24, v26 offset0:0 offset1:1')
    a(f'v_and_b32 v30, 31, v1\nv_lshlrev_b32 v30, 3, v30\nv_lshrrev_b32 v31, 5, v1\nv_mul_u32_u24 v31, 768, v31\nv_add_u32 v30, v30, v31\nv_add_u32 v30, {CSA}, v30')
    a('s_mov_b32 s8, 0x07060302')
    for e in range(3):
        v=CS+e; t=40+4*e
        a(f'v_and_b32 v{t}, 0xffff0000, v{v}\nv_sub_f32 v{t+1}, v{v}, v{t}\nv_and_b32 v{t+2}, 0xffff0000, v{t+1}\nv_sub_f32 v{t+3}, v{t+1}, v{t+2}')
        a(f'v_perm_b32 v{t+2}, v{t+2}, v{t}, s8\nv_lshrrev_b32 v{t+3}, 16, v{t+3}')
        a.ds(f'ds_write_b64 v30, {P2(t+2)} offset:{256*e}')
    signal(a, 2, STREADY, 1, 31)
    stamp(a,4)
    poll_lds(a, 2, ISSUED, 1, 28, sleep=1)
    for i in range(8):
        a(f's_add_u32 s8, s13, {i*32*8192}')
        a(f'buffer_load_dwordx4 {P4(XG+4*i)}, v6, {sWs}, s8 offen sc1')
    a(f'v_lshrrev_b32 v3, 3, v1\nv_mul_u32_u24 v3, 3072, v3\nv_add_u32 v12, v3, v{DA}')
    for i in range(1,4): a(f'v_add_u32 v{12+i}, {i*(32768-1024)}, v12')
    a(f's_lshl_b32 s6, {sXCD}, 2\ns_and_b32 s7, {sJ}, 3\ns_add_u32 s6, s6, s7\ns_lshr_b32 s7, {sJ}, 2')
    a(f's_lshr_b32 s12, s6, 4\ns_lshl_b32 s12, s12, 3\ns_add_u32 s12, s12, s7\ns_lshl_b32 s12, s12, 13\ns_add_u32 s12, s12, {SFL}')
    a(f's_lshl_b32 s11, s7, 18\ns_lshl_b32 s10, s6, 7\ns_add_u32 s11, s11, s10\ns_add_u32 s11, s11, {SB}')
    a('s_lshl_b32 s10, s6, 16\ns_lshl_b32 s9, s7, 7\ns_add_u32 s10, s10, s9')
    a('v_lshlrev_b32 v27, 7, v1')
    a('s_waitcnt vmcnt(0)')
    for i in range(8): a.ds(f'ds_write_b128 v34, {P4(XG+4*i)} offset:{512*i}')
    signal(a, 2, UREADY, 1, 31)
    stamp(a,5)
    poll_lds(a, 2, CFIN, 4, 28, sleep=2)
    for g in range(2):
        a(f's_mov_b32 m0, {HREG+8192+4096*g}\ns_add_u32 s8, s10, {g*32768}')
        for i in range(4): a(f'buffer_load_dwordx4 v{XD+i}, {sX}, s8 offen offset:{1024*i} lds')
    poll_lds(a, 2, PROG, SPOLL, 20, sleep=2, min4=True)
    poll_flags(a, 28, 27, 's12', sTAG, 4)
    stamp(a,6)
    for g in range(2):
        a(f's_mov_b32 m0, {HREG+4096*g}\ns_add_u32 s8, s11, {g*131072}')
        for i in range(4): a(f'buffer_load_dwordx4 v{12+i}, {sWs}, s8 offen offset:{1024*i} sc1 lds')
    poll_lds(a, 2, PROG, 19, 20, sleep=1, min4=True)
    a('s_waitcnt vmcnt(0)')
    signal(a,2,XSREADY,1,24)
    a.wait_lg_all()
    stamp(a,7)
    finish(a)
    return a

def wave_H():
    a = Asm()
    a('L_H:')
    if ABL&2: a('s_endpgm')
    a(f's_mul_i32 s13, s14, {KBS}\ns_add_u32 s13, s13, {KB0}')
    a('s_lshl_b32 s12, s15, 12\ns_add_u32 s12, s12, s13')
    WR=8; RA=4
    a('v_and_b32 v28, 15, v1\nv_lshrrev_b32 v29, 4, v1\nv_add_u32 v30, v28, v29\nv_lshlrev_b32 v30, 4, v30\nv_lshl_add_u32 v31, v28, 8, s12')
    for k in range(4): a(f'v_add_u32 v{RA+k}, {64*k}, v30\nv_and_b32 v{RA+k}, 0xff, v{RA+k}\nv_add_u32 v{RA+k}, v{RA+k}, v31')
    a('v_lshlrev_b32 v30, 2, v1')
    for r in range(16): a(f'v_add_u32 v{WR+r}, {16*r}, v30\nv_and_b32 v{WR+r}, 0xff, v{WR+r}\nv_add_u32 v{WR+r}, s12, v{WR+r}')
    a('s_waitcnt lgkmcnt(0)\ns_barrier')
    a('s_lshl_b32 s8, s76, 16\ns_and_b32 s9, s76, 0xffff0000\ns_lshl_b32 s10, s77, 16\ns_and_b32 s11, s77, 0xffff0000\ns_cmp_eq_u32 s14, 0\ns_cselect_b32 s8, s8, s9\ns_cselect_b32 s77, s10, s11')
    a(f'v_mov_b32 v28, s8\nv_mul_f32 v28, {LOG2E}, v28\nv_exp_f32 v28, v28\nv_cvt_pk_bf16_f32 v28, v28, v28\nv_and_b32 v28, 0xffff0000, v28\nv_add_f32 v29, v28, v28')
    W=lambda e: 32+2*e
    Pm=lambda m: (50+2*(m-1)) if m<8 else (64+2*(m&1))
    Bj=lambda j: 68+2*(j&1)
    TM=lambda k: 72+2*(k&3)
    PK=lambda t,r: 80+16*t+r
    a('s_waitcnt vmcnt(0)')
    stamp(a,1)
    for i in range(4): a(f'v_lshlrev_b32 v{24+i}, 16, v{24+i}')
    a(f'v_mul_f32 v24, {LOG2E}, v24\nv_mul_f32 v25, v25, v28\nv_exp_f32 v24, v24\nv_mul_f32 v{Bj(0)}, v26, v29\nv_mul_f32 v{Bj(0)+1}, v27, v29')
    a('v_mul_f32 v25, 0x3e22f983, v25\nv_cvt_pk_bf16_f32 v24, v24, v24\nv_mul_f32 v27, 0x43000000, v25\nv_and_b32 v24, 0xffff0000, v24\nv_fract_f32 v25, v25')
    a('v_mul_f32 v24, v24, v28\nv_fract_f32 v27, v27\nv_mul_f32 v24, 0xbfb8aa3b, v24')
    a(f'v_cos_f32 v{W(1)}, v25\nv_mul_f32 v26, 0x43000000, v24\nv_sin_f32 v{W(1)+1}, v25\nv_exp_f32 v24, v24\nv_cos_f32 v{Pm(1)}, v27\nv_exp_f32 v26, v26\nv_sin_f32 v{Pm(1)+1}, v27')
    a(f'v_pk_mul_f32 {P2(W(1))}, {P2(W(1))}, v[24:25] op_sel_hi:[1,0]\nv_pk_mul_f32 {P2(Pm(1))}, {P2(Pm(1))}, v[26:27] op_sel_hi:[1,0]')
    pend=[]
    nb=[0]
    def sinkA(src,t,r): return [('v',f'v_cvt_pk_bf16_f32 v{PK(t,r)}, v{src}, v{src+1}')]
    def sinkB(src,j):
        p=30+(nb[0]&1); nb[0]+=1
        return [('v',f'v_cvt_pk_bf16_f32 v{p}, v{src}, -v{src+1}'), ('d',f'ds_write_b32 v{WR+j}, v{p} offset:{256*j}')]
    def step(cm):
        nonlocal pend
        for d,x,y,_ in cm: a(f'v_pk_mul_f32 {P2(d)}, {P2(x)}, {P2(y)} op_sel_hi:[0,1]')
        late=[z for z in pend if z[0]=='d']
        for k,x in pend:
            if k=='v': a(x)
        for d,x,y,_ in cm: a(f'v_pk_fma_f32 {P2(d)}, {P2(x)}, {P2(y)}, {P2(d)} op_sel:[1,1,0] op_sel_hi:[1,0,1] neg_lo:[1,0,0]')
        for k,x in late: a.ds(x)
        pend=[]
        for d,x,y,s in cm: pend+=s
    def pos(m):
        if m==1: return (0,8)
        if m<4: return (1,4*(m-2))
        if m<8: return (1,8+2*(m-4))
        return (2,m-8)
    cP=lambda m: (Pm(m),Pm(m-1),Pm(1),sinkA(Pm(m),*pos(m)))
    cW=lambda e,x,y: (W(e),W(x),W(y),sinkA(W(e),0,e) if e<8 else [])
    a(f'v_mov_b32 v{PK(0,0)}, 0x3f80')
    pend=sinkA(W(1),0,1)+sinkA(Pm(1),0,8)+sinkB(Bj(0),0)
    step([cW(2,1,1), cP(2)])
    step([cW(4,2,2), cW(3,2,1), cP(3)])
    step([cW(8,4,4), cW(5,4,1), cW(6,4,2), cW(7,4,3), cP(4)])
    pool=[(1,e,0,8+e) for e in range(1,8)]+[(m,2*e,1,4*(m-2)+e) for m in (2,3) for e in (1,2,3)]+[(m,4,1,9+2*(m-4)) for m in range(4,8)]
    tk=0
    for j in range(1,16):
        cm=[(Bj(j),Bj(j-1),W(8),sinkB(Bj(j),j))]
        if j+4<=16: cm.append(cP(j+4))
        for _ in range(1 if j+4<=16 else 2):
            if pool:
                m,e,t,r=pool.pop(0); cm.append((TM(tk),Pm(m),W(e),sinkA(TM(tk),t,r))); tk+=1
        step(cm)
    assert not pool
    step([])
    BF=32; AF=lambda t: 48+16*t if t<2 else 128; DK=144
    for k in range(4): a.ds(f'ds_read_b128 {P4(BF+4*k)}, v{RA+k}')
    rd={}
    for t in range(3):
        for r in range(16 if t<2 else 9): a.ds(f'ds_write_b32 v{WR+r}, v{PK(t,r)} offset:{256*r}')
        for k in range(4): rd[t]=a.ds(f'ds_read_b128 {P4(AF(t)+4*k)}, v{RA+k}')
    for t in range(3):
        a.wait_lg(rd[t])
        for k in range(4): a(f'v_mfma_f32_16x16x32_bf16 {P4(DK+4*t)}, {P4(AF(t)+4*k)}, {P4(BF+4*k)}, {"0" if k==0 else P4(DK+4*t)}')
    a('s_add_u32 s8, s13, 4096\nv_lshl_add_u32 v28, v1, 4, s8')
    a('s_lshl_b32 s8, s14, 2\nv_add_u32 v29, s8, v2')
    a(f's_cmp_eq_u32 s15, 0\ns_cbranch_scc1 L_Kfin')
    for t in range(3): a(f'ds_write_b128 v28, {P4(DK+4*t)} offset:{1024*t}')
    a(f'v_mov_b32 v30, 1\nds_write_b32 v29, v30 offset:{KX}')
    a('s_branch L_conv')
    a('L_Kfin:')
    a('v_and_b32 v12, 15, v1\nv_lshrrev_b32 v13, 4, v1')
    a('s_add_u32 s12, s13, 64')
    a('v_lshrrev_b32 v14, 1, v13\nv_lshlrev_b32 v14, 7, v14\nv_and_b32 v15, 1, v13\nv_lshl_add_u32 v14, v15, 2, v14\nv_lshl_add_u32 v14, v12, 3, v14\nv_lshl_add_u32 v14, v14, 2, s12')
    a('v_cmp_gt_u32 vcc, 2, v13\nv_lshlrev_b32 v15, 1, v12\nv_lshlrev_b32 v16, 2, v12\nv_cndmask_b32 v15, v15, v16, vcc\nv_lshl_add_u32 v15, v13, 6, v15\nv_lshl_add_u32 v15, v15, 2, s12')
    a('v_mov_b32 v16, 128\nv_cndmask_b32 v16, v16, 8, vcc\nv_add_u32 v16, v16, v15')
    a('v_lshl_add_u32 v17, v13, 6, v12\nv_lshl_add_u32 v17, v17, 2, s12')
    a('v_lshl_add_u32 v18, v1, 3, s12')
    a('v_lshl_add_u32 v19, v1, 4, s13')
    a('v_cmp_eq_u32 vcc, 0, v1\nv_add_u32 v20, 4, v18\nv_cndmask_b32 v20, v20, v18, vcc')
    a('v_mov_b32 v21, 0\nv_mov_b32 v22, s13')
    a('v_sub_u32 v23, 63, v1')
    a('v_lshl_add_u32 v24, v23, 5, s13\nv_lshl_add_u32 v25, v23, 4, s13\nv_lshl_add_u32 v26, v23, 3, s13')
    a('v_and_b32 v27, 7, v1\nv_lshl_add_u32 v27, v27, 2, s13')
    poll_lds(a, 29, KX, 1, 30, sleep=0)
    for t in range(3): a.ds(f'ds_read_b128 {P4(32+4*t)}, v28 offset:{1024*t}')
    a.wait_lg_all()
    for r in range(12): a(f'v_add_f32 v{DK+r}, v{DK+r}, v{32+r}')
    a.ds(f'ds_write_b32 v22, v21 offset:60')
    a.ds(f'ds_write_b128 v14, {P4(DK)}')
    a.ds(f'ds_write_b64 v15, {P2(DK+4)} offset:1024')
    a.ds(f'ds_write_b64 v16, {P2(DK+6)} offset:1024')
    for r in range(4): a.ds(f'ds_write_b32 v17, v{DK+8+r} offset:{2048+64*r}')
    E=32
    a.ds(f'ds_read_b64 {P2(E)}, v18 offset:2048'); a.ds(f'ds_read_b32 v{E+2}, v18 offset:2056')
    a.ds(f'ds_read_b64 {P2(E+4)}, v18 offset:1536'); a.ds(f'ds_read_b32 v{E+6}, v18 offset:1544')
    a.ds(f'ds_read_b64 {P2(E+8)}, v18 offset:1024'); a.ds(f'ds_read_b32 v{E+10}, v18 offset:1032')
    a.ds(f'ds_read_b32 v{E+11}, v20 offset:1020')
    a.ds(f'ds_read_b128 {P4(E+12)}, v19 offset:64'); a.ds(f'ds_read_b32 v{E+16}, v19 offset:60')
    a.wait_lg_all()
    O=100
    def pk(d,lo,hi): a(f'v_cvt_pk_bf16_f32 v{d}, v{lo}, v{hi}')
    A_,B_,C_=E,E+1,E+2
    for k,(lo,hi) in enumerate([(C_,C_),(C_,C_),(B_,B_),(B_,B_),(B_,B_),(B_,A_),(A_,A_),(A_,A_)]): pk(O+k,lo,hi)
    for k,(lo,hi) in enumerate([(C_,C_),(C_,B_),(B_,B_),(B_,B_),(B_,B_),(A_,A_),(A_,A_),(A_,A_)]): pk(O+8+k,lo,hi)
    a.ds(f'ds_write_b128 v24, {P4(O)}'); a.ds(f'ds_write_b128 v24, {P4(O+4)} offset:16')
    a.ds(f'ds_write_b128 v24, {P4(O+8)} offset:4160'); a.ds(f'ds_write_b128 v24, {P4(O+12)} offset:4176')
    A_,B_,C_=E+4,E+5,E+6
    for k,(lo,hi) in enumerate([(C_,C_),(B_,B_),(B_,A_),(A_,A_),(C_,B_),(B_,B_),(A_,A_),(A_,A_)]): pk(O+16+k,lo,hi)
    a.ds(f'ds_write_b128 v25, {P4(O+16)} offset:2048'); a.ds(f'ds_write_b128 v25, {P4(O+20)} offset:{2048+4160}')
    A_,B_,C_=E+8,E+9,E+10
    for k,(lo,hi) in enumerate([(C_,B_),(A_,A_),(B_,A_),(A_,E+11)]): pk(O+24+k,lo,hi)
    a.ds(f'ds_write_b64 v26, {P2(O+24)} offset:3072'); a.ds(f'ds_write_b64 v26, {P2(O+26)} offset:{3072+4160}')
    k0=E+12
    for k,(lo,hi) in enumerate([(k0+3,k0+2),(k0+1,k0),(k0+2,k0+1),(k0,E+16)]): pk(O+28+k,lo,hi)
    a.ds(f'ds_write_b64 v26, {P2(O+28)} offset:3584'); a.ds(f'ds_write_b64 v26, {P2(O+30)} offset:{3584+4160}')
    a.ds('ds_write_b32 v27, v21 offset:4096'); a.ds(f'ds_write_b32 v27, v21 offset:{4096+4160}')
    signal(a, 29, KREADY, 1, 24)
    a('L_conv:')
    stamp(a,2)
    if ABL&1: finish(a); return a
    a(f's_mul_i32 s12, s14, 4608\ns_add_u32 s12, s12, {UB}')
    a('s_lshl_b32 s10, s15, 8')
    a('v_and_b32 v3, 15, v1\nv_lshrrev_b32 v4, 4, v1')
    a('v_lshrrev_b32 v5, 1, v3\nv_lshl_add_u32 v5, v4, 2, v5\nv_lshlrev_b32 v5, 2, v5\nv_and_b32 v6, 1, v3\nv_mul_u32_u24 v6, 4160, v6\nv_add_u32 v5, v5, v6')
    a(f's_add_u32 s8, s13, {4160+4108-512-192}\ns_sub_u32 s8, s8, s10')
    a('v_sub_u32 v8, s8, v5')
    for ap in range(1,4): a(f'v_subrev_u32 v{8+ap}, {1024*ap}, v8')
    a('v_lshlrev_b32 v5, 5, v3\nv_lshlrev_b32 v6, 4, v4\nv_sub_u32 v6, v5, v6')
    a(f's_add_u32 s8, s12, {528-192}\ns_sub_u32 s8, s8, s10')
    a('v_add_u32 v12, s8, v6')
    a(f's_lshl_b32 s8, {sWV}, 2\nv_add_u32 v14, s8, v2\ns_xor_b32 s8, s8, 8\nv_add_u32 v15, s8, v2')
    a('v_lshl_add_u32 v5, v4, 3, v5\nv_add_u32 v16, s12, v5')
    a('s_lshl_b32 s8, s15, 12\ns_add_u32 s8, s8, s13\nv_lshl_add_u32 v17, v1, 4, s8')
    a('s_xor_b32 s9, s15, 1\ns_lshl_b32 s9, s9, 12\ns_add_u32 s9, s9, s13\nv_lshl_add_u32 v18, v1, 4, s9\nv_add_u32 v19, s9, v5')
    a(f's_lshl_b32 s6, {sP}, 1\ns_add_u32 s6, s6, s14')
    a(f's_lshl_b32 s8, s15, 9\ns_add_u32 s7, s6, s8\ns_lshl_b32 s7, s7, 7\ns_add_u32 s7, s7, {SFL}')
    a(f's_lshl_b32 s6, s6, 12\ns_lshl_b32 s8, s15, 11\ns_add_u32 s6, s6, s8\ns_add_u32 s6, s6, {SB}')
    a(f'v_lshlrev_b32 v6, 4, v1\ns_add_u32 s8, {sTAG}, 1\nv_mov_b32 v24, s8\nv_mov_b32 v25, 0\nv_mov_b32 v26, 1')
    a('s_cmp_eq_u32 s15, 0\ns_cselect_b32 s10, s77, 0\ns_cselect_b32 s11, 0, s77')
    poll_lds(a, 29, KREADY, 1, 20, sleep=4)
    poll_lds(a, 2, UREADY, 1, 20, sleep=4)
    ACC=32; FA=lambda k: 64+4*k; FB=lambda k: 96+4*k
    for q in range(8): a.ds(f'ds_read_b64 {P2(128+2*q)}, v16 offset:{512+512*q}')
    a.wait_lg_all()
    ra={}; rb={}
    def rdA(it,k):
        ap=k>>1; o=(1-(k&1))*128+16*(3-it)
        a.ds(f'ds_read2_b32 {P2(FA(k))}, v{8+ap} offset0:{o} offset1:{o+1}')
        ra[it,k]=a.ds(f'ds_read2_b32 {P2(FA(k)+2)}, v{8+ap} offset0:{o+2} offset1:{o+3}')
    def rdB(it,k):
        rb[it,k]=a.ds(f'ds_read_b128 {P4(FB(k))}, v12 offset:{512*k+64*(3-it)}')
    for k in range(8): rdA(0,k); rdB(0,k)
    for r in range(32):
        src=128+(r>>1)
        a(f'v_lshlrev_b32 v{ACC+r}, 16, v{src}' if r%2==0 else f'v_and_b32 v{ACC+r}, 0xffff0000, v{src}')
    for r in range(32): a(f'v_mul_f32 v{ACC+r}, {"s10" if r<16 else "s11"}, v{ACC+r}')
    poll_lds(a, 2, PROG, 17, 20, sleep=1, min4=True)
    a(f's_setprio {CPRIO}')
    stamp(a,3)
    for it in range(4):
        for aa in range(8):
            for b in range(7-aa,-1,-1):
                d=P4(ACC+4*(aa+b))
                a.wait_lg(max(ra[it,aa], rb[it,b]))
                a(f'v_mfma_f32_16x16x32_bf16 {d}, {P4(FA(aa))}, {P4(FB(b))}, {d}')
                if it<3 and b==7-aa: rdB(it+1,b)
            if it<3: rdA(it+1,aa)
            if it==3 and aa==3: fl=a.ds(f'ds_read_b32 v20, v15 offset:{CDONE}')
        if it==2: a.ds(f'ds_write_b32 v14, v26 offset:{CDONE}')
    stamp(a,4)
    a.wait_lg(fl)
    L=lab('c')
    a(f'v_readfirstlane_b32 s4, v20\ns_cmp_ge_u32 s4, 1\ns_cbranch_scc1 {L}')
    poll_lds(a, 15, CDONE, 1, 20, sleep=0)
    a(f'{L}:')
    def tail(keep, send):
        for q in range(4): a(f'ds_write_b128 v17, {P4(send+4*q)} offset:{1024*q}')
        a(f'ds_write_b32 v14, v26 offset:{CXCH}')
        poll_lds(a, 15, CXCH, 1, 20, sleep=0)
        for q in range(4): a(f'ds_read_b128 {P4(64+4*q)}, v18 offset:{1024*q}')
        for q in range(4):
            a(f's_waitcnt lgkmcnt({3})')
            for e in range(4): a(f'v_add_f32 v{keep+4*q+e}, v{keep+4*q+e}, v{64+4*q+e}')
            a(f'v_cvt_pk_bf16_f32 v{80+2*q}, v{keep+4*q}, v{keep+4*q+1}\nv_cvt_pk_bf16_f32 v{81+2*q}, v{keep+4*q+2}, v{keep+4*q+3}')
            a(f'ds_write_b64 v19, {P2(80+2*q)} offset:{512*q}')
    L=lab('c'); L2=lab('c')
    a(f's_cmp_eq_u32 s15, 0\ns_cbranch_scc1 {L}')
    a('s_nop 3')
    tail(ACC+16, ACC)
    a(f's_branch {L2}')
    a(f'{L}:')
    a('s_nop 3')
    tail(ACC, ACC+16)
    a(f'{L2}:')
    a('ds_read_b128 v[88:91], v18\nds_read_b128 v[92:95], v18 offset:1024')
    a(f's_mov_b64 exec, 1\nds_add_u32 v2, v26 offset:{CFIN}\ns_mov_b64 exec, -1')
    a('s_waitcnt lgkmcnt(2)')
    a(f'buffer_store_dwordx4 v[88:91], v6, {sWs}, s6 offen sc1')
    a('s_waitcnt lgkmcnt(1)')
    a(f'buffer_store_dwordx4 v[92:95], v6, {sWs}, s6 offen offset:1024 sc1')
    stamp(a,5)
    a('s_mov_b64 exec, 1\ns_waitcnt vmcnt(0)')
    a(f'buffer_store_dword v24, v25, {sWs}, s7 offen sc1')
    stamp(a,6)
    finish(a)
    return a

def wave_G():
    a = Asm(); ool = Asm(); a.isG=True
    a('L_G:')
    a('s_setprio 3')
    ACC=lambda tt,j: 72+16*(3*tt+j)
    FW=lambda par,j: 32+20*par+4*j
    FX=lambda par,tt: 32+20*par+12+4*tt
    CA=lambda j: 20+4*j
    SEL=16
    TR=3; XR=6; vP=10; vT=11; vL16=12; t0=13; t1=14; t2=15
    a(f's_sub_u32 s13, {sWV}, {WG_}\ns_and_b32 s14, s13, 1\ns_lshr_b32 s15, s13, 1')
    a(f'v_and_b32 v{t0}, 31, v1\nv_bfe_u32 v{t1}, v1, 1, 3\nv_lshrrev_b32 v{t2}, 5, v1\nv_xor_b32 v{t1}, v{t1}, v{t2}\nv_lshlrev_b32 v{t1}, 4, v{t1}\nv_lshl_add_u32 v{t0}, v{t0}, 7, v{t1}')
    a(f's_lshl_b32 s7, s14, 13\nv_add_u32 v{XR}, s7, v{t0}')
    for k in range(1,4): a(f'v_xor_b32 v{XR+k}, {32*k}, v{XR}')
    a(f'v_bfe_u32 v{t0}, v1, 4, 1\nv_bfe_u32 v{t1}, v1, 2, 2\nv_lshl_add_u32 v{t2}, v{t2}, 3, v{t1}\nv_lshlrev_b32 v{t2}, 6, v{t2}')
    a(f'v_and_b32 v{t1}, 3, v1\nv_lshl_add_u32 v{t2}, v{t1}, 3, v{t2}\nv_mul_u32_u24 v{t1}, {6144+32}, v{t0}\nv_add_u32 v{t2}, v{t2}, v{t1}')
    for j in range(3):
        a(f's_mul_i32 s8, s15, 3\ns_add_u32 s8, s8, {j}\ns_and_b32 s9, s8, 1\ns_lshl_b32 s9, s9, 5\ns_lshr_b32 s8, s8, 1\ns_lshl_b32 s8, s8, 10\ns_add_u32 s8, s8, {WS_[0]}')
        a(f'v_xor_b32 v{TR+j}, s9, v{t2}\nv_add_u32 v{TR+j}, s8, v{TR+j}')
    a(f's_lshl_b32 s8, s13, 2\nv_add_u32 v{vP}, s8, v2')
    a(f'v_lshlrev_b32 v{vL16}, 4, v1')
    a(f's_lshl_b32 s8, {sRB}, 1\ns_add_u32 s8, s8, s14\ns_mul_i32 s76, s8, {2*HROW}\ns_add_u32 s76, s76, {HB}')
    a(f's_lshl_b32 s8, s8, 5\ns_lshl_b32 s9, {sCG}, 1\ns_add_u32 s9, s9, s15\ns_add_u32 s8, s8, s9\ns_lshl_b32 s8, s8, 7\ns_add_u32 s78, s8, {HFL}')
    a(f's_mul_i32 s9, s9, 3072\ns_add_u32 s76, s76, s9\ns_add_u32 s77, s76, {HROW}')
    a(f'v_and_b32 v{t1}, 1, v1\nv_cmp_eq_u32 vcc, v{t0}, v{t1}\nv_mov_b32 v{t1}, 0x3f803f80\nv_cndmask_b32 v{t0}, 0, v{t1}, vcc')
    a(f's_bfe_u32 s11, {sRB}, 0x10002\ns_cmp_eq_u32 s11, 0\ns_cselect_b32 s10, -1, 0\ns_cselect_b32 s11, 0, -1')
    for r in range(4): a(f'v_and_b32 v{SEL+r}, s10, v{t0}')
    a('s_waitcnt lgkmcnt(0)\ns_barrier')
    a(f's_add_u32 {sTAG}, {sTAG}, 1')
    a(f's_add_u32 s8, {sTY}, s15\ns_cmp_ge_u32 s8, 2\ns_cselect_b32 s8, {sTY}, 0\ns_cmp_lg_u32 s8, 0\ns_cbranch_scc1 L_Gskip')
    ool('L_Gskip:')
    ool(f's_xor_b32 s8, s14, 1\nv_mov_b32 v{t1}, s8\ns_mov_b64 exec, 1')
    ool(f'ds_add_u32 v2, v{t1} offset:{CSREADY}')
    ool('s_mov_b64 exec, -1')
    ool(f's_cmp_eq_u32 {sTY}, 2\ns_cbranch_scc1 L_Gepi')
    for r in range(72,76): ool(f'v_mov_b32 v{r}, 0')
    ool('s_sub_u32 s76, s76, 1024\ns_sub_u32 s77, s77, 1024')
    for sb_ in ('s76','s77'):
        for o in (0,1024): ool(f'buffer_store_dwordx4 v[72:75], v{vL16}, {sWs}, {sb_} offen offset:{o} sc1')
    ool('s_branch L_Gepi')
    def chk(val, off=WFULL):
        if ABL&16: val=0
        S=lab('gs'); R=lab('gr')
        a(f's_cmp_lt_u32 s4, {val}\ns_cbranch_scc1 {S}')
        a(f'{R}:')
        ool(f'{S}:')
        poll_lds(ool, 2, off, val, vT, sleep=0)
        ool(f's_branch {R}')
    def rd_flag(off=WFULL): return a.ds(f'ds_read_b32 v{vT}, v2 offset:{off}')
    def get_flag(rd):
        a.wait_lg(rd); a(f'v_readfirstlane_b32 s4, v{vT}')
    def prog(v):
        a(f'v_mov_b32 v{t1}, {v}')
        a.ds(f'ds_write_b32 v{vP}, v{t1} offset:{PROG}')
    fr={}
    def rdx(ks,tt):
        fr[ks,'x',tt]=a.ds(f'ds_read_b128 {P4(FX(ks&1,tt))}, v{XR+(ks&3)} offset:{4096*tt}')
    def rdw(ks,j):
        for n in range(2): fr[ks,'w',j]=a.ds(f'ds_read_b64_tr_b16 {P2(FW(ks&1,j)+2*n)}, v{TR+j} offset:{(ks&1)*3072+256*n}')
    def addc(regs_, d):
        op='v_add_u32' if d>0 else 'v_subrev_u32'
        for x in regs_: a(f'{op} v{x}, {abs(d)}, v{x}')
    def adv(regs_, r):
        if r<7: addc(regs_, XS[(r+1)&3]-XS[r&3])
    def advw(H):
        if H<15: addc([TR,TR+1,TR+2], WS_[(H+1)%5]-WS_[H%5])
    vC1=[16,17]; vQ=[18,19]; vM=[20,22]; CSF=24
    if not ABL&64: poll_lds(a, 2, WFULL, 2, vT, sleep=1)
    if not TAIL: stamp(a,1)
    for ks in range(2):
        rdx(ks,0); rdw(ks,0); rdw(ks,1); rdw(ks,2); rdx(ks,1); adv([XR+ks],0)
    fl=rd_flag()
    for ks in range(32):
        r=ks>>2; kk=ks&3; par=ks&1; k2=ks+2
        for n,(tt,j) in enumerate([(tt,j) for tt in range(2) for j in range(3)]):
            a.wait_lg(max(fr[ks,'x',tt], fr[ks,'w',j]))
            d=P16(ACC(tt,j))
            a(f'v_mfma_f32_32x32x16_bf16 {d}, {P4(FW(par,j))}, {P4(FX(par,tt))}, {"0" if ks==0 else d}')
            if r<2 and tt==1:
                c=P4(CA(j))
                a(f'v_mfma_f32_16x16x32_bf16 {c}, {P4(SEL)}, {P4(FW(par,j))}, {"0" if ks==0 else c}')
            if not (ks&1) and n==0: prog((ks>>1)+1)
            if k2<32:
                if not (ks&1):
                    if n==0: get_flag(fl)
                    if n==1: chk(ks+4)
                    if n==2: advw(ks>>1)
                elif n==0 and ks<29: fl=rd_flag()
                if n==2: rdx(k2,0)
                if n>=3: rdw(k2,n-3)
                if n==5: rdx(k2,1)
            if n==1 and ks>=1 and ks+1<32: adv([XR+((ks+1)&3)], (ks+1)>>2)
            if not ABL&1:
                if ks==29 and n==3: fl=rd_flag(STREADY)
                if ks==29 and n==1: a(f'v_and_b32 v{t0}, 31, v1\ns_lshl_b32 s8, s14, 8\ns_add_u32 s8, s8, {STL}\nv_lshl_add_u32 v{t2}, v{t0}, 2, s8')
                if ks==30 and n==1: get_flag(fl)
                if ks==30 and n==2:
                    chk(1,STREADY)
                    a.ds(f'ds_read2_b32 v[30:31], v{t2} offset0:0 offset1:32')
                    a(f's_mul_i32 s8, s15, 768\ns_add_u32 s8, s8, {CSA}\nv_lshl_add_u32 v{t0}, v{t0}, 3, s8')
                if ks==30 and n==3:
                    for jj in range(3): cs=a.ds(f'ds_read_b64 {P2(CSF+2*jj)}, v{t0} offset:{256*jj}')
                    a('v_cmp_gt_u32 vcc, 32, v1')
                if ks==31 and n in (0,2):
                    z=n>>1; s_=30+z
                    if n==0: a.wait_lg(cs)
                    a(f'v_and_b32 v{vQ[z]}, 0xffff0000, v{s_}\nv_and_b32 v{s_}, 0xffff, v{s_}\nv_xor_b32 v{s_}, 0x8000, v{s_}\nv_rcp_f32 v{vC1[z]}, v{vQ[z]}')
                if ks==31 and n in (1,3):
                    z=n>>1; s_=30+z
                    a(f'v_lshl_or_b32 v{vM[z]}, v{s_}, 16, v{s_}\nv_cndmask_b32 v{vM[z]+1}, 0, v{s_}, vcc\nv_cndmask_b32 v{vM[z]}, 0, v{vM[z]}, vcc\nv_mul_f32 v{vQ[z]}, v{vQ[z]}, v{vQ[z]}\nv_mul_f32 v{vC1[z]}, 0xbfb8aa3b, v{vC1[z]}')
        if ks==3:
            for rr in range(4): a(f'v_and_b32 v{SEL+rr}, s11, v{t0}')
        if ks==8:
            L=lab('g')
            a(f's_cmp_eq_u32 s14, 1\ns_cbranch_scc1 {L}')
            a(f's_mul_i32 s8, s15, 384\ns_add_u32 s8, s8, {CSA}\nv_lshl_add_u32 v{t2}, v1, 2, s8\nv_mov_b32 v{t1}, 1')
            a('s_mov_b64 exec, 0xffff')
            for j in range(3): a(f'ds_write2_b32 v{t2}, v{CA(j)}, v{CA(j)+1} offset0:{32*j} offset1:{32*j+16}')
            a('s_mov_b64 exec, 1')
            a(f'ds_add_u32 v2, v{t1} offset:{CSREADY}')
            a('s_mov_b64 exec, -1')
            a(f'{L}:')
        if ks==7 and not TAIL: stamp(a,2)
    stamp(a,3)
    if ABL&1:
        a('L_Gepi:'); prog(17); finish(a); a.l += ool.l
        return a
    for j in range(3):
        for tt in range(2):
            d=P16(ACC(tt,j))
            a(f'v_mfma_f32_32x32x8_bf16 {d}, {P2(CSF+2*j)}, {P2(vM[tt])}, {d}')
    def epi(tt,j):
        A=ACC(tt,j); l=[]
        sel='op_sel_hi:[1,0]' if tt==0 else 'op_sel:[0,1]'
        sel3='op_sel_hi:[1,0,0]' if tt==0 else 'op_sel:[0,1,1]'
        for r in range(0,8,2): l.append(f'v_pk_mul_f32 {P2(A+8+r)}, {P2(A+r)}, {P2(A+8+r)}')
        for r in range(0,8,2): l.append(f'v_pk_mul_f32 {P2(A+r)}, {P2(A+r)}, {P2(vC1[0])} {sel}')
        for r in range(8): l.append(f'v_exp_f32 v{A+r}, v{A+r}')
        for r in range(0,8,2): l.append(f'v_pk_fma_f32 {P2(A+r)}, {P2(A+r)}, {P2(vQ[0])}, {P2(vQ[0])} {sel3}')
        for r in range(8): l.append(f'v_rcp_f32 v{A+r}, v{A+r}')
        for r in range(0,8,2): l.append(f'v_pk_mul_f32 {P2(A+8+r)}, {P2(A+8+r)}, {P2(A+r)}')
        for q in range(4): l.append(f'v_cvt_pk_bf16_f32 v{A+q}, v{A+8+2*q}, v{A+9+2*q}')
        l.append(f'buffer_store_dwordx4 {P4(A)}, v{vL16}, {sWs}, {["s76","s77"][tt]} offen offset:{1024*j} sc1')
        return l
    for j in range(3):
        if j==2: a(f's_cmp_eq_u32 {sTY}, 1\ns_cbranch_scc1 L_Gepi')
        for tt in range(2):
            for x in epi(tt,j): a(x)
    a('L_Gepi:')
    prog(17)
    stamp(a,4)
    a(f'v_lshrrev_b32 v{t2}, 5, v1\nv_bfe_u32 v{t1}, v1, 2, 2\nv_lshl_add_u32 v{t2}, v{t2}, 2, v{t1}\nv_lshlrev_b32 v{t2}, 7, v{t2}')
    a(f'v_bfe_u32 v{t1}, v1, 3, 1\nv_lshl_add_u32 v{t2}, v{t1}, 6, v{t2}\nv_bfe_u32 v{t1}, v1, 4, 1\nv_lshl_add_u32 v{t2}, v{t1}, 5, v{t2}\nv_and_b32 v{t1}, 3, v1\nv_lshl_add_u32 v{t2}, v{t1}, 3, v{t2}')
    a(f's_mul_i32 s8, s15, 22528\nv_add_u32 v{TR}, s8, v{t2}\nv_xor_b32 v{TR+1}, 64, v{TR}')
    a(f'v_mov_b32 v{t0}, {sTAG}\nv_mov_b32 v{t1}, 0')
    L=lab('g')
    a(f's_cmp_eq_u32 {sTY}, 2\ns_cbranch_scc1 {L}')
    a('s_mov_b64 exec, 1\ns_waitcnt vmcnt(0)')
    a(f'buffer_store_dword v{t0}, v{t1}, {sWs}, s78 offen sc1')
    a('s_mov_b64 exec, -1')
    a(f'{L}:')
    if TAIL: stamp(a,2)
    a(f's_lshl_b32 s8, {sXCD}, 3\ns_and_b32 s9, {sJ}, 3\ns_lshl_b32 s9, s9, 1\ns_add_u32 s8, s8, s9\ns_add_u32 s76, s8, s14')
    a(f's_mul_i32 s77, s76, {HROW}\ns_mul_i32 s8, s15, {44*1024}\ns_add_u32 s77, s77, s8\ns_add_u32 s77, s77, {HB}')
    HR=8
    WF=lambda k: (112+4*(k-8)) if 8<=k<22 else 16+4*(k&7)
    HF=lambda n: 80+4*(n%HR)
    curs=[0]
    def trw(k):
        q=k//22; kk=k%22; st=q%3
        if st!=curs[0]:
            d=(st-curs[0])*STG; op='v_add_u32' if d>0 else 'v_subrev_u32'
            a(f'{op} v{TR}, {abs(d)}, v{TR}\n{op} v{TR+1}, {abs(d)}, v{TR+1}'); curs[0]=st
        for nn in range(2):
            r_=a.ds(f'ds_read_b64_tr_b16 {P2(WF(k)+2*nn)}, v{TR+(k&1)} offset:{2048*(kk>>1)+1024*nn}')
        return r_
    poll_lds(a, 2, WFULL, 33, vT, sleep=1)
    for k in range(22): trw(k)
    prog(18)
    a(f's_add_u32 s9, s15, 14\nv_min_u32 v{t0}, s9, v1\nv_lshlrev_b32 v{t0}, 7, v{t0}')
    a(f's_lshr_b32 s8, s76, 1\ns_lshl_b32 s8, s8, 5\ns_mul_i32 s9, s15, 14\ns_add_u32 s8, s8, s9\ns_lshl_b32 s8, s8, 7\ns_add_u32 s8, s8, {HFL}')
    a('s_mov_b64 exec, 0xffff')
    poll_flags(a, t1, t0, 's8', sTAG, PSLEEP)
    a('s_mov_b64 exec, -1')
    if TAIL: stamp(a,1)
    hl={}
    def hload(n):
        if n%4==0: a(f's_add_u32 s8, s77, {1024*n}')
        hl[n]=a.vm(f'buffer_load_dwordx4 {P4(HF(n))}, v{vL16}, {sWs}, s8 offen offset:{1024*(n&3)} sc1')
    if HPF:
        a(f'v_min_u32 v{t0}, 43, v1\nv_lshlrev_b32 v{t0}, 10, v{t0}\ns_lshr_b32 s8, {sJ}, 2\ns_lshl_b32 s8, s8, 7\ns_add_u32 s9, s8, s77')
    for n in range(HR):
        hload(n)
        if HPF and n==HPF-1: a.vm(f'buffer_load_dword v9, v{t0}, {sWs}, s9 offen sc1')
    if CPRIO: a('s_setprio 0')
    a.wait_lg_all()
    AC2=lambda dq: 48+16*dq
    wf={}
    for k in range(88):
        n=k>>1
        if k%2==0: a.wait_vm(hl[n])
        if k==0: stamp(a,5)
        if k in wf: a.wait_lg(wf[k])
        d=P16(AC2(k&1))
        a(f'v_mfma_f32_32x32x16_bf16 {d}, {P4(WF(k))}, {P4(HF(n))}, {"0" if k<2 else d}')
        if k in (8,30,52): fl=rd_flag()
        if k in (14,36,58): get_flag(fl)
        if k in (15,37,59): chk(34+(k-15)//22)
        if 22<=k+6<88: wf[k+6]=trw(k+6)
        if k%2==1 and n+HR<44: hload(n+HR)
        if k+6==43: prog(19)
        if k==82: fl=rd_flag(XSREADY)
        if k==83:
            a(f'v_and_b32 v3, 31, v1\nv_bfe_u32 v{t0}, v1, 1, 3\ns_lshl_b32 s8, s15, 2\nv_xor_b32 v{t0}, s8, v{t0}\nv_lshlrev_b32 v{t0}, 4, v{t0}')
        if k==84:
            a(f'v_lshl_add_u32 v{t0}, v3, 7, v{t0}\nv_lshrrev_b32 v4, 5, v1\nv_lshl_add_u32 v{t0}, v4, 3, v{t0}\ns_lshl_b32 s8, s14, 12\ns_add_u32 s8, s8, {HREG+8192}\nv_add_u32 v6, s8, v{t0}')
        if k==85:
            a('v_xor_b32 v7, 16, v6\nv_xor_b32 v8, 32, v6\nv_xor_b32 v9, 48, v6')
            a(f's_lshl_b32 s8, s14, 6\nv_xor_b32 v5, s8, v{t2}\ns_lshl_b32 s8, s15, 12\ns_add_u32 s8, s8, {HREG}\nv_add_u32 v5, s8, v5')
        if k==86:
            get_flag(fl)
            a(f's_lshl_b32 s12, s13, 12\ns_add_u32 s12, s12, 0xc000\nv_add_u32 v{t1}, s12, v{vL16}\nv_xor_b32 v10, 0x2000, v{t1}')
    stamp(a,6)
    chk(1,XSREADY)
    for q in range(4): a.ds(f'ds_read_b64 {P2(128+2*q)}, v{6+q}')
    for q in range(4): a.ds(f'ds_read_b64_tr_b16 {P2(136+2*q)}, v5 offset:{1024*q}')
    L=lab('g'); L2=lab('g')
    a(f's_cmp_eq_u32 s15, 0\ns_cbranch_scc1 {L}')
    for q in range(4): a(f'ds_write_b128 v{t1}, {P4(48+4*q)} offset:{1024*q}')
    for r in range(0,16,2): a(f'v_pk_mov_b32 {P2(48+r)}, {P2(64+r)}, {P2(64+r)} op_sel:[0,1]')
    a(f's_branch {L2}')
    a(f'{L}:')
    a('s_nop 3')
    for q in range(4): a(f'ds_write_b128 v{t1}, {P4(64+4*q)} offset:{1024*q}')
    a(f'{L2}:')
    a.wait_lg_all()
    a('s_barrier')
    for q in range(4): a.ds(f'ds_read_b128 {P4(64+4*q)}, v10 offset:{1024*q}')
    for r in range(16):
        sx=128+(r>>1); ss=136+(r>>1)
        if r%2==0: a(f'v_lshlrev_b32 v{112+r}, 16, v{sx}\nv_lshlrev_b32 v{96+r}, 16, v{ss}')
        else: a(f'v_and_b32 v{112+r}, 0xffff0000, v{sx}\nv_and_b32 v{96+r}, 0xffff0000, v{ss}')
    a(f's_lshl_b32 s12, s13, 11\ns_add_u32 s12, s12, 0x10000\nv_lshlrev_b32 v3, 6, v3\nv_lshl_add_u32 v3, v4, 3, v3\nv_add_u32 v3, s12, v3\nv_add_u32 v4, s12, v{vL16}')
    a(f'v_lshrrev_b32 v{t0}, 2, v1\nv_and_b32 v{t1}, 3, v1\nv_lshlrev_b32 v{t1}, 4, v{t1}\nv_lshl_add_u32 v6, v{t0}, 10, v{t1}')
    a(f's_lshr_b32 s9, {sJ}, 2\ns_lshl_b32 s9, s9, 1\ns_add_u32 s9, s9, s15\ns_lshl_b32 s10, s76, 15\ns_lshl_b32 s11, s9, 6\ns_add_u32 s10, s10, s11\ns_add_u32 s11, s10, 16384')
    a('v_mov_b32 v16, 0xbfb8aa3b\nv_mov_b32 v18, 1.0')
    a.wait_lg_all()
    for r in range(0,16,2): a(f'v_pk_add_f32 {P2(48+r)}, {P2(48+r)}, {P2(64+r)}')
    for r in range(0,16,2): a(f'v_pk_mul_f32 {P2(64+r)}, {P2(48+r)}, v[16:17] op_sel_hi:[1,0]')
    for r in range(16): a(f'v_exp_f32 v{64+r}, v{64+r}')
    for r in range(0,16,2): a(f'v_pk_add_f32 {P2(64+r)}, {P2(64+r)}, v[18:19] op_sel_hi:[1,0]')
    for r in range(0,16,2): a(f'v_pk_mul_f32 {P2(48+r)}, {P2(48+r)}, {P2(96+r)}')
    for r in range(16): a(f'v_rcp_f32 v{64+r}, v{64+r}')
    for r in range(0,16,2): a(f'v_pk_fma_f32 {P2(64+r)}, {P2(48+r)}, {P2(64+r)}, {P2(112+r)}')
    for q in range(8): a(f'v_cvt_pk_bf16_f32 v{48+q}, v{64+2*q}, v{65+2*q}')
    for q in range(4): a(f'ds_write_b64 v3, {P2(48+2*q)} offset:{16*q}')
    a('ds_read_b128 v[56:59], v4\nds_read_b128 v[60:63], v4 offset:1024')
    a('s_waitcnt lgkmcnt(1)')
    a(f'buffer_store_dwordx4 v[56:59], v6, {sOut}, s10 offen {OUTSC}')
    a('s_waitcnt lgkmcnt(0)')
    a(f'buffer_store_dwordx4 v[60:63], v6, {sOut}, s11 offen {OUTSC}')
    L=lab('g')
    a(f's_lshl_b32 s8, s2, 4\ns_add_u32 s8, s8, s13\ns_cmp_lg_u32 s8, 0\ns_cbranch_scc1 {L}')
    a(f'v_mov_b32 v{t0}, {sTAG}\nv_mov_b32 v{t1}, {EPOCH}\ns_mov_b64 exec, 1')
    a(f'buffer_store_dword v{t0}, v{t1}, {sWs}, 0 offen')
    a('s_mov_b64 exec, -1')
    a(f'{L}:')
    if SPIN:
        if PROF:
            if PROF==7:
                a('s_waitcnt vmcnt(0)\ns_memrealtime s[84:85]\ns_waitcnt lgkmcnt(0)')
            a(f's_cmp_lg_u32 s2, {PWG}\ns_cbranch_scc1 Lnospin\ns_cmp_lg_u32 s13, 0\ns_cbranch_scc1 Lnospin')
            a('s_sub_u32 s84, s84, s80\ns_lshl_b32 s84, s84, 2\ns_add_u32 s84, s84, 3000')
        else: a(f's_mov_b32 s84, {SPIN*100}')
        a('Lspin:')
        a('s_memrealtime s[82:83]\ns_waitcnt lgkmcnt(0)\ns_sub_u32 s82, s82, s80\ns_cmp_lt_u32 s82, s84\ns_cbranch_scc1 Lspin')
        a('Lnospin:')
    if STAMPS:
        a('s_waitcnt vmcnt(0)')
        stamp(a,7)
    finish(a)
    a.l += ool.l
    return a

main = Asm()
prologue(main)
parts = [main, wave_B(), wave_A(), wave_H(), wave_G()]
lines=[]; tot=0
for p in parts:
    l, added = hazard_pass(p.l, verbose='--vpad' in sys.argv)
    tot+=added
    lines += l
lines += ['L_exit:', 's_endpgm', 'L_end:']
body = Asm(); body.l = lines
k = kernel_text(KN, body.text(), vgpr=168, sgpr=100)
open(OUT,'w').write(file_text([(KN,256,640,163840)],[k], single=True))
print('nop states added', tot, 'lines', len(lines))
```

```python
import sys, math
from asmlib import *

def opt(name, default):
    for x in sys.argv:
        if x.startswith(f'--{name}='): return int(x.split('=')[1])
    return default
STAMPS = '--stamps' in sys.argv
TAIL = '--tail' in sys.argv
TIMER = 's_memtime' if '--clk' in sys.argv else 's_memrealtime'
SPIN = opt('spin', 0)
PROF = opt('prof', 0)
PWG = opt('pwg', 37)
if PROF: SPIN=30
ABL = opt('abl', 0)
LAG = opt('lag', 30); LAG2 = opt('lag2', 44)
GAT = opt('gat', 13)
Q3AT = opt('q3at', 10)
WDT = opt('wdt', 4)
WLT = opt('wlt', 4)
RL = opt('rl', 5); Q3N = opt('q3n', 8)
STAG = opt('stag', 4)
SEQ = opt('seq', 1)
T23 = opt('t23', 0); NPF = opt('npf', 2)
PSLEEP = opt('psleep', 2)
CSM = opt('csm', 0)
ROTX = opt('rotx', 2)
WPF = opt('wpf', 0)
WPF0 = opt('wpf0', 1)
WMODE = opt('wmode', 1)
GAP = opt('gap', 1)
GAP2 = opt('gap2', 2)
BSL = opt('bsl', 1)
BPRIO = opt('bprio', 2)
FLAT = opt('flat', 1)
CPRIO = opt('cprio', 1)
STAT = opt('stat', 4)
SPOLL = opt('spoll', 19)
HRR = opt('hr', 8)
IDLEAT = opt('idleat', 30)
HPF = opt('hpf', 0)
OUTSC = 'sc1' if opt('outsc', 0) else ''
OUT = [x for x in sys.argv[1:] if not x.startswith('--')][0]

EPOCH=0; XF=0x8000; CF=0x8400; STATS=0x10000; CSUM=0x20000; HFL=0x60000; SFL=0xA0000; XNT=0x100000; HB=0x800000; SB=0xE00000; STAMP=0xF000000
HROW=88*1024
STG=45056
XS=[0,16384,STG+24576,2*STG+24576]
WS_=[2*STG+12288,32768,STG,STG+12288,2*STG]
HREG=135168
KB0=HREG; KBS=8448
UB=HREG+16896
CSA=HREG+26112; STL=CSA+1536; SYNC=STL+512
WFULL=0; PROG=16; STREADY=32; UREADY=36; KREADY=40; CDONE=48; CXCH=64; CFIN=80; CSREADY=84; ISSUED=88; XSREADY=92; KX=96; WDISS=104; Q3DONE=108; IDONE=112
LOG2E=0x3fb8aa3b
sX='s[44:47]'; sWg='s[48:51]'; sWu='s[52:55]'; sWd='s[56:59]'; sOut='s[60:63]'; sWs='s[64:67]'
sTAG='s68'; sXCD='s69'; sJ='s70'; sRB='s71'; sCG='s72'; sU0='s73'; sTY='s74'; sP='s75'; sWV='s3'
WA_, WB_, WG_ = 4, 5, 8
uid=[0]
def lab(p):
    uid[0]+=1; return f'L{p}{uid[0]}'
P2=lambda r: f'v[{r}:{r+1}]'
P4=lambda r: f'v[{r}:{r+3}]'
P16=lambda r: f'v[{r}:{r+15}]'

def stamp(a, k):
    if PROF and getattr(a,'isG',False) and k==PROF:
        a('s_memrealtime s[84:85]'); a.wait_lg_all()
    if not STAMPS: return
    a(f'{TIMER} s[{80+2*k}:{81+2*k}]')
    a.wait_lg_all()
def finish(a):
    if STAMPS:
        a('s_mov_b64 exec, 1')
        a(f's_lshl_b32 s4, {sWV}, 3')
        for k in range(8):
            a(f's_add_u32 s5, s4, {k}\ns_lshl_b32 s5, s5, 11\ns_lshl_b32 s6, s2, 3\ns_add_u32 s5, s5, s6\ns_add_u32 s5, s5, {STAMP}')
            a(f'v_mov_b32 v4, s{80+2*k}\nv_mov_b32 v5, s{81+2*k}\nv_mov_b32 v3, 0')
            a(f'buffer_store_dwordx2 v[4:5], v3, {sWs}, s5 offen')
        a('s_waitcnt vmcnt(0)')
    a('s_endpgm')

def poll_lds(a, vaddr, off, val, vt, sleep=1, min4=False):
    L=lab('p'); E=lab('pe')
    a('s_mov_b32 s5, 0x8000')
    a(f'{L}:')
    if min4:
        a(f'ds_read_b128 {P4(vt)}, v{vaddr} offset:{off}')
        a('s_waitcnt lgkmcnt(0)')
        a(f'v_min3_u32 v{vt}, v{vt}, v{vt+1}, v{vt+2}\nv_min_u32 v{vt}, v{vt}, v{vt+3}')
    else:
        a(f'ds_read_b32 v{vt}, v{vaddr} offset:{off}')
        a('s_waitcnt lgkmcnt(0)')
    a(f'v_readfirstlane_b32 s4, v{vt}')
    a(f's_cmp_ge_u32 s4, {val}\ns_cbranch_scc1 {E}')
    if sleep: a(f's_sleep {sleep}')
    a(f's_sub_u32 s5, s5, 1\ns_cmp_lg_u32 s5, 0\ns_cbranch_scc1 {L}')
    a(f'{E}:')
    a.lg_done = a.lg_issued

def poll_flags(a, vdst, vaddr, soff, stag, sleep):
    L=lab('f'); E=lab('fe')
    a('s_mov_b32 s5, 0x4000')
    a(f'{L}:')
    a(f'buffer_load_dword v{vdst}, v{vaddr}, {sWs}, {soff} offen sc1')
    a('s_waitcnt vmcnt(0)')
    a(f'v_cmp_ne_u32 vcc, {stag}, v{vdst}')
    a(f's_cbranch_vccz {E}')
    a(f's_sleep {sleep}\ns_sub_u32 s5, s5, 1\ns_cmp_lg_u32 s5, 0\ns_cbranch_scc1 {L}')
    a(f'{E}:')
    a.vm_done = a.vm_issued

def signal(a, vaddr, off, val, vt):
    if vaddr==2: vaddr=0
    a(f'v_mov_b32 v{vt}, {val}')
    a.ds(f'ds_write_b32 v{vaddr}, v{vt} offset:{off}')

XD=8; WA=12; DA=16
def prologue(a):
    a('s_cmp_ge_u32 s2, 256\ns_cbranch_scc1 L_exit')
    a('s_load_dwordx16 s[16:31], s[0:1], 0')
    a('s_load_dwordx8 s[32:39], s[0:1], 64')
    a('s_load_dwordx4 s[40:43], s[0:1], 96')
    if STAMPS or SPIN: a(f'{TIMER} s[80:81]')
    a('v_lshrrev_b32 v2, 6, v0')
    a('v_and_b32 v1, 63, v0')
    a(f'v_readfirstlane_b32 {sWV}, v2')
    a(f's_and_b32 {sXCD}, s2, 7\ns_lshr_b32 {sJ}, s2, 3')
    if opt('maxj',0): a(f's_cmp_ge_u32 {sJ}, {opt("maxj",0)}\ns_cbranch_scc1 L_exit')
    if opt('maxx',0): a(f's_cmp_ge_u32 {sXCD}, {opt("maxx",0)}\ns_cbranch_scc1 L_exit')
    a(f'v_mov_b32 v2, {SYNC}')
    if WMODE: a(f'v_lshl_add_u32 v0, v1, 18, v2')
    else: a('v_mov_b32 v0, v2')
    a(f's_cmp_lg_u32 {sWV}, 0\ns_cbranch_scc1 L_pfdone')
    a('s_getpc_b64 s[4:5]')
    a('L_pc:')
    a(f'v_and_b32 v3, 15, v1\nv_lshlrev_b32 v3, 5, v3\nv_add_u32 v3, {sJ}, v3\nv_lshlrev_b32 v3, 7, v3')
    a('v_min_u32 v3, L_end-L_pc-4, v3')
    a('global_load_dword v167, v3, s[4:5]')
    a('v_lshl_add_u32 v3, v1, 2, v2\nv_mov_b32 v4, 0\nds_write_b32 v3, v4')
    a('L_pfdone:')
    a(f's_and_b32 s4, {sXCD}, 3\ns_mul_i32 s5, s4, 28\ns_add_u32 s5, s5, {sJ}')
    a(f's_lshl_b32 s6, s4, 1\ns_add_u32 s6, s6, {sJ}\ns_add_u32 s6, s6, {112-28}')
    a(f's_cmp_lt_u32 {sJ}, 28\ns_cselect_b32 s5, s5, s6\ns_cselect_b32 {sTY}, 0, 1')
    a(f's_cmp_lt_u32 {sJ}, 30\ns_cselect_b32 {sTY}, {sTY}, 2\ns_cselect_b32 s5, s5, 112')
    a(f's_lshr_b32 {sCG}, s5, 3\ns_and_b32 s5, s5, 7\ns_lshr_b32 s4, {sXCD}, 2\ns_lshl_b32 s4, s4, 3\ns_add_u32 {sRB}, s4, s5')
    a(f's_mul_i32 {sU0}, {sCG}, 3')
    a(f's_lshl_b32 s4, {sXCD}, 5\ns_add_u32 {sP}, s4, {sJ}')
    for r, sz in [(44,2097152),(48,1409024),(52,1409024),(56,1409024),(60,2097152),(64,0x10000000)]:
        a(f's_mov_b32 s{r+2}, {sz}\ns_mov_b32 s{r+3}, 0x20000')
    a('v_lshrrev_b32 v3, 3, v1\nv_lshlrev_b32 v3, 10, v3\nv_and_b32 v4, 7, v1\nv_lshrrev_b32 v5, 4, v1\nv_xor_b32 v5, v4, v5')
    a(f'v_lshl_add_u32 v{XD}, v5, 4, v3\nv_xor_b32 v{XD+1}, 64, v{XD}\nv_add_u32 v{XD+1}, 7168, v{XD+1}\nv_add_u32 v{XD+2}, {2*7168}, v{XD}\nv_add_u32 v{XD+3}, {2*7168}, v{XD+1}')
    a(f'v_bfe_u32 v5, v1, 4, 1\nv_lshlrev_b32 v5, 2, v5\nv_xor_b32 v4, v4, v5\nv_lshl_add_u32 v{DA}, v4, 4, v3')
    a(f'v_lshrrev_b32 v6, 2, v1\nv_mul_u32_u24 v6, 2752, v6\nv_and_b32 v7, 3, v1\nv_lshl_add_u32 v{WA}, v7, 4, v6\nv_xor_b32 v7, 2, v7\nv_lshl_add_u32 v{WA+1}, v7, 4, v6')
    a(f's_lshl_b32 s6, {sRB}, 17\ns_lshl_b32 s7, {sU0}, 6')
    a(f's_and_b32 s14, {sWV}, 1\ns_lshr_b32 s15, {sWV}, 1')
    a(f's_lshl_b32 s4, {sP}, 1\ns_add_u32 s4, s4, s14\ns_lshl_b32 s4, s4, 8\ns_lshl_b32 s5, s15, 7\ns_add_u32 s4, s4, s5\nv_lshl_add_u32 v3, v1, 1, s4')
    a('v_lshlrev_b32 v5, 4, v1')
    a(f's_lshl_b32 s13, {sP}, 13\ns_mov_b32 m0, {UB}')
    a('s_waitcnt lgkmcnt(0)')
    for r, b in [(44,16),(48,32),(52,34),(56,36),(60,38),(64,42)]:
        a(f's_mov_b64 s[{r}:{r+1}], s[{b}:{b+1}]')
    a(f's_cmp_eq_u32 {sWV}, {WB_}\ns_cbranch_scc1 L_B0')
    a(f's_cmp_ge_u32 {sWV}, {WA_}\ns_cbranch_scc1 L_notH')
    for i in range(4): a(f'global_load_ushort v{24+i}, v3, s[{18+2*i}:{19+2*i}]')
    a(f's_lshl_b32 s4, {sP}, 2')
    a(f's_load_dword {sTAG}, s[42:43], {EPOCH}\ns_load_dword s76, s[26:27], s4\ns_load_dword s77, s[28:29], s4')
    a('s_branch L_H')
    a('L_notH:')
    a(f's_cmp_eq_u32 {sWV}, {WB_+1}\ns_cbranch_scc1 L_B1')
    a(f's_cmp_eq_u32 {sWV}, {WB_+2}\ns_cbranch_scc1 L_B2')
    a(f's_load_dword {sTAG}, s[42:43], {EPOCH}')
    a(f's_cmp_gt_u32 {sWV}, {WA_}\ns_cbranch_scc1 L_G')
    for r in range(8):
        a(f'buffer_load_dwordx4 v5, {sX}, s13 offen lds')
        if r<7: a(f's_mov_b32 m0, {UB+1056*(r+1)}\ns_add_u32 s13, s13, 1024')
    a('s_branch L_A')

def wave_B(l):
    a = Asm(); ool=Asm()
    a(f'L_B{l}:')
    if ABL&64: a('s_endpgm')
    a(f's_setprio {BPRIO}')
    R3=32; q3=list(range(15*l, min(44,15*l+15))); q3n=[0]
    def free(v, sl=1): poll_lds(a, 2, PROG, v, 20, sleep=sl, min4=True)
    def q3load(t):
        n=q3[q3n[0]]
        t(f's_add_u32 s14, s9, {(3*176+(n//22)*704+8*(n%22))*1024}')
        t(f'buffer_load_dwordx4 {P4(R3+4*q3n[0])}, v{DA}, {sWd}, s14 offen')
        q3n[0]+=1
    def wd_addr(t):
        for i in range(1,4): t(f'v_add_u32 v{DA+i}, {i*7168}, v{DA}')
        t(f's_lshr_b32 s9, {sJ}, 2\ns_lshl_b32 s9, s9, 7')
    a(f's_cmp_eq_u32 {sTY}, 2\ns_cbranch_scc1 L_Bq{l}')
    ool(f'L_Bq{l}:')
    wd_addr(ool)
    ool('s_barrier')
    poll_lds(ool, 2, IDONE, 4, 20, sleep=8)
    IDLE_TAIL=f'v_mov_b32 v24, 16\nds_write_b32 v0, v24 offset:{WFULL+4*l}\nv_mov_b32 v24, 1\nds_write_b32 v0, v24 offset:{ISSUED}'
    def xins(r,g,i,setm):
        if setm: a(f's_mov_b32 m0, {XS[r&3]+4096*g}\ns_add_u32 s15, s6, {g*32768+128*r}')
        a(f'buffer_load_dwordx4 v{XD+i}, {sX}, s15 offen offset:{1024*i} lds')
    if l:
        wd_addr(a); a('s_barrier')
        if STAG: a(f's_sleep {STAG*(l-1)+1}')
    for H in range(l,16,3):
        hf=H&1; wb=WS_[H%5]; rx=(H+1)>>1
        if H>=5 and not ABL&32: free(H-4, BSL)
        if H==0:
            for g in range(4):
                for i in range(4): xins(0,g,i,i==0)
        for k2 in range(2):
            ks=2*hf+k2
            for m in range(2):
                if 0<H<15:
                    g=(0 if hf else 2)+k2
                    xins(rx,g,2*m,True); xins(rx,g,2*m+1,False)
                    if GAP==4: a(f'buffer_load_dword v29, off, {sX}, s15')
                for u in range(3):
                    a(f's_mov_b32 m0, {wb+m*6144+k2*3072+u*1024-64*u}')
                    if m==0 and u==0: a(f's_add_u32 s8, s7, {(2*H+k2)*16*2752}')
                    a(f'buffer_load_dwordx4 v{WA+m}, {[sWg,sWu][m]}, s8 offen offset:{64*u} lds')
                if GAP in (1,4): a(f'buffer_load_dword v29, off, {sWg}, s8')
                if GAP==2: a(f'buffer_load_dwordx4 v[28:31], v{WA+m}, {[sWg,sWu][m]}, s8 offen offset:{64*u}')
                if GAP==3: a(f'buffer_load_dwordx4 v[28:31], off, {sWg}, s8')
            if H==0 and k2==0:
                wd_addr(a); a('s_barrier')
        if H==15: signal(a,2,ISSUED,1,25)
        nq=0
        if H==WDT:
            a('s_mul_i32 s14, s2, 5888\nv_min_u32 v26, 45, v1\nv_lshlrev_b32 v26, 7, v26')
            a(f'buffer_load_dword v28, v26, {sWd}, s14 offen'); nq+=1
        if H==WLT:
            nl=(8-RL)*1376; per=-(-nl//240)
            a(f's_mul_i32 s14, s2, {per*128}\ns_add_u32 s14, s14, {RL*64*2752}\nv_min_u32 v26, {per-1}, v1\nv_lshlrev_b32 v26, 7, v26')
            a(f'buffer_load_dword v28, v26, {sWg}, s14 offen\nbuffer_load_dword v28, v26, {sWu}, s14 offen'); nq+=2
        if H>=Q3AT:
            while q3n[0]<len(q3) and nq<Q3N: q3load(a); nq+=1
        a(f's_waitcnt vmcnt({nq})')
        if H==0 or not ABL&2048: signal(a,2,WFULL+4*l,H+1,24)
        if ABL&32: a('s_sleep 3')
        if H<3 and not TAIL: stamp(a,1)
        if 3<=H<6 and not TAIL: stamp(a,2)
    nst=q3n[0]; q3n[0]=0
    while q3n[0]<nst: q3load(ool)
    ool('s_waitcnt vmcnt(0)')
    ool(IDLE_TAIL)
    ool(f's_branch L_Bwd{l}')
    a(f'L_Bwd{l}:')
    stamp(a,3)
    if ABL&1:
        finish(a); a.l += ool.l; return a
    a('s_setprio 1')
    if l: poll_lds(a, 2, ISSUED, 1, 20, sleep=1)
    if T23:
        a(f'v_lshlrev_b32 v26, 7, v1')
        for i in ([0,3],[1,4],[2])[l]:
            a(f's_add_u32 s11, {sJ}, {32*i}\ns_min_u32 s11, s11, 131\ns_add_u32 s12, s11, 22\ns_cmp_lt_u32 s11, 66\ns_cselect_b32 s11, s11, s12\ns_lshl_b32 s11, s11, 13')
            a(f'buffer_load_dword v28, v26, {sWd}, s11 offen')
    q=[2,0,1][l]
    st=q*STG
    free({0:12,1:14,2:16}[q])
    if q and SEQ: poll_lds(a, 2, WDISS, q, 20, sleep=1)
    for kh in range(2):
        for i in range(22):
            if i%4==0:
                a(f's_mov_b32 m0, {st+kh*22528+1024*i}\ns_add_u32 s8, s9, {(q*176+kh*704+8*i)*1024}')
            a(f'buffer_load_dwordx4 v{DA+(i&3)}, {sWd}, s8 offen offset:{1024*(i&3)} lds')
            if GAP2 and i%GAP2==GAP2-1: a(f'buffer_load_dword v29, off, {sWd}, s8')
            if LAG2<44 and i%4==3: a(f's_waitcnt vmcnt({LAG2})')
    if q<2 and SEQ: signal(a,2,WDISS,q+1,25)
    nq=len(q3)-q3n[0]
    while q3n[0]<len(q3): q3load(a)
    if TAIL: stamp(a,1)
    a(f's_waitcnt vmcnt({nq})')
    signal(a,2,WFULL+4*l,20,24)
    stamp(a,4)
    free(18)
    a('s_waitcnt vmcnt(0)')
    for k,n in enumerate(q3): a.ds(f'ds_write_b128 v5, {P4(R3+4*k)} offset:{1024*n}')
    a(f'v_mov_b32 v24, 1\ns_mov_b64 exec, 1\nds_add_u32 v2, v24 offset:{Q3DONE}')
    a.wait_lg_all()
    stamp(a,5)
    finish(a)
    a.l += ool.l
    return a

def wave_Gidle():
    a = Asm(); a.isG=True
    a('L_Gidle:')
    a(f's_sub_u32 s13, {sWV}, {WG_}\ns_and_b32 s11, {sJ}, 1')
    a('s_cmp_eq_u32 s11, 0\ns_cselect_b32 s48, s48, s52\ns_cselect_b32 s49, s49, s53')
    a('s_mul_i32 s8, s13, 58\nv_min_u32 v26, 57, v1\nv_add_u32 v26, s8, v26\nv_mul_u32_u24 v27, 12, v26')
    a(f's_mul_i32 s12, {sXCD}, 5504')
    NF=opt('nf',16); RB=48; AC=32; TMP=40
    a(f's_add_u32 s8, s12, {2*44032}')
    def issue(k):
        a(f'buffer_load_dwordx3 v[{RB+4*k}:{RB+4*k+2}], v27, {sWg}, s8 offen offset:{2752*(k&1)}')
        if k&1: a(f's_add_u32 s8, s8, 44032\ns_cmp_ge_u32 s8, {32*44032}\ns_cselect_b32 s8, s12, s8')
    for k in range(NF):
        issue(k)
        if k==5: a('s_waitcnt lgkmcnt(0)\ns_barrier')
    for r in range(6): a(f'v_mov_b32 v{AC+r}, 0')
    def consume(k, nxt):
        src=RB+4*k
        for q in range(3): a(f'v_lshlrev_b32 v{TMP+2*q}, 16, v{src+q}\nv_and_b32 v{TMP+2*q+1}, 0xffff0000, v{src+q}')
        if nxt: issue(k)
        for q in range(3): a(f'v_pk_add_f32 {P2(AC+2*q)}, {P2(AC+2*q)}, {P2(TMP+2*q)}')
    assert 64%NF==0
    a(f's_mov_b32 s14, {64//NF-1}')
    a('L_Gi1:')
    for k in range(NF):
        a(f's_waitcnt vmcnt({NF-1})'); consume(k,True)
    a('s_sub_u32 s14, s14, 1\ns_cmp_lg_u32 s14, 0\ns_cbranch_scc1 L_Gi1')
    for k in range(NF):
        a(f's_waitcnt vmcnt({NF-1-k})'); consume(k,False)
    stamp(a,3)
    a(f's_add_u32 s9, {sTAG}, 1')
    a(f'v_mov_b32 v40, v{AC}\nv_mov_b32 v41, v{AC+1}\nv_mov_b32 v42, v{AC+2}\nv_mov_b32 v43, s9\nv_mov_b32 v44, v{AC+3}\nv_mov_b32 v45, v{AC+4}\nv_mov_b32 v46, v{AC+5}\nv_mov_b32 v47, s9')
    a(f's_lshl_b32 s8, s11, 3\ns_add_u32 s8, s8, {sXCD}\ns_lshl_b32 s9, s8, 13\ns_add_u32 s9, s9, {CSUM}\nv_lshlrev_b32 v26, 5, v26')
    a(f'buffer_store_dwordx4 v[40:43], v26, {sWs}, s9 offen sc1\nbuffer_store_dwordx4 v[44:47], v26, {sWs}, s9 offen offset:16 sc1')
    a(f'v_mov_b32 v24, 1\ns_mov_b64 exec, 1\nds_add_u32 v2, v24 offset:{IDONE}\ns_mov_b64 exec, -1')
    a('s_branch L_Gset')
    return a

def wave_A():
    a = Asm()
    a('L_A:')
    if ABL&4: a('s_endpgm')
    a('s_setprio 2')
    SF=64; ST=96; ONE=20; D1=24; D2=28
    a(f'v_and_b32 v3, 3, v1\nv_lshlrev_b32 v3, 7, v3\nv_bfe_u32 v4, v1, 2, 1\nv_mul_u32_u24 v4, {SFL-HFL}, v4\nv_add_u32 v3, v3, v4')
    a(f's_lshl_b32 s6, s2, 9\ns_add_u32 s6, s6, {HFL}')
    a(f'buffer_load_dword v60, v3, {sWs}, s6 offen sc1')
    a('v_lshrrev_b32 v4, 4, v1')
    a(f'v_and_b32 v3, 7, v1\nv_mul_u32_u24 v3, 1056, v3\nv_bfe_u32 v6, v1, 3, 1\nv_lshl_add_u32 v3, v6, 9, v3\nv_lshl_add_u32 v3, v4, 4, v3\nv_add_u32 v3, {UB}, v3')
    a(f'v_bfe_u32 v6, v1, 2, 2\nv_cmp_eq_u32 s[14:15], v4, v6\nv_mul_u32_u24 v6, 1056, v6\nv_lshl_add_u32 v6, v4, 5, v6\nv_and_b32 v7, 3, v1\nv_lshl_add_u32 v6, v7, 3, v6\nv_add_u32 v6, {UB}, v6')
    a('v_cmp_eq_u32 s[8:9], 1, v7\nv_cmp_eq_u32 s[10:11], 2, v7\nv_cmp_eq_u32 s[12:13], 3, v7')
    for r in range(4): a(f'v_mov_b32 v{ONE+r}, 0x3f803f80')
    a('s_waitcnt lgkmcnt(0)\ns_barrier')
    a(f's_add_u32 {sTAG}, {sTAG}, 1')
    a('s_waitcnt vmcnt(1)')
    stamp(a,1)
    ld=[a.ds(f'ds_read_b128 {P4(SF+4*ks)}, v3 offset:{64*ks}') for ks in range(8)]
    for ks in range(8):
        a.wait_lg(ld[ks])
        f=P4(SF+4*ks)
        a(f'v_mfma_f32_16x16x32_bf16 {P4(D1)}, {f}, {f}, {"0" if ks==0 else P4(D1)}')
        a(f'v_mfma_f32_16x16x32_bf16 {P4(D2)}, {P4(ONE)}, {f}, {"0" if ks==0 else P4(D2)}')
    for i in range(16): a.ds(f'ds_read_b64_tr_b16 {P2(ST+2*i)}, v6 offset:{128*(i>>1)+4224*(i&1)}')
    a(f'v_cndmask_b32 v56, v{D1}, v{D1+1}, s[8:9]\nv_cndmask_b32 v56, v56, v{D1+2}, s[10:11]\nv_cndmask_b32 v56, v56, v{D1+3}, s[12:13]\nv_cndmask_b32 v56, 0, v56, s[14:15]')
    a('v_mov_b32 v57, v56\nv_permlane32_swap_b32 v56, v57\nv_add_f32 v56, v56, v57')
    a('v_mov_b32 v57, v56\nv_permlane16_swap_b32 v56, v57\nv_add_f32 v56, v56, v57')
    a('v_add_f32_dpp v56, v56, v56 row_ror:8 row_mask:0xf bank_mask:0xf')
    a(f'v_add_f32_dpp v57, v{D2}, v{D2} row_ror:8 row_mask:0xf bank_mask:0xf')
    a('v_mul_f32 v57, 0x3b000000, v57')
    a('v_mul_f32 v56, 0x3b000000, v56')
    a('v_fma_f32 v56, -v57, v57, v56\nv_max_f32 v56, 0, v56')
    a('v_cvt_pk_bf16_f32 v56, v56, v56\nv_and_b32 v56, 0xffff0000, v56')
    a('v_add_f32 v56, 0x3727c5ac, v56')
    a('v_cvt_pk_bf16_f32 v56, v56, v56\nv_and_b32 v56, 0xffff0000, v56')
    a('v_sqrt_f32 v56, v56')
    a('v_cvt_pk_bf16_f32 v58, v57, v56')
    a(f'v_mov_b32 v59, {sTAG}')
    a(f's_lshl_b32 s6, {sP}, 6\ns_add_u32 s6, s6, {STATS}')
    a('v_lshlrev_b32 v7, 3, v1')
    a('s_mov_b32 s14, s6')
    a('v_and_b32 v56, 0xffff0000, v58\nv_rcp_f32 v56, v56\nv_lshlrev_b32 v57, 16, v58\nv_mul_f32 v57, v57, v56')
    for r in range(8):
        a(f'v_mov_b32_dpp v{32+r}, v56 row_newbcast:{r} row_mask:0xf bank_mask:0xf')
        a(f'v_mov_b32_dpp v{40+r}, v57 row_newbcast:{r} row_mask:0xf bank_mask:0xf')
    a(f's_lshl_b32 s6, {sP}, 13\ns_add_u32 s6, s6, {XNT}\ns_add_u32 s7, s6, 4096')
    a.wait_lg_all()
    for i in range(8):
        s0=ST+4*i
        for q in range(4): a(f'v_lshlrev_b32 v{48+2*q}, 16, v{s0+q}\nv_and_b32 v{49+2*q}, 0xffff0000, v{s0+q}')
        for e in range(8): a(f'v_fma_f32 v{48+e}, v{48+e}, v{32+e}, -v{40+e}')
        for q in range(4): a(f'v_cvt_pk_bf16_f32 v{s0+q}, v{48+2*q}, v{49+2*q}')
    if STAT:
        L=lab('a')
        a(f's_cmp_eq_u32 {sTY}, 2\ns_cbranch_scc1 {L}')
        poll_lds(a, 2, WFULL, STAT, 24, sleep=2)
        a(f'{L}:')
    for i in range(8):
        a(f'buffer_store_dwordx4 {P4(ST+4*i)}, v5, {sWs}, {"s6" if i<4 else "s7"} offen offset:{1024*(i&3)} sc1')
    a('s_mov_b64 exec, 0xff')
    a(f'buffer_store_dwordx2 v[58:59], v7, {sWs}, s14 offen sc1')
    a('s_mov_b64 exec, -1')
    stamp(a,2)
    a(f'v_add_u32 v7, {UB}, v7\nv_mov_b32 v32, 0\nv_mov_b32 v33, 0')
    a.ds('ds_write_b64 v7, v[32:33]'); a.ds('ds_write_b64 v7, v[32:33] offset:4608')
    a('s_waitcnt vmcnt(0)')
    a(f's_lshl_b32 s6, s2, 2\ns_add_u32 s6, s6, {XF}\ns_mov_b64 exec, 1')
    a(f'buffer_store_dword v59, v32, {sWs}, s6 offen sc1')
    a('s_mov_b64 exec, -1')
    stamp(a,3)
    if ABL&1: finish(a); return a
    CS=64; XG=96
    a('v_lshrrev_b32 v6, 1, v1\nv_lshlrev_b32 v34, 4, v6\nv_lshlrev_b32 v6, 13, v6\nv_and_b32 v3, 1, v1\nv_lshl_add_u32 v6, v3, 4, v6')
    a(f's_lshl_b32 s13, {sP}, 5\ns_add_u32 s13, s13, {XNT}')
    a(f'v_mul_u32_u24 v3, 4608, v3\nv_add_u32 v34, v34, v3\nv_add_u32 v34, {UB+512}, v34')
    a(f's_lshl_b32 s6, {sRB}, 10\ns_add_u32 s6, s6, {STATS}')
    a(f'v_and_b32 v30, 31, v1\nv_lshrrev_b32 v35, 5, v1\ns_cmp_eq_u32 {sTY}, 0\ns_cselect_b32 s8, 31, 10\nv_min_u32 v30, s8, v30')
    a(f'v_lshlrev_b32 v36, 16, v35\nv_lshl_add_u32 v36, v30, 4, v36')
    a(f's_lshl_b32 s7, {sCG}, 9\ns_add_u32 s7, s7, {CSUM}')
    a('v_mul_u32_u24 v30, 3, v30')
    for e in range(3):
        a(f'v_add_u32 v31, {e}, v30\nv_lshrrev_b32 v{37+e}, 4, v31\nv_lshlrev_b32 v{37+e}, 8, v{37+e}\nv_and_b32 v31, 15, v31\nv_lshl_add_u32 v{37+e}, v31, 3, v{37+e}\nv_lshl_add_u32 v{37+e}, v35, 7, v{37+e}\nv_add_u32 v{37+e}, {CSA}, v{37+e}')
    poll_lds(a, 2, WFULL+4*((GAT-1)%3), GAT, 28, sleep=2)
    L=lab('a'); E=lab('a')
    a('s_mov_b32 s12, 0x2000')
    a(f'{L}:')
    a(f's_mov_b32 s8, {XF}')
    a(f'buffer_load_dwordx4 v[52:55], v5, {sWs}, s8 offen sc1')
    a(f'buffer_load_dwordx4 v[24:27], v5, {sWs}, s6 offen sc1')
    for i in range(8):
        a(f's_add_u32 s8, s7, {i*8192}')
        a(f'buffer_load_dwordx4 {P4(CS+4*i)}, v36, {sWs}, s8 offen sc1')
    a('s_waitcnt vmcnt(0)')
    a('v_min_u32 v30, v25, v27\nv_max_u32 v31, v25, v27')
    a('v_min3_u32 v30, v30, v52, v53\nv_max3_u32 v31, v31, v52, v53\nv_min3_u32 v30, v30, v54, v55\nv_max3_u32 v31, v31, v54, v55')
    for i in range(0,8,2):
        a(f'v_min3_u32 v30, v30, v{CS+4*i+3}, v{CS+4*i+7}\nv_max3_u32 v31, v31, v{CS+4*i+3}, v{CS+4*i+7}')
    a(f'v_cmp_ne_u32 vcc, {sTAG}, v30\nv_cmp_ne_u32 s[8:9], {sTAG}, v31\ns_or_b64 vcc, vcc, s[8:9]')
    a(f's_cbranch_vccz {E}')
    a(f's_sleep 8\ns_sub_u32 s12, s12, 1\ns_cmp_lg_u32 s12, 0\ns_cbranch_scc1 {L}')
    a(f'{E}:')
    a(f'v_lshlrev_b32 v30, 3, v1\nv_add_u32 v30, {STL}, v30')
    a.ds('ds_write2_b32 v30, v24, v26 offset0:0 offset1:1')
    a('s_mov_b32 s8, 0x07060302')
    for st in (4,2,1):
        for i in range(st):
            for e in range(3): a(f'v_add_f32 v{CS+4*i+e}, v{CS+4*i+e}, v{CS+4*(i+st)+e}')
    for e in range(3):
        v=CS+e; t=48; o=40+2*e
        a(f'v_and_b32 v{t}, 0xffff0000, v{v}\nv_sub_f32 v{t+1}, v{v}, v{t}\nv_and_b32 v{t+2}, 0xffff0000, v{t+1}\nv_sub_f32 v{t+3}, v{t+1}, v{t+2}')
        a(f'v_perm_b32 v{o}, v{t+2}, v{t}, s8\nv_lshrrev_b32 v{o+1}, 16, v{t+3}')
        a.ds(f'ds_write_b64 v{37+e}, {P2(o)}')
    signal(a, 2, STREADY, 1, 31)
    stamp(a,4)
    poll_lds(a, 2, ISSUED, 1, 28, sleep=1)
    for i in range(8):
        a(f's_add_u32 s8, s13, {i*32*8192}')
        a(f'buffer_load_dwordx4 {P4(XG+4*i)}, v6, {sWs}, s8 offen sc1')
    a(f'v_lshrrev_b32 v3, 3, v1\nv_mul_u32_u24 v3, 3072, v3\nv_add_u32 v12, v3, v{DA}')
    for i in range(1,4): a(f'v_add_u32 v{12+i}, {i*(32768-1024)}, v12')
    a(f's_lshl_b32 s6, {sXCD}, 2\ns_and_b32 s7, {sJ}, 3\ns_add_u32 s6, s6, s7\ns_lshr_b32 s7, {sJ}, 2')
    a(f's_lshr_b32 s12, s6, 4\ns_lshl_b32 s12, s12, 3\ns_add_u32 s12, s12, s7\ns_lshl_b32 s12, s12, 13\ns_add_u32 s12, s12, {SFL}')
    a(f's_lshl_b32 s11, s7, 18\ns_lshl_b32 s10, s6, 7\ns_add_u32 s11, s11, s10\ns_add_u32 s11, s11, {SB}')
    a('s_lshl_b32 s10, s6, 16\ns_lshl_b32 s9, s7, 7\ns_add_u32 s10, s10, s9')
    a('v_lshlrev_b32 v27, 7, v1')
    a('s_waitcnt vmcnt(0)')
    for i in range(8): a.ds(f'ds_write_b128 v34, {P4(XG+4*i)} offset:{512*i}')
    signal(a, 2, UREADY, 1, 31)
    stamp(a,5)
    poll_lds(a, 2, CFIN, 4, 28, sleep=2)
    for g in range(2):
        a(f's_mov_b32 m0, {HREG+8192+4096*g}\ns_add_u32 s8, s10, {g*32768}')
        for i in range(4): a(f'buffer_load_dwordx4 v{XD+i}, {sX}, s8 offen offset:{1024*i} lds')
    poll_lds(a, 2, PROG, SPOLL, 20, sleep=2, min4=True)
    poll_flags(a, 28, 27, 's12', sTAG, 4)
    stamp(a,6)
    for g in range(2):
        a(f's_mov_b32 m0, {HREG+4096*g}\ns_add_u32 s8, s11, {g*131072}')
        for i in range(4): a(f'buffer_load_dwordx4 v{12+i}, {sWs}, s8 offen offset:{1024*i} sc1 lds')
    poll_lds(a, 2, PROG, 19, 20, sleep=1, min4=True)
    a('s_waitcnt vmcnt(0)')
    signal(a,2,XSREADY,1,24)
    a.wait_lg_all()
    stamp(a,7)
    finish(a)
    return a

def wave_H():
    a = Asm()
    a('L_H:')
    if ABL&2: a('s_endpgm')
    a(f's_mul_i32 s13, s14, {KBS}\ns_add_u32 s13, s13, {KB0}')
    a('s_lshl_b32 s12, s15, 12\ns_add_u32 s12, s12, s13')
    a('v_lshl_add_u32 v4, v1, 4, s12')
    a('v_lshrrev_b32 v6, 2, v1\nv_lshl_add_u32 v6, v6, 4, s12\nv_bfe_u32 v7, v1, 1, 1\nv_lshl_add_u32 v6, v7, 10, v6\nv_and_b32 v7, 1, v1\nv_lshl_add_u32 v6, v7, 3, v6')
    a('s_waitcnt lgkmcnt(0)\ns_barrier')
    a('s_lshl_b32 s8, s76, 16\ns_and_b32 s9, s76, 0xffff0000\ns_lshl_b32 s10, s77, 16\ns_and_b32 s11, s77, 0xffff0000\ns_cmp_eq_u32 s14, 0\ns_cselect_b32 s8, s8, s9\ns_cselect_b32 s77, s10, s11')
    a(f'v_mov_b32 v28, s8\nv_mul_f32 v28, {LOG2E}, v28\nv_exp_f32 v28, v28\nv_cvt_pk_bf16_f32 v28, v28, v28\nv_and_b32 v28, 0xffff0000, v28\nv_add_f32 v29, v28, v28')
    W=lambda e: 32+2*e
    Pm=lambda m: (50+2*(m-1)) if m<8 else (64+2*(m%3))
    Bj=lambda j: 70+2*(j%3)
    TM=lambda k: [76,78,160,162,164,30][k%6]
    PK=lambda t,r: 80+16*t+r
    a('s_waitcnt vmcnt(0)')
    if opt('twice',0):
        a('s_mov_b32 s79, 0')
        a('L_Kagain:')
    stamp(a,1)
    for i in range(4): a(f'v_lshlrev_b32 v{24+i}, 16, v{24+i}')
    a(f'v_mul_f32 v24, {LOG2E}, v24\nv_mul_f32 v25, v25, v28\nv_exp_f32 v24, v24\nv_mul_f32 v{Bj(0)}, v26, v29\nv_mul_f32 v{Bj(0)+1}, v27, v29')
    a('v_mul_f32 v25, 0x3e22f983, v25\nv_cvt_pk_bf16_f32 v24, v24, v24\nv_mul_f32 v27, 0x43000000, v25\nv_and_b32 v24, 0xffff0000, v24\nv_fract_f32 v25, v25')
    a('v_mul_f32 v24, v24, v28\nv_fract_f32 v27, v27\nv_mul_f32 v24, 0xbfb8aa3b, v24')
    a(f'v_cos_f32 v{W(1)}, v25\nv_mul_f32 v26, 0x43000000, v24\nv_sin_f32 v{W(1)+1}, v25\nv_exp_f32 v24, v24\nv_cos_f32 v{Pm(1)}, v27\nv_exp_f32 v26, v26\nv_sin_f32 v{Pm(1)+1}, v27')
    a(f'v_pk_mul_f32 {P2(W(1))}, {P2(W(1))}, v[24:25] op_sel_hi:[1,0]\nv_pk_mul_f32 {P2(Pm(1))}, {P2(Pm(1))}, v[26:27] op_sel_hi:[1,0]')
    have={}
    pend=[]
    def sink(src,t,r):
        have[t,r]=src
        o=r^1
        if (t,o) not in have: return []
        lo,hi=have[t,r&~1],have[t,r|1]
        ng='-' if t==3 else ''
        return [f'v_cvt_pk_bf16_f32 v{PK(t,r>>1)}, v{lo}, v{hi}', f'v_cvt_pk_bf16_f32 v{PK(t,8+(r>>1))}, {ng}v{lo+1}, {ng}v{hi+1}']
    def step(cm):
        nonlocal pend
        for d,x,y,_ in cm: a(f'v_pk_mul_f32 {P2(d)}, {P2(x)}, {P2(y)} op_sel_hi:[0,1]')
        for x in pend: a(x)
        for d,x,y,_ in cm: a(f'v_pk_fma_f32 {P2(d)}, {P2(x)}, {P2(y)}, {P2(d)} op_sel:[1,1,0] op_sel_hi:[1,0,1] neg_lo:[1,0,0]')
        pend=[]
        for d,x,y,s_ in cm:
            if s_: pend+=sink(d,*s_)
    def pos(m):
        if m==1: return (0,8)
        if m<4: return (1,4*(m-2))
        if m<8: return (1,8+2*(m-4))
        return (2,m-8)
    cP=lambda m: (Pm(m),Pm(m-1),Pm(1),pos(m))
    cW=lambda e,x,y: (W(e),W(x),W(y),(0,e) if e<8 else None)
    a(f'v_mov_b32 v{W(0)}, 1.0\nv_mov_b32 v{W(0)+1}, 0')
    pend=sink(W(0),0,0)+sink(W(1),0,1)+sink(Pm(1),0,8)+sink(Bj(0),3,0)+sink(W(0),2,9)
    step([cW(2,1,1), cP(2)])
    step([cW(4,2,2), cW(3,2,1), cP(3)])
    step([cW(8,4,4), cW(5,4,1), cW(6,4,2), cW(7,4,3), cP(4)])
    pool=[(1,e,0,8+e) for e in range(1,8)]+[(m,2*e,1,4*(m-2)+e) for m in (2,3) for e in (1,2,3)]+[(m,4,1,9+2*(m-4)) for m in range(4,8)]
    tk=0
    AF=lambda t: [8,144,32,48][t]
    DK=64
    rd={}
    def xfer(t):
        for q in range(4): a.ds(f'ds_write_b128 v4, {P4(PK(t,4*q))} offset:{1024*q}')
        for k in range(4):
            for n in range(2): rd[t]=a.ds(f'ds_read_b64_tr_b16 {P2(AF(t)+4*k+2*n)}, v6 offset:{256*k+2048*n}')
    for j in range(1,16):
        cm=[(Bj(j),Bj(j-1),W(8),(3,j))]
        if j+4<=16: cm.append(cP(j+4))
        for _ in range(2 if j<=4 else 1):
            if pool:
                m,e,t,r=pool.pop(0); cm.append((TM(tk),Pm(m),W(e),(t,r))); tk+=1
        step(cm)
        if j==6: xfer(0)
        if j==14: xfer(1)
    assert not pool
    step([])
    xfer(3); xfer(2)
    for t in range(3):
        a.wait_lg(max(rd[t],rd[3]))
        for k in range(4): a(f'v_mfma_f32_16x16x32_bf16 {P4(DK+4*t)}, {P4(AF(t)+4*k)}, {P4(AF(3)+4*k)}, {"0" if k==0 else P4(DK+4*t)}')
    if opt('twice',0):
        a('s_add_u32 s79, s79, 1\ns_cmp_eq_u32 s79, 1\ns_cbranch_scc1 L_Kagain')
    stamp(a,7)
    a('s_add_u32 s8, s13, 4096\nv_lshl_add_u32 v28, v1, 4, s8')
    a('s_lshl_b32 s8, s14, 2\nv_add_u32 v29, s8, v2')
    a(f's_cmp_eq_u32 s15, 0\ns_cbranch_scc1 L_Kfin')
    for t in range(3): a(f'ds_write_b128 v28, {P4(DK+4*t)} offset:{1024*t}')
    a(f'v_mov_b32 v30, 1\nds_write_b32 v29, v30 offset:{KX}')
    a('s_branch L_conv')
    a('L_Kfin:')
    a('v_and_b32 v12, 15, v1\nv_lshrrev_b32 v13, 4, v1')
    a('s_add_u32 s12, s13, 64')
    a('v_lshrrev_b32 v14, 1, v13\nv_lshlrev_b32 v14, 7, v14\nv_and_b32 v15, 1, v13\nv_lshl_add_u32 v14, v15, 2, v14\nv_lshl_add_u32 v14, v12, 3, v14\nv_lshl_add_u32 v14, v14, 2, s12')
    a('v_cmp_gt_u32 vcc, 2, v13\nv_lshlrev_b32 v15, 1, v12\nv_lshlrev_b32 v16, 2, v12\nv_cndmask_b32 v15, v15, v16, vcc\nv_lshl_add_u32 v15, v13, 6, v15\nv_lshl_add_u32 v15, v15, 2, s12')
    a('v_mov_b32 v16, 128\nv_cndmask_b32 v16, v16, 8, vcc\nv_add_u32 v16, v16, v15')
    a('v_lshl_add_u32 v17, v13, 6, v12\nv_lshl_add_u32 v17, v17, 2, s12')
    a('v_lshl_add_u32 v18, v1, 3, s12')
    a('v_lshl_add_u32 v19, v1, 4, s13')
    a('v_cmp_eq_u32 vcc, 0, v1\nv_add_u32 v20, 4, v18\nv_cndmask_b32 v20, v20, v18, vcc')
    a('v_mov_b32 v21, 0\nv_mov_b32 v22, s13')
    a('v_sub_u32 v23, 63, v1')
    a('v_lshl_add_u32 v24, v23, 5, s13\nv_lshl_add_u32 v25, v23, 4, s13\nv_lshl_add_u32 v26, v23, 3, s13')
    a('v_and_b32 v27, 7, v1\nv_lshl_add_u32 v27, v27, 2, s13')
    poll_lds(a, 29, KX, 1, 30, sleep=0)
    for t in range(3): a.ds(f'ds_read_b128 {P4(32+4*t)}, v28 offset:{1024*t}')
    a.wait_lg_all()
    for r in range(12): a(f'v_add_f32 v{DK+r}, v{DK+r}, v{32+r}')
    a.ds(f'ds_write_b32 v22, v21 offset:60')
    a.ds(f'ds_write_b128 v14, {P4(DK)}')
    a.ds(f'ds_write_b64 v15, {P2(DK+4)} offset:1024')
    a.ds(f'ds_write_b64 v16, {P2(DK+6)} offset:1024')
    for r in range(4): a.ds(f'ds_write_b32 v17, v{DK+8+r} offset:{2048+64*r}')
    E=32
    a.ds(f'ds_read_b64 {P2(E)}, v18 offset:2048'); a.ds(f'ds_read_b32 v{E+2}, v18 offset:2056')
    a.ds(f'ds_read_b64 {P2(E+4)}, v18 offset:1536'); a.ds(f'ds_read_b32 v{E+6}, v18 offset:1544')
    a.ds(f'ds_read_b64 {P2(E+8)}, v18 offset:1024'); a.ds(f'ds_read_b32 v{E+10}, v18 offset:1032')
    a.ds(f'ds_read_b32 v{E+11}, v20 offset:1020')
    a.ds(f'ds_read_b128 {P4(E+12)}, v19 offset:64'); a.ds(f'ds_read_b32 v{E+16}, v19 offset:60')
    a.wait_lg_all()
    O=100
    def pk(d,lo,hi): a(f'v_cvt_pk_bf16_f32 v{d}, v{lo}, v{hi}')
    A_,B_,C_=E,E+1,E+2
    for k,(lo,hi) in enumerate([(C_,C_),(C_,C_),(B_,B_),(B_,B_),(B_,B_),(B_,A_),(A_,A_),(A_,A_)]): pk(O+k,lo,hi)
    for k,(lo,hi) in enumerate([(C_,C_),(C_,B_),(B_,B_),(B_,B_),(B_,B_),(A_,A_),(A_,A_),(A_,A_)]): pk(O+8+k,lo,hi)
    a.ds(f'ds_write_b128 v24, {P4(O)}'); a.ds(f'ds_write_b128 v24, {P4(O+4)} offset:16')
    a.ds(f'ds_write_b128 v24, {P4(O+8)} offset:4160'); a.ds(f'ds_write_b128 v24, {P4(O+12)} offset:4176')
    A_,B_,C_=E+4,E+5,E+6
    for k,(lo,hi) in enumerate([(C_,C_),(B_,B_),(B_,A_),(A_,A_),(C_,B_),(B_,B_),(A_,A_),(A_,A_)]): pk(O+16+k,lo,hi)
    a.ds(f'ds_write_b128 v25, {P4(O+16)} offset:2048'); a.ds(f'ds_write_b128 v25, {P4(O+20)} offset:{2048+4160}')
    A_,B_,C_=E+8,E+9,E+10
    for k,(lo,hi) in enumerate([(C_,B_),(A_,A_),(B_,A_),(A_,E+11)]): pk(O+24+k,lo,hi)
    a.ds(f'ds_write_b64 v26, {P2(O+24)} offset:3072'); a.ds(f'ds_write_b64 v26, {P2(O+26)} offset:{3072+4160}')
    k0=E+12
    for k,(lo,hi) in enumerate([(k0+3,k0+2),(k0+1,k0),(k0+2,k0+1),(k0,E+16)]): pk(O+28+k,lo,hi)
    a.ds(f'ds_write_b64 v26, {P2(O+28)} offset:3584'); a.ds(f'ds_write_b64 v26, {P2(O+30)} offset:{3584+4160}')
    a.ds('ds_write_b32 v27, v21 offset:4096'); a.ds(f'ds_write_b32 v27, v21 offset:{4096+4160}')
    signal(a, 29, KREADY, 1, 24)
    a('L_conv:')
    stamp(a,2)
    if ABL&1: finish(a); return a
    a(f's_mul_i32 s12, s14, 4608\ns_add_u32 s12, s12, {UB}')
    a('s_lshl_b32 s10, s15, 8')
    a('v_and_b32 v3, 15, v1\nv_lshrrev_b32 v4, 4, v1')
    a('v_lshrrev_b32 v5, 1, v3\nv_lshl_add_u32 v5, v4, 2, v5\nv_lshlrev_b32 v5, 2, v5\nv_and_b32 v6, 1, v3\nv_mul_u32_u24 v6, 4160, v6\nv_add_u32 v5, v5, v6')
    a(f's_add_u32 s8, s13, {4160+4108-512-192}\ns_sub_u32 s8, s8, s10')
    a('v_sub_u32 v8, s8, v5')
    for ap in range(1,4): a(f'v_subrev_u32 v{8+ap}, {1024*ap}, v8')
    a('v_lshlrev_b32 v5, 5, v3\nv_lshlrev_b32 v6, 4, v4\nv_sub_u32 v6, v5, v6')
    a(f's_add_u32 s8, s12, {528-192}\ns_sub_u32 s8, s8, s10')
    a('v_add_u32 v12, s8, v6')
    a(f's_lshl_b32 s8, {sWV}, 2\nv_add_u32 v14, s8, v2\ns_xor_b32 s8, s8, 8\nv_add_u32 v15, s8, v2')
    a('v_lshl_add_u32 v5, v4, 3, v5\nv_add_u32 v16, s12, v5')
    a('s_lshl_b32 s8, s15, 12\ns_add_u32 s8, s8, s13\nv_lshl_add_u32 v17, v1, 4, s8')
    a('s_xor_b32 s9, s15, 1\ns_lshl_b32 s9, s9, 12\ns_add_u32 s9, s9, s13\nv_lshl_add_u32 v18, v1, 4, s9\nv_add_u32 v19, s9, v5')
    a(f's_lshl_b32 s6, {sP}, 1\ns_add_u32 s6, s6, s14')
    a(f's_lshl_b32 s8, s15, 9\ns_add_u32 s7, s6, s8\ns_lshl_b32 s7, s7, 7\ns_add_u32 s7, s7, {SFL}')
    a(f's_lshl_b32 s6, s6, 12\ns_lshl_b32 s8, s15, 11\ns_add_u32 s6, s6, s8\ns_add_u32 s6, s6, {SB}')
    a(f'v_lshlrev_b32 v6, 4, v1\ns_add_u32 s8, {sTAG}, 1\nv_mov_b32 v24, s8\nv_mov_b32 v25, 0\nv_mov_b32 v26, 1')
    a('s_cmp_eq_u32 s15, 0\ns_cselect_b32 s10, s77, 0\ns_cselect_b32 s11, 0, s77')
    poll_lds(a, 29, KREADY, 1, 20, sleep=4)
    poll_lds(a, 2, UREADY, 1, 20, sleep=4)
    ACC=32; FA=lambda k: 64+4*k; FB=lambda k: 96+4*k
    for q in range(8): a.ds(f'ds_read_b64 {P2(128+2*q)}, v16 offset:{512+512*q}')
    a.wait_lg_all()
    ra={}; rb={}
    def rdA(it,k):
        ap=k>>1; o=(1-(k&1))*128+16*(3-it)
        a.ds(f'ds_read2_b32 {P2(FA(k))}, v{8+ap} offset0:{o} offset1:{o+1}')
        ra[it,k]=a.ds(f'ds_read2_b32 {P2(FA(k)+2)}, v{8+ap} offset0:{o+2} offset1:{o+3}')
    def rdB(it,k):
        rb[it,k]=a.ds(f'ds_read_b128 {P4(FB(k))}, v12 offset:{512*k+64*(3-it)}')
    for k in range(8): rdA(0,k); rdB(0,k)
    for r in range(32):
        src=128+(r>>1)
        a(f'v_lshlrev_b32 v{ACC+r}, 16, v{src}' if r%2==0 else f'v_and_b32 v{ACC+r}, 0xffff0000, v{src}')
    for r in range(32): a(f'v_mul_f32 v{ACC+r}, {"s10" if r<16 else "s11"}, v{ACC+r}')
    poll_lds(a, 2, PROG, 17, 20, sleep=1, min4=True)
    a(f's_setprio {CPRIO}')
    stamp(a,3)
    for it in range(4):
        for aa in range(8):
            for b in range(7-aa,-1,-1):
                d=P4(ACC+4*(aa+b))
                a.wait_lg(max(ra[it,aa], rb[it,b]))
                a(f'v_mfma_f32_16x16x32_bf16 {d}, {P4(FA(aa))}, {P4(FB(b))}, {d}')
                if it<3 and b==7-aa: rdB(it+1,b)
            if it<3: rdA(it+1,aa)
            if it==3 and aa==3: fl=a.ds(f'ds_read_b32 v20, v15 offset:{CDONE}')
        if it==2: a.ds(f'ds_write_b32 v14, v26 offset:{CDONE}')
    stamp(a,4)
    a.wait_lg(fl)
    L=lab('c')
    a(f'v_readfirstlane_b32 s4, v20\ns_cmp_ge_u32 s4, 1\ns_cbranch_scc1 {L}')
    poll_lds(a, 15, CDONE, 1, 20, sleep=0)
    a(f'{L}:')
    def tail(keep, send):
        for q in range(4): a(f'ds_write_b128 v17, {P4(send+4*q)} offset:{1024*q}')
        a(f'ds_write_b32 v14, v26 offset:{CXCH}')
        poll_lds(a, 15, CXCH, 1, 20, sleep=0)
        for q in range(4): a(f'ds_read_b128 {P4(64+4*q)}, v18 offset:{1024*q}')
        for q in range(4):
            a(f's_waitcnt lgkmcnt({3})')
            for e in range(4): a(f'v_add_f32 v{keep+4*q+e}, v{keep+4*q+e}, v{64+4*q+e}')
            a(f'v_cvt_pk_bf16_f32 v{80+2*q}, v{keep+4*q}, v{keep+4*q+1}\nv_cvt_pk_bf16_f32 v{81+2*q}, v{keep+4*q+2}, v{keep+4*q+3}')
            a(f'ds_write_b64 v19, {P2(80+2*q)} offset:{512*q}')
    L=lab('c'); L2=lab('c')
    a(f's_cmp_eq_u32 s15, 0\ns_cbranch_scc1 {L}')
    a('s_nop 3')
    tail(ACC+16, ACC)
    a(f's_branch {L2}')
    a(f'{L}:')
    a('s_nop 3')
    tail(ACC, ACC+16)
    a(f'{L2}:')
    a('ds_read_b128 v[88:91], v18\nds_read_b128 v[92:95], v18 offset:1024')
    a(f's_mov_b64 exec, 1\nds_add_u32 v2, v26 offset:{CFIN}\ns_mov_b64 exec, -1')
    a('s_waitcnt lgkmcnt(2)')
    a(f'buffer_store_dwordx4 v[88:91], v6, {sWs}, s6 offen sc1')
    a('s_waitcnt lgkmcnt(1)')
    a(f'buffer_store_dwordx4 v[92:95], v6, {sWs}, s6 offen offset:1024 sc1')
    stamp(a,5)
    a('s_mov_b64 exec, 1\ns_waitcnt vmcnt(0)')
    a(f'buffer_store_dword v24, v25, {sWs}, s7 offen sc1')
    stamp(a,6)
    finish(a)
    return a

def wave_G():
    a = Asm(); ool = Asm(); a.isG=True
    a('L_G:')
    if ABL&8192: a('s_endpgm')
    a(f's_cmp_eq_u32 {sTY}, 2\ns_cbranch_scc1 L_Gidle')
    a('s_waitcnt lgkmcnt(0)\ns_barrier')
    a('L_Gset:')
    a('s_setprio 3')
    ACC=lambda tt,j: 72+16*(3*tt+j)
    FW=lambda par,j: 32+20*par+4*j
    FX=lambda par,tt: 32+20*par+12+4*tt
    CA=lambda j: 20+4*j
    SEL=16
    TR=3; XR=6; vP=10; vT=11; vL16=12; t0=13; t1=14; t2=15
    a(f's_sub_u32 s13, {sWV}, {WG_}\ns_and_b32 s14, s13, 1\ns_lshr_b32 s15, s13, 1')
    a(f'v_and_b32 v{t0}, 31, v1\nv_bfe_u32 v{t1}, v1, 1, 3\nv_lshrrev_b32 v{t2}, 5, v1\nv_xor_b32 v{t1}, v{t1}, v{t2}\nv_lshlrev_b32 v{t1}, 4, v{t1}\nv_lshl_add_u32 v{t0}, v{t0}, 7, v{t1}')
    a(f's_lshl_b32 s7, s14, 13\nv_add_u32 v{XR}, s7, v{t0}')
    for k in range(1,4): a(f'v_xor_b32 v{XR+k}, {32*k}, v{XR}')
    a(f'v_bfe_u32 v{t0}, v1, 4, 1\nv_bfe_u32 v{t1}, v1, 2, 2\nv_lshl_add_u32 v{t2}, v{t2}, 3, v{t1}\nv_lshlrev_b32 v{t2}, 6, v{t2}')
    a(f'v_and_b32 v{t1}, 3, v1\nv_lshl_add_u32 v{t2}, v{t1}, 3, v{t2}\nv_mul_u32_u24 v{t1}, {6144+32}, v{t0}\nv_add_u32 v{t2}, v{t2}, v{t1}')
    for j in range(3):
        a(f's_mul_i32 s8, s15, 3\ns_add_u32 s8, s8, {j}\ns_and_b32 s9, s8, 1\ns_lshl_b32 s9, s9, 5\ns_lshr_b32 s8, s8, 1\ns_lshl_b32 s8, s8, 10\ns_add_u32 s8, s8, {WS_[0]}')
        a(f'v_xor_b32 v{TR+j}, s9, v{t2}\nv_add_u32 v{TR+j}, s8, v{TR+j}')
    a(f's_lshl_b32 s8, s13, 2\nv_add_u32 v{vP}, s8, v0')
    a(f'v_lshlrev_b32 v{vL16}, 4, v1')
    a(f's_lshl_b32 s8, {sRB}, 1\ns_add_u32 s8, s8, s14\ns_mul_i32 s76, s8, {2*HROW}\ns_add_u32 s76, s76, {HB}')
    a(f's_lshl_b32 s8, s8, 5\ns_lshl_b32 s9, {sCG}, 1\ns_add_u32 s9, s9, s15\ns_add_u32 s8, s8, s9\ns_lshl_b32 s8, s8, 7\ns_add_u32 s78, s8, {HFL}')
    a(f's_mul_i32 s9, s9, 3072\ns_add_u32 s76, s76, s9\ns_add_u32 s77, s76, {HROW}')
    if CSM:
        a(f'v_and_b32 v{t1}, {3 if CSM==1 else 15}, v1\nv_cmp_eq_u32 vcc, v{t0}, v{t1}\nv_mov_b32 v{t1}, 0x3f803f80')
        for r in range(4): a(f'v_cndmask_b32 v{SEL+r}, 0, v{t1}, vcc')
    a(f's_add_u32 {sTAG}, {sTAG}, 1')
    a(f's_add_u32 s8, {sTY}, s15\ns_cmp_ge_u32 s8, 2\ns_cselect_b32 s8, {sTY}, 0\ns_cmp_lg_u32 s8, 0\ns_cbranch_scc1 L_Gskip')
    ool('L_Gskip:')
    ool(f's_cmp_eq_u32 {sTY}, 2\ns_cbranch_scc1 L_Gepi')
    for r in range(72,76): ool(f'v_mov_b32 v{r}, 0')
    ool('s_sub_u32 s76, s76, 1024\ns_sub_u32 s77, s77, 1024')
    for sb_ in ('s76','s77'):
        for o in (0,1024): ool(f'buffer_store_dwordx4 v[72:75], v{vL16}, {sWs}, {sb_} offen offset:{o} sc1')
    ool('s_branch L_Gepi')
    def chk(val, off=WFULL):
        if ABL&16: val=0
        S=lab('gs'); R=lab('gr')
        a(f's_cmp_lt_u32 s4, {val}\ns_cbranch_scc1 {S}')
        a(f'{R}:')
        ool(f'{S}:')
        poll_lds(ool, 2, off, val, vT, sleep=0)
        ool(f's_branch {R}')
    def rd_flag(off=WFULL): return a.ds(f'ds_read_b32 v{vT}, v2 offset:{off}')
    def get_flag(rd):
        a.wait_lg(rd); a(f'v_readfirstlane_b32 s4, v{vT}')
    def prog(v):
        a(f'v_mov_b32 v{t1}, {v}')
        a.ds(f'ds_write_b32 v{vP}, v{t1} offset:{PROG}')
    fr={}
    def rdx(ks,tt):
        fr[ks,'x',tt]=a.ds(f'ds_read_b128 {P4(FX(ks&1,tt))}, v{XR+(ks&3)} offset:{4096*tt}')
    def rdw(ks,j):
        for n in range(2): fr[ks,'w',j]=a.ds(f'ds_read_b64_tr_b16 {P2(FW(ks&1,j)+2*n)}, v{TR+j} offset:{(ks&1)*3072+256*n}')
    def addc(regs_, d):
        op='v_add_u32' if d>0 else 'v_subrev_u32'
        for x in regs_: a(f'{op} v{x}, {abs(d)}, v{x}')
    def adv(regs_, r):
        if r<7: addc(regs_, XS[(r+1)&3]-XS[r&3])
    def advw(H):
        if H<15: addc([TR,TR+1,TR+2], WS_[(H+1)%5]-WS_[H%5])
    vC1=[16,17]; vQ=[18,19]; vM=[20,22]; CSF=24
    if not ABL&64: poll_lds(a, 2, WFULL, 1, vT, sleep=1)
    if not TAIL: stamp(a,1)
    for ks in range(2):
        rdx(ks,0); rdw(ks,0); rdw(ks,1); rdw(ks,2); rdx(ks,1); adv([XR+ks],0)
    fl=rd_flag(WFULL+4)
    for ks in range(32):
        r=ks>>2; kk=ks&3; par=ks&1; k2=ks+2
        for n,(tt,j) in enumerate([(tt,j) for tt in range(2) for j in range(3)]):
            a.wait_lg(max(fr[ks,'x',tt], fr[ks,'w',j]))
            d=P16(ACC(tt,j))
            a(f'v_mfma_f32_32x32x16_bf16 {d}, {P4(FW(par,j))}, {P4(FX(par,tt))}, {"0" if ks==0 else d}')
            if CSM and tt==0:
                c=P4(CA(j))
                a(f'v_mfma_f32_16x16x32_bf16 {c}, {P4(SEL)}, {P4(FW(par,j))}, {"0" if ks==0 else c}')
            if not (ks&1) and n==0 and not ABL&1024 and not (ABL&4096 and kk==0): prog((ks>>1)+1)
            if k2<32:
                if not (ks&1):
                    if n==0: get_flag(fl)
                    if n==1: chk((ks>>1)+2, WFULL+4*(((ks>>1)+1)%3))
                    if n==2: advw(ks>>1)
                elif n==FLAT and ks<29: fl=rd_flag(WFULL+4*(((ks>>1)+2)%3))
                if n==2: rdx(k2,0)
                if n>=3: rdw(k2,n-3)
                if n==5: rdx(k2,1)
            if n==1 and ks>=1 and ks+1<32: adv([XR+((ks+1)&3)], (ks+1)>>2)
            if not ABL&1:
                if ks==29 and n==3: fl=rd_flag(STREADY)
                if ks==29 and n==1: a(f'v_and_b32 v{t0}, 31, v1\ns_lshl_b32 s8, s14, 8\ns_add_u32 s8, s8, {STL}\nv_lshl_add_u32 v{t2}, v{t0}, 2, s8')
                if ks==30 and n==1: get_flag(fl)
                if ks==30 and n==2:
                    chk(1,STREADY)
                    a.ds(f'ds_read2_b32 v[30:31], v{t2} offset0:0 offset1:32')
                    a(f's_mul_i32 s8, s15, 768\ns_add_u32 s8, s8, {CSA}\nv_lshl_add_u32 v{t0}, v{t0}, 3, s8')
                if ks==30 and n==3:
                    for jj in range(3): cs=a.ds(f'ds_read_b64 {P2(CSF+2*jj)}, v{t0} offset:{256*jj}')
                    a('v_cmp_gt_u32 vcc, 32, v1')
                if ks==31 and n in (0,2):
                    z=n>>1; s_=30+z
                    if n==0: a.wait_lg(cs)
                    a(f'v_and_b32 v{vQ[z]}, 0xffff0000, v{s_}\nv_and_b32 v{s_}, 0xffff, v{s_}\nv_xor_b32 v{s_}, 0x8000, v{s_}\nv_rcp_f32 v{vC1[z]}, v{vQ[z]}')
                if ks==31 and n in (1,3):
                    z=n>>1; s_=30+z
                    a(f'v_lshl_or_b32 v{vM[z]}, v{s_}, 16, v{s_}\nv_cndmask_b32 v{vM[z]+1}, 0, v{s_}, vcc\nv_cndmask_b32 v{vM[z]}, 0, v{vM[z]}, vcc\nv_mul_f32 v{vQ[z]}, v{vQ[z]}, v{vQ[z]}\nv_mul_f32 v{vC1[z]}, 0xbfb8aa3b, v{vC1[z]}')
        if ks==7 and not TAIL: stamp(a,2)
        if ks==23 and PROF==8: stamp(a,8)
    stamp(a,3)
    if ABL&1:
        a('L_Gepi:'); prog(17); finish(a); a.l += ool.l
        return a
    for j in range(3):
        for tt in range(2):
            d=P16(ACC(tt,j))
            a(f'v_mfma_f32_32x32x8_bf16 {d}, {P2(CSF+2*j)}, {P2(vM[tt])}, {d}')
    def epi(tt,j):
        A=ACC(tt,j); l=[]
        sel='op_sel_hi:[1,0]' if tt==0 else 'op_sel:[0,1]'
        sel3='op_sel_hi:[1,0,0]' if tt==0 else 'op_sel:[0,1,1]'
        for r in range(0,8,2): l.append(f'v_pk_mul_f32 {P2(A+8+r)}, {P2(A+r)}, {P2(A+8+r)}')
        for r in range(0,8,2): l.append(f'v_pk_mul_f32 {P2(A+r)}, {P2(A+r)}, {P2(vC1[0])} {sel}')
        for r in range(8): l.append(f'v_exp_f32 v{A+r}, v{A+r}')
        for r in range(0,8,2): l.append(f'v_pk_fma_f32 {P2(A+r)}, {P2(A+r)}, {P2(vQ[0])}, {P2(vQ[0])} {sel3}')
        for r in range(8): l.append(f'v_rcp_f32 v{A+r}, v{A+r}')
        for r in range(0,8,2): l.append(f'v_pk_mul_f32 {P2(A+8+r)}, {P2(A+8+r)}, {P2(A+r)}')
        for q in range(4): l.append(f'v_cvt_pk_bf16_f32 v{A+q}, v{A+8+2*q}, v{A+9+2*q}')
        l.append(f'buffer_store_dwordx4 {P4(A)}, v{vL16}, {sWs}, {["s76","s77"][tt]} offen offset:{1024*j} sc1')
        return l
    for j in range(3):
        if j==2: a(f's_cmp_eq_u32 {sTY}, 1\ns_cbranch_scc1 L_Gepi')
        for tt in range(2):
            for x in epi(tt,j): a(x)
    a('L_Gepi:')
    prog(17)
    stamp(a,4)
    a(f'v_lshrrev_b32 v{t2}, 5, v1\nv_bfe_u32 v{t1}, v1, 2, 2\nv_lshl_add_u32 v{t2}, v{t2}, 2, v{t1}\nv_lshlrev_b32 v{t2}, 7, v{t2}')
    a(f'v_bfe_u32 v{t1}, v1, 3, 1\nv_lshl_add_u32 v{t2}, v{t1}, 6, v{t2}\nv_bfe_u32 v{t1}, v1, 4, 1\nv_lshl_add_u32 v{t2}, v{t1}, 5, v{t2}\nv_and_b32 v{t1}, 3, v1\nv_lshl_add_u32 v{t2}, v{t1}, 3, v{t2}')
    a(f's_mul_i32 s8, s15, 22528\nv_add_u32 v{TR}, s8, v{t2}\nv_xor_b32 v{TR+1}, 64, v{TR}')
    a(f'v_mov_b32 v{t0}, {sTAG}\nv_mov_b32 v{t1}, 0')
    L=lab('g')
    a(f's_cmp_eq_u32 {sTY}, 2\ns_cbranch_scc1 {L}')
    a('s_mov_b64 exec, 1\ns_waitcnt vmcnt(0)')
    a(f'buffer_store_dword v{t0}, v{t1}, {sWs}, s78 offen sc1')
    a('s_mov_b64 exec, -1')
    a(f'{L}:')
    if TAIL: stamp(a,2)
    a(f's_lshl_b32 s8, {sXCD}, 3\ns_and_b32 s9, {sJ}, 3\ns_lshl_b32 s9, s9, 1\ns_add_u32 s8, s8, s9\ns_add_u32 s76, s8, s14')
    a(f's_mul_i32 s77, s76, {HROW}\ns_mul_i32 s8, s15, {44*1024}\ns_add_u32 s77, s77, s8\ns_add_u32 s77, s77, {HB}')
    HR=8
    WF=lambda k: (112+4*(k-8)) if 8<=k<22 else 16+4*(k&7)
    HF=lambda n: 80+4*(n%HR)
    curs=[0]
    def trw(k):
        q=k//22; kk=k%22; st=q%3
        if st!=curs[0]:
            d=(st-curs[0])*STG; op='v_add_u32' if d>0 else 'v_subrev_u32'
            a(f'{op} v{TR}, {abs(d)}, v{TR}\n{op} v{TR+1}, {abs(d)}, v{TR+1}'); curs[0]=st
        for nn in range(2):
            r_=a.ds(f'ds_read_b64_tr_b16 {P2(WF(k)+2*nn)}, v{TR+(k&1)} offset:{2048*(kk>>1)+1024*nn}')
        return r_
    poll_lds(a, 2, WFULL+4, 20, vT, sleep=1)
    for k in range(22): trw(k)
    prog(18)
    a(f's_add_u32 s9, s15, 14\nv_min_u32 v{t0}, s9, v1\nv_lshlrev_b32 v{t0}, 7, v{t0}')
    a(f's_lshr_b32 s8, s76, 1\ns_lshl_b32 s8, s8, 5\ns_mul_i32 s9, s15, 14\ns_add_u32 s8, s8, s9\ns_lshl_b32 s8, s8, 7\ns_add_u32 s8, s8, {HFL}')
    a('s_mov_b64 exec, 0xffff')
    poll_flags(a, t1, t0, 's8', sTAG, PSLEEP)
    a('s_mov_b64 exec, -1')
    if TAIL: stamp(a,1)
    hl={}
    def hload(n):
        if n%4==0: a(f's_add_u32 s8, s77, {1024*n}')
        hl[n]=a.vm(f'buffer_load_dwordx4 {P4(HF(n))}, v{vL16}, {sWs}, s8 offen offset:{1024*(n&3)} sc1')
    if HPF:
        a(f'v_min_u32 v{t0}, 43, v1\nv_lshlrev_b32 v{t0}, 10, v{t0}\ns_lshr_b32 s8, {sJ}, 2\ns_lshl_b32 s8, s8, 7\ns_add_u32 s9, s8, s77')
    for n in range(HR):
        hload(n)
        if HPF and n==HPF-1: a.vm(f'buffer_load_dword v9, v{t0}, {sWs}, s9 offen sc1')
    if CPRIO: a('s_setprio 0')
    a.wait_lg_all()
    AC2=lambda dq: 48+16*dq
    wf={}
    for k in range(88):
        n=k>>1
        if k%2==0: a.wait_vm(hl[n])
        if k==0: stamp(a,5)
        if k in wf: a.wait_lg(wf[k])
        d=P16(AC2(k&1))
        a(f'v_mfma_f32_32x32x16_bf16 {d}, {P4(WF(k))}, {P4(HF(n))}, {"0" if k<2 else d}')
        if k in (8,30,52): fl=rd_flag({8:WFULL+8,30:WFULL,52:Q3DONE}[k])
        if k in (14,36,58): get_flag(fl)
        if k in (15,37,59): chk(*{15:(20,WFULL+8),37:(20,WFULL),59:(3,Q3DONE)}[k])
        if 22<=k+6<88: wf[k+6]=trw(k+6)
        if k%2==1 and n+HR<44: hload(n+HR)
        if k+6==43: prog(19)
        if k==82: fl=rd_flag(XSREADY)
        if k==83:
            a(f'v_and_b32 v3, 31, v1\nv_bfe_u32 v{t0}, v1, 1, 3\ns_lshl_b32 s8, s15, 2\nv_xor_b32 v{t0}, s8, v{t0}\nv_lshlrev_b32 v{t0}, 4, v{t0}')
        if k==84:
            a(f'v_lshl_add_u32 v{t0}, v3, 7, v{t0}\nv_lshrrev_b32 v4, 5, v1\nv_lshl_add_u32 v{t0}, v4, 3, v{t0}\ns_lshl_b32 s8, s14, 12\ns_add_u32 s8, s8, {HREG+8192}\nv_add_u32 v6, s8, v{t0}')
        if k==85:
            a('v_xor_b32 v7, 16, v6\nv_xor_b32 v8, 32, v6\nv_xor_b32 v9, 48, v6')
            a(f's_lshl_b32 s8, s14, 6\nv_xor_b32 v5, s8, v{t2}\ns_lshl_b32 s8, s15, 12\ns_add_u32 s8, s8, {HREG}\nv_add_u32 v5, s8, v5')
        if k==86:
            get_flag(fl)
            a(f's_lshl_b32 s12, s13, 12\ns_add_u32 s12, s12, 0xc000\nv_add_u32 v{t1}, s12, v{vL16}\nv_xor_b32 v10, 0x2000, v{t1}')
    stamp(a,6)
    chk(1,XSREADY)
    for q in range(4): a.ds(f'ds_read_b64 {P2(128+2*q)}, v{6+q}')
    for q in range(4): a.ds(f'ds_read_b64_tr_b16 {P2(136+2*q)}, v5 offset:{1024*q}')
    L=lab('g'); L2=lab('g')
    a(f's_cmp_eq_u32 s15, 0\ns_cbranch_scc1 {L}')
    for q in range(4): a(f'ds_write_b128 v{t1}, {P4(48+4*q)} offset:{1024*q}')
    for r in range(0,16,2): a(f'v_pk_mov_b32 {P2(48+r)}, {P2(64+r)}, {P2(64+r)} op_sel:[0,1]')
    a(f's_branch {L2}')
    a(f'{L}:')
    a('s_nop 3')
    for q in range(4): a(f'ds_write_b128 v{t1}, {P4(64+4*q)} offset:{1024*q}')
    a(f'{L2}:')
    a.wait_lg_all()
    a('s_barrier')
    for q in range(4): a.ds(f'ds_read_b128 {P4(64+4*q)}, v10 offset:{1024*q}')
    for r in range(16):
        sx=128+(r>>1); ss=136+(r>>1)
        if r%2==0: a(f'v_lshlrev_b32 v{112+r}, 16, v{sx}\nv_lshlrev_b32 v{96+r}, 16, v{ss}')
        else: a(f'v_and_b32 v{112+r}, 0xffff0000, v{sx}\nv_and_b32 v{96+r}, 0xffff0000, v{ss}')
    a(f's_lshl_b32 s12, s13, 11\ns_add_u32 s12, s12, 0x10000\nv_lshlrev_b32 v3, 6, v3\nv_lshl_add_u32 v3, v4, 3, v3\nv_add_u32 v3, s12, v3\nv_add_u32 v4, s12, v{vL16}')
    a(f'v_lshrrev_b32 v{t0}, 2, v1\nv_and_b32 v{t1}, 3, v1\nv_lshlrev_b32 v{t1}, 4, v{t1}\nv_lshl_add_u32 v6, v{t0}, 10, v{t1}')
    a(f's_lshr_b32 s9, {sJ}, 2\ns_lshl_b32 s9, s9, 1\ns_add_u32 s9, s9, s15\ns_lshl_b32 s10, s76, 15\ns_lshl_b32 s11, s9, 6\ns_add_u32 s10, s10, s11\ns_add_u32 s11, s10, 16384')
    a('v_mov_b32 v16, 0xbfb8aa3b\nv_mov_b32 v18, 1.0')
    a.wait_lg_all()
    for r in range(0,16,2): a(f'v_pk_add_f32 {P2(48+r)}, {P2(48+r)}, {P2(64+r)}')
    for r in range(0,16,2): a(f'v_pk_mul_f32 {P2(64+r)}, {P2(48+r)}, v[16:17] op_sel_hi:[1,0]')
    for r in range(16): a(f'v_exp_f32 v{64+r}, v{64+r}')
    for r in range(0,16,2): a(f'v_pk_add_f32 {P2(64+r)}, {P2(64+r)}, v[18:19] op_sel_hi:[1,0]')
    for r in range(0,16,2): a(f'v_pk_mul_f32 {P2(48+r)}, {P2(48+r)}, {P2(96+r)}')
    for r in range(16): a(f'v_rcp_f32 v{64+r}, v{64+r}')
    for r in range(0,16,2): a(f'v_pk_fma_f32 {P2(64+r)}, {P2(48+r)}, {P2(64+r)}, {P2(112+r)}')
    for q in range(8): a(f'v_cvt_pk_bf16_f32 v{48+q}, v{64+2*q}, v{65+2*q}')
    for q in range(4): a(f'ds_write_b64 v3, {P2(48+2*q)} offset:{16*q}')
    a('ds_read_b128 v[56:59], v4\nds_read_b128 v[60:63], v4 offset:1024')
    a('s_waitcnt lgkmcnt(1)')
    a(f'buffer_store_dwordx4 v[56:59], v6, {sOut}, s10 offen {OUTSC}')
    a('s_waitcnt lgkmcnt(0)')
    a(f'buffer_store_dwordx4 v[60:63], v6, {sOut}, s11 offen {OUTSC}')
    L=lab('g')
    a(f's_lshl_b32 s8, s2, 4\ns_add_u32 s8, s8, s13\ns_cmp_lg_u32 s8, 0\ns_cbranch_scc1 {L}')
    a(f'v_mov_b32 v{t0}, {sTAG}\nv_mov_b32 v{t1}, {EPOCH}\ns_mov_b64 exec, 1')
    a(f'buffer_store_dword v{t0}, v{t1}, {sWs}, 0 offen')
    a('s_mov_b64 exec, -1')
    a(f'{L}:')
    if SPIN:
        if PROF:
            if PROF==7:
                a('s_waitcnt vmcnt(0)\ns_memrealtime s[84:85]\ns_waitcnt lgkmcnt(0)')
            a(f's_cmp_lg_u32 s2, {PWG}\ns_cbranch_scc1 Lnospin\ns_cmp_lg_u32 s13, 0\ns_cbranch_scc1 Lnospin')
            a('s_sub_u32 s84, s84, s80\ns_lshl_b32 s84, s84, 2\ns_add_u32 s84, s84, 3000')
        else: a(f's_mov_b32 s84, {SPIN*100}')
        a('Lspin:')
        a('s_memrealtime s[82:83]\ns_waitcnt lgkmcnt(0)\ns_sub_u32 s82, s82, s80\ns_cmp_lt_u32 s82, s84\ns_cbranch_scc1 Lspin')
        a('Lnospin:')
    if STAMPS:
        a('s_waitcnt vmcnt(0)')
        stamp(a,7)
    finish(a)
    a.l += ool.l
    return a

main = Asm()
prologue(main)
parts = [main, wave_B(0), wave_B(1), wave_B(2), wave_A(), wave_H(), wave_G(), wave_Gidle()]
lines=[]; tot=0
for p in parts:
    l, added = hazard_pass(p.l, verbose='--vpad' in sys.argv)
    tot+=added
    lines += l
lines += ['L_exit:', 's_endpgm', 'L_end:']
body = Asm(); body.l = lines
k = kernel_text(KN, body.text(), vgpr=168, sgpr=100)
open(OUT,'w').write(file_text([(KN,256,768,163840)],[k], single=True))
print('nop states added', tot, 'lines', len(lines))
```

```python
import sys, math
from asmlib import *

def opt(name, default):
    for x in sys.argv:
        if x.startswith(f'--{name}='): return int(x.split('=')[1])
    return default
STAMPS = '--stamps' in sys.argv
TAIL = '--tail' in sys.argv
TIMER = 's_memtime' if '--clk' in sys.argv else 's_memrealtime'
SPIN = opt('spin', 0)
ABL = opt('abl', 0)
LAG = opt('lag', 30); LAG2 = opt('lag2', 40)
GAT = opt('gat', 22)
Q3AT = opt('q3at', 4); Q3N = opt('q3n', 9)
T23 = opt('t23', 1); NPF = opt('npf', 2)
PSLEEP = opt('psleep', 2)
CPRIO = opt('cprio', 1)
STAT = opt('stat', 8)
SPOLL = opt('spoll', 11)
HRR = opt('hr', 8)
IDLEAT = opt('idleat', 30)
HPF = opt('hpf', 0)
OUTSC = 'sc1' if opt('outsc', 0) else ''
OUT = [x for x in sys.argv[1:] if not x.startswith('--')][0]

EPOCH=0; XF=0x8000; STATS=0x10000; CSUM=0x20000; HFL=0x60000; SFL=0xA0000; XNT=0x100000; HB=0x800000; SB=0xE00000; STAMP=0xF000000
HROW=88*1024
STG=45056
HREG=135168
KB0=HREG; KBS=8448
UB=HREG+16896
CSA=HREG+26112; STL=CSA+1536; SYNC=STL+512
WFULL=0; PROG=16; STREADY=32; UREADY=36; KREADY=40; CDONE=48; CXCH=64; CFIN=80; CSREADY=84; ISSUED=88; XSREADY=92; KX=96
LOG2E=0x3fb8aa3b
sX='s[44:47]'; sWg='s[48:51]'; sWu='s[52:55]'; sWd='s[56:59]'; sOut='s[60:63]'; sWs='s[64:67]'
sTAG='s68'; sXCD='s69'; sJ='s70'; sRB='s71'; sCG='s72'; sU0='s73'; sTY='s74'; sP='s75'; sWV='s3'
WA_, WB_, WG_ = 4, 5, 6
uid=[0]
def lab(p):
    uid[0]+=1; return f'L{p}{uid[0]}'
P2=lambda r: f'v[{r}:{r+1}]'
P4=lambda r: f'v[{r}:{r+3}]'
P16=lambda r: f'v[{r}:{r+15}]'

def stamp(a, k):
    if not STAMPS: return
    a(f'{TIMER} s[{80+2*k}:{81+2*k}]')
    a.wait_lg_all()
def finish(a):
    if STAMPS:
        a('s_mov_b64 exec, 1')
        a(f's_lshl_b32 s4, {sWV}, 3')
        for k in range(8):
            a(f's_add_u32 s5, s4, {k}\ns_lshl_b32 s5, s5, 11\ns_lshl_b32 s6, s2, 3\ns_add_u32 s5, s5, s6\ns_add_u32 s5, s5, {STAMP}')
            a(f'v_mov_b32 v4, s{80+2*k}\nv_mov_b32 v5, s{81+2*k}\nv_mov_b32 v3, 0')
            a(f'buffer_store_dwordx2 v[4:5], v3, {sWs}, s5 offen')
        a('s_waitcnt vmcnt(0)')
    a('s_endpgm')

def poll_lds(a, vaddr, off, val, vt, sleep=1, min4=False):
    L=lab('p'); E=lab('pe')
    a('s_mov_b32 s5, 0x8000')
    a(f'{L}:')
    if min4:
        a(f'ds_read_b128 {P4(vt)}, v{vaddr} offset:{off}')
        a('s_waitcnt lgkmcnt(0)')
        a(f'v_min3_u32 v{vt}, v{vt}, v{vt+1}, v{vt+2}\nv_min_u32 v{vt}, v{vt}, v{vt+3}')
    else:
        a(f'ds_read_b32 v{vt}, v{vaddr} offset:{off}')
        a('s_waitcnt lgkmcnt(0)')
    a(f'v_readfirstlane_b32 s4, v{vt}')
    a(f's_cmp_ge_u32 s4, {val}\ns_cbranch_scc1 {E}')
    if sleep: a(f's_sleep {sleep}')
    a(f's_sub_u32 s5, s5, 1\ns_cmp_lg_u32 s5, 0\ns_cbranch_scc1 {L}')
    a(f'{E}:')
    a.lg_done = a.lg_issued

def poll_flags(a, vdst, vaddr, soff, stag, sleep):
    L=lab('f'); E=lab('fe')
    a('s_mov_b32 s5, 0x4000')
    a(f'{L}:')
    a(f'buffer_load_dword v{vdst}, v{vaddr}, {sWs}, {soff} offen sc1')
    a('s_waitcnt vmcnt(0)')
    a(f'v_cmp_ne_u32 vcc, {stag}, v{vdst}')
    a(f's_cbranch_vccz {E}')
    a(f's_sleep {sleep}\ns_sub_u32 s5, s5, 1\ns_cmp_lg_u32 s5, 0\ns_cbranch_scc1 {L}')
    a(f'{E}:')
    a.vm_done = a.vm_issued

def signal(a, vaddr, off, val, vt):
    a(f'v_mov_b32 v{vt}, {val}')
    a.ds(f'ds_write_b32 v{vaddr}, v{vt} offset:{off}')

XD=8; WA=12; DA=16
def prologue(a):
    a('s_cmp_ge_u32 s2, 256\ns_cbranch_scc1 L_exit')
    a('s_load_dwordx16 s[16:31], s[0:1], 0')
    a('s_load_dwordx8 s[32:39], s[0:1], 64')
    a('s_load_dwordx4 s[40:43], s[0:1], 96')
    if STAMPS or SPIN: a(f'{TIMER} s[80:81]')
    a('v_lshrrev_b32 v2, 6, v0')
    a('v_and_b32 v1, 63, v0')
    a(f'v_readfirstlane_b32 {sWV}, v2')
    a(f's_and_b32 {sXCD}, s2, 7\ns_lshr_b32 {sJ}, s2, 3')
    a(f'v_mov_b32 v2, {SYNC}')
    a(f's_cmp_lg_u32 {sWV}, 0\ns_cbranch_scc1 L_pfdone')
    a('s_getpc_b64 s[4:5]')
    a('L_pc:')
    a(f'v_and_b32 v3, 15, v1\nv_lshlrev_b32 v3, 5, v3\nv_add_u32 v3, {sJ}, v3\nv_lshlrev_b32 v3, 7, v3')
    a('v_min_u32 v3, L_end-L_pc-4, v3')
    a('global_load_dword v167, v3, s[4:5]')
    a('v_lshl_add_u32 v3, v1, 2, v2\nv_mov_b32 v4, 0\nds_write_b32 v3, v4')
    a('L_pfdone:')
    a(f's_and_b32 s4, {sXCD}, 3\ns_mul_i32 s5, s4, 28\ns_add_u32 s5, s5, {sJ}')
    a(f's_lshl_b32 s6, s4, 1\ns_add_u32 s6, s6, {sJ}\ns_add_u32 s6, s6, {112-28}')
    a(f's_cmp_lt_u32 {sJ}, 28\ns_cselect_b32 s5, s5, s6\ns_cselect_b32 {sTY}, 0, 1')
    a(f's_cmp_lt_u32 {sJ}, 30\ns_cselect_b32 {sTY}, {sTY}, 2\ns_cselect_b32 s5, s5, 112')
    a(f's_lshr_b32 {sCG}, s5, 3\ns_and_b32 s5, s5, 7\ns_lshr_b32 s4, {sXCD}, 2\ns_lshl_b32 s4, s4, 3\ns_add_u32 {sRB}, s4, s5')
    a(f's_mul_i32 {sU0}, {sCG}, 3')
    a(f's_lshl_b32 s4, {sXCD}, 5\ns_add_u32 {sP}, s4, {sJ}')
    for r, sz in [(44,2097152),(48,1409024),(52,1409024),(56,1409024),(60,2097152),(64,0x10000000)]:
        a(f's_mov_b32 s{r+2}, {sz}\ns_mov_b32 s{r+3}, 0x20000')
    a('v_lshrrev_b32 v3, 3, v1\nv_lshlrev_b32 v3, 10, v3\nv_and_b32 v4, 7, v1\nv_lshrrev_b32 v5, 4, v1\nv_xor_b32 v5, v4, v5')
    a(f'v_lshl_add_u32 v{XD}, v5, 4, v3\nv_xor_b32 v{XD+1}, 64, v{XD}\nv_add_u32 v{XD+1}, 7168, v{XD+1}\nv_add_u32 v{XD+2}, {2*7168}, v{XD}\nv_add_u32 v{XD+3}, {2*7168}, v{XD+1}')
    a(f'v_bfe_u32 v5, v1, 4, 1\nv_lshlrev_b32 v5, 2, v5\nv_xor_b32 v4, v4, v5\nv_lshl_add_u32 v{DA}, v4, 4, v3')
    a(f'v_lshrrev_b32 v6, 2, v1\nv_mul_u32_u24 v6, 2752, v6\nv_and_b32 v7, 3, v1\nv_lshl_add_u32 v{WA}, v7, 4, v6\nv_xor_b32 v7, 2, v7\nv_lshl_add_u32 v{WA+1}, v7, 4, v6')
    a(f's_add_u32 s10, {sRB}, {sCG}\ns_and_b32 s10, s10, 3\ns_lshl_b32 s10, s10, 1')
    a(f's_lshr_b32 s4, {sRB}, 3\ns_lshr_b32 s5, {sCG}, 2\ns_add_u32 s5, s5, s4\ns_and_b32 s5, s5, 1\ns_add_u32 s10, s10, s5')
    a(f's_lshl_b32 s6, {sRB}, 17\ns_lshl_b32 s7, {sU0}, 6')
    a('s_lshl_b32 s11, s10, 7\ns_add_u32 s11, s11, s6')
    a(f's_mul_i32 s12, s10, {64*2752}\ns_add_u32 s12, s12, s7')
    a(f's_and_b32 s14, {sWV}, 1\ns_lshr_b32 s15, {sWV}, 1')
    a(f's_lshl_b32 s4, {sP}, 1\ns_add_u32 s4, s4, s14\ns_lshl_b32 s4, s4, 8\ns_lshl_b32 s5, s15, 7\ns_add_u32 s4, s4, s5\nv_lshl_add_u32 v3, v1, 1, s4')
    a('v_lshlrev_b32 v5, 4, v1')
    a(f's_lshl_b32 s13, {sP}, 13\ns_mov_b32 m0, {UB}')
    a('s_waitcnt lgkmcnt(0)')
    for r, b in [(44,16),(48,32),(52,34),(56,36),(60,38),(64,42)]:
        a(f's_mov_b64 s[{r}:{r+1}], s[{b}:{b+1}]')
    a(f's_cmp_eq_u32 {sWV}, {WB_}\ns_cbranch_scc1 L_B')
    a(f's_cmp_ge_u32 {sWV}, {WA_}\ns_cbranch_scc1 L_notH')
    for i in range(4): a(f'global_load_ushort v{24+i}, v3, s[{18+2*i}:{19+2*i}]')
    a(f's_lshl_b32 s4, {sP}, 2')
    a(f's_load_dword {sTAG}, s[42:43], {EPOCH}\ns_load_dword s76, s[26:27], s4\ns_load_dword s77, s[28:29], s4')
    a('s_branch L_H')
    a('L_notH:')
    a(f's_load_dword {sTAG}, s[42:43], {EPOCH}')
    a(f's_cmp_gt_u32 {sWV}, {WA_}\ns_cbranch_scc1 L_G')
    for r in range(8):
        a(f'buffer_load_dwordx4 v5, {sX}, s13 offen lds')
        if r<7: a(f's_mov_b32 m0, {UB+1056*(r+1)}\ns_add_u32 s13, s13, 1024')
    a('s_branch L_A')

def wave_B():
    a = Asm(); ool=Asm()
    a('L_B:')
    a('s_setprio 3')
    ev=[]; sent=[0]
    def flush(lag):
        best=None
        for idx,val in ev:
            if val>sent[0] and a.vm_issued-idx>=lag: best=(idx,val)
        if best:
            a.wait_vm(best[0]); signal(a,2,WFULL,best[1],24); sent[0]=best[1]
    def drain():
        for idx,val in ev:
            if val>sent[0]:
                a.wait_vm(idx); signal(a,2,WFULL,val,24); sent[0]=val
    def free(v): poll_lds(a, 2, PROG, v, 20, sleep=1, min4=True)
    def free_chk(v):
        S=lab('bs'); R=lab('br')
        a(f's_cmp_lt_u32 s13, {v}\ns_cbranch_scc1 {S}')
        a(f'{R}:')
        ool(f'{S}:')
        poll_lds(ool, 2, PROG, v, 20, sleep=0, min4=True)
        ool(f's_branch {R}')
    NREG=34; R3=32; q3n=[0]
    def q3ins(t,n):
        t(f's_add_u32 s14, s9, {(3*176+(n//22)*704+8*(n%22))*1024}')
        return f'buffer_load_dwordx4 {P4(R3+4*n)}, v{DA}, {sWd}, s14 offen'
    def q3load():
        a.vm(q3ins(a,q3n[0])); q3n[0]+=1
    def wd_addr(t):
        for i in range(1,4): t(f'v_add_u32 v{DA+i}, {i*7168}, v{DA}')
        t(f's_lshr_b32 s9, {sJ}, 2\ns_lshl_b32 s9, s9, 7')
    NIDLE=min(NREG, max(0,8-Q3AT)*Q3N)
    a(f's_cmp_eq_u32 {sTY}, 2\ns_cbranch_scc1 L_Bidle')
    ool('L_Bidle:')
    wd_addr(ool)
    ool('s_barrier')
    ool(f'v_lshlrev_b32 v26, 7, v1\ns_and_b32 s11, {sJ}, 1\ns_mul_i32 s11, s11, {704*1024}\ns_mul_i32 s12, {sXCD}, 11\ns_lshr_b32 s12, s12, 2\ns_mov_b32 s14, {NPF}')
    ool(f's_mul_i32 s13, {sXCD}, 6\ns_min_u32 s13, s13, 38\ns_lshl_b32 s13, s13, 13\ns_add_u32 s13, s13, s11\ns_add_u32 s13, s13, {176*1024}\ns_add_u32 s11, s11, {3*176*1024}')
    for i in range(6):
        ool(f'buffer_load_dword v28, v26, {sWd}, s13 offen')
        ool('s_add_u32 s13, s13, 8192')
    ool(f's_mov_b32 s15, {IDLEAT}')
    ool('L_Bi1:')
    ool('s_mov_b32 s13, 22')
    ool('L_Bi2:')
    ool('s_lshl_b32 s8, s12, 13\ns_add_u32 s8, s8, s11')
    ool(f'buffer_load_dword v28, v26, {sWd}, s8 offen')
    ool('s_add_u32 s12, s12, 1\ns_cmp_eq_u32 s12, 22\ns_cselect_b32 s12, 0, s12')
    ool('s_waitcnt vmcnt(4)')
    ool('s_sub_u32 s15, s15, 1\ns_cmp_lg_u32 s15, 0\ns_cbranch_scc1 L_Bi3')
    ool(f'v_mov_b32 v24, 32\nds_write_b32 v2, v24 offset:{WFULL}\nds_write_b32 v2, v24 offset:{ISSUED}')
    ool('L_Bi3:')
    ool('s_sub_u32 s13, s13, 1\ns_cmp_lg_u32 s13, 0\ns_cbranch_scc1 L_Bi2')
    ool(f's_sub_u32 s11, s11, {3*176*1024}\ns_sub_u32 s14, s14, 1\ns_cmp_lg_u32 s14, 0\ns_cbranch_scc1 L_Bi1')
    ool('s_waitcnt vmcnt(0)')
    for n in range(NIDLE): ool(q3ins(ool,n))
    ool('s_branch L_Bwd')
    for r in range(8):
        st=(r%3)*STG
        if r>=3: free_chk(r-2)
        for g in range(4):
            a(f's_mov_b32 m0, {st+4096*g}\ns_add_u32 s8, s11, {g*32768}')
            for i in range(4): a.vm(f'buffer_load_dwordx4 v{XD+i}, {sX}, s8 offen offset:{1024*i} lds')
            flush(LAG)
        for ks in range(4):
            for m in range(2):
                for u in range(3):
                    a(f's_mov_b32 m0, {st+16384+m*12288+ks*3072+u*1024-64*u}')
                    n=ks*6+m*3+u
                    if m==0 and u==0: a(f's_add_u32 s8, s12, {ks*16*2752}')
                    elif n==1: a('s_add_u32 s10, s10, 1')
                    elif n==2: a('s_and_b32 s10, s10, 7')
                    elif n==3: a('s_lshl_b32 s11, s10, 7')
                    elif n==4: a('s_add_u32 s11, s11, s6')
                    elif n==19: a(f's_mul_i32 s12, s10, {64*2752}')
                    elif n==20: a('s_add_u32 s12, s12, s7')
                    elif n==13 and 2<=r<7: rd=a.ds(f'ds_read_b128 v[20:23], v2 offset:{PROG}')
                    elif n==21 and 2<=r<7:
                        a.wait_lg(rd); a('v_min3_u32 v20, v20, v21, v22\nv_min_u32 v20, v20, v23')
                    elif n==23 and 2<=r<7: a('v_readfirstlane_b32 s13, v20')
                    last=a.vm(f'buffer_load_dwordx4 v{WA+m}, {[sWg,sWu][m]}, s8 offen offset:{64*u} lds')
            if ks&1: ev.append((last,4*r+ks+1))
            if r==0 and ks==0:
                wd_addr(a); a('s_barrier')
            flush(LAG)
        if Q3AT<=r<7:
            for _ in range(Q3N):
                if q3n[0]<NIDLE: q3load()
        if r==0 and not TAIL: stamp(a,1)
        if r==1 and not TAIL: stamp(a,2)
    signal(a,2,ISSUED,1,25)
    while q3n[0]<NIDLE: q3load()
    drain()
    a('L_Bwd:')
    stamp(a,3)
    if ABL&1:
        finish(a); a.l += ool.l; return a
    a('s_setprio 1')
    if T23:
        a(f'v_lshlrev_b32 v26, 7, v1')
        for i in range(3):
            a(f's_mul_i32 s11, {sJ}, 3\ns_add_u32 s11, s11, {i}\ns_min_u32 s11, s11, 87\ns_add_u32 s12, s11, 44\ns_cmp_lt_u32 s11, 44\ns_cselect_b32 s11, s11, s12\ns_lshl_b32 s11, s11, 13\ns_add_u32 s11, s11, {176*1024}')
            a.vm(f'buffer_load_dword v28, v26, {sWd}, s11 offen')
    for q in range(3):
        st=((2+q)%3)*STG
        free({0:6,1:7,2:8}[q])
        for kh in range(2):
            for i in range(22):
                if i%4==0:
                    a(f's_mov_b32 m0, {st+kh*22528+1024*i}\ns_add_u32 s8, s9, {(q*176+kh*704+8*i)*1024}')
                last=a.vm(f'buffer_load_dwordx4 v{DA+(i&3)}, {sWd}, s8 offen offset:{1024*(i&3)} lds')
                if i%4==3:
                    if a.vm_issued-a.vm_done>LAG2: a.wait_vm(a.vm_issued-LAG2)
                    flush(LAG2)
        ev.append((last,33+q))
        if TAIL: stamp(a,[1,2,6][q])
    while q3n[0]<NREG: q3load()
    st=2*STG
    a(f'v_add_u32 v26, {st}, v5')
    drain()
    stamp(a,4)
    free(10)
    for i in range(12,22):
        if i%4==0:
            a(f's_mov_b32 m0, {st+22528+1024*i}\ns_add_u32 s8, s9, {(3*176+704+8*i)*1024}')
        a.vm(f'buffer_load_dwordx4 v{DA+(i&3)}, {sWd}, s8 offen offset:{1024*(i&3)} lds')
    a.wait_vm(a.vm_issued-10)
    for n in range(NREG): a.ds(f'ds_write_b128 v26, {P4(R3+4*n)} offset:{1024*n}')
    a.wait_vm_all()
    signal(a,2,WFULL,36,24)
    a.wait_lg_all()
    stamp(a,5)
    finish(a)
    a.l += ool.l
    return a

def wave_A():
    a = Asm()
    a('L_A:')
    if ABL&4: a('s_endpgm')
    a('s_setprio 2')
    SF=64; ST=96; ONE=20; D1=24; D2=28
    a(f'v_and_b32 v3, 3, v1\nv_lshlrev_b32 v3, 7, v3\nv_bfe_u32 v4, v1, 2, 1\nv_mul_u32_u24 v4, {SFL-HFL}, v4\nv_add_u32 v3, v3, v4')
    a(f's_lshl_b32 s6, s2, 9\ns_add_u32 s6, s6, {HFL}')
    a(f'buffer_load_dword v60, v3, {sWs}, s6 offen sc1')
    a('v_lshrrev_b32 v4, 4, v1')
    a(f'v_and_b32 v3, 7, v1\nv_mul_u32_u24 v3, 1056, v3\nv_bfe_u32 v6, v1, 3, 1\nv_lshl_add_u32 v3, v6, 9, v3\nv_lshl_add_u32 v3, v4, 4, v3\nv_add_u32 v3, {UB}, v3')
    a(f'v_bfe_u32 v6, v1, 2, 2\nv_cmp_eq_u32 s[14:15], v4, v6\nv_mul_u32_u24 v6, 1056, v6\nv_lshl_add_u32 v6, v4, 5, v6\nv_and_b32 v7, 3, v1\nv_lshl_add_u32 v6, v7, 3, v6\nv_add_u32 v6, {UB}, v6')
    a('v_cmp_eq_u32 s[8:9], 1, v7\nv_cmp_eq_u32 s[10:11], 2, v7\nv_cmp_eq_u32 s[12:13], 3, v7')
    for r in range(4): a(f'v_mov_b32 v{ONE+r}, 0x3f803f80')
    a('s_waitcnt lgkmcnt(0)\ns_barrier')
    a(f's_add_u32 {sTAG}, {sTAG}, 1')
    a('s_waitcnt vmcnt(1)')
    stamp(a,1)
    ld=[a.ds(f'ds_read_b128 {P4(SF+4*ks)}, v3 offset:{64*ks}') for ks in range(8)]
    for ks in range(8):
        a.wait_lg(ld[ks])
        f=P4(SF+4*ks)
        a(f'v_mfma_f32_16x16x32_bf16 {P4(D1)}, {f}, {f}, {"0" if ks==0 else P4(D1)}')
        a(f'v_mfma_f32_16x16x32_bf16 {P4(D2)}, {P4(ONE)}, {f}, {"0" if ks==0 else P4(D2)}')
    for i in range(16): a.ds(f'ds_read_b64_tr_b16 {P2(ST+2*i)}, v6 offset:{128*(i>>1)+4224*(i&1)}')
    a(f'v_cndmask_b32 v56, v{D1}, v{D1+1}, s[8:9]\nv_cndmask_b32 v56, v56, v{D1+2}, s[10:11]\nv_cndmask_b32 v56, v56, v{D1+3}, s[12:13]\nv_cndmask_b32 v56, 0, v56, s[14:15]')
    a('v_mov_b32 v57, v56\nv_permlane32_swap_b32 v56, v57\nv_add_f32 v56, v56, v57')
    a('v_mov_b32 v57, v56\nv_permlane16_swap_b32 v56, v57\nv_add_f32 v56, v56, v57')
    a('v_add_f32_dpp v56, v56, v56 row_ror:8 row_mask:0xf bank_mask:0xf')
    a(f'v_add_f32_dpp v57, v{D2}, v{D2} row_ror:8 row_mask:0xf bank_mask:0xf')
    a('v_mul_f32 v57, 0x3b000000, v57')
    a('v_mul_f32 v56, 0x3b000000, v56')
    a('v_fma_f32 v56, -v57, v57, v56\nv_max_f32 v56, 0, v56')
    a('v_cvt_pk_bf16_f32 v56, v56, v56\nv_and_b32 v56, 0xffff0000, v56')
    a('v_add_f32 v56, 0x3727c5ac, v56')
    a('v_cvt_pk_bf16_f32 v56, v56, v56\nv_and_b32 v56, 0xffff0000, v56')
    a('v_sqrt_f32 v56, v56')
    a('v_cvt_pk_bf16_f32 v58, v57, v56')
    a(f'v_mov_b32 v59, {sTAG}')
    a(f's_lshl_b32 s6, {sP}, 6\ns_add_u32 s6, s6, {STATS}')
    a('v_lshlrev_b32 v7, 3, v1')
    a('s_mov_b32 s14, s6')
    a('v_and_b32 v56, 0xffff0000, v58\nv_rcp_f32 v56, v56\nv_lshlrev_b32 v57, 16, v58\nv_mul_f32 v57, v57, v56')
    for r in range(8):
        a(f'v_mov_b32_dpp v{32+r}, v56 row_newbcast:{r} row_mask:0xf bank_mask:0xf')
        a(f'v_mov_b32_dpp v{40+r}, v57 row_newbcast:{r} row_mask:0xf bank_mask:0xf')
    a(f's_lshl_b32 s6, {sP}, 13\ns_add_u32 s6, s6, {XNT}\ns_add_u32 s7, s6, 4096')
    a.wait_lg_all()
    for i in range(8):
        s0=ST+4*i
        for q in range(4): a(f'v_lshlrev_b32 v{48+2*q}, 16, v{s0+q}\nv_and_b32 v{49+2*q}, 0xffff0000, v{s0+q}')
        for e in range(8): a(f'v_fma_f32 v{48+e}, v{48+e}, v{32+e}, -v{40+e}')
        for q in range(4): a(f'v_cvt_pk_bf16_f32 v{s0+q}, v{48+2*q}, v{49+2*q}')
    if STAT:
        L=lab('a')
        a(f's_cmp_eq_u32 {sTY}, 2\ns_cbranch_scc1 {L}')
        poll_lds(a, 2, WFULL, STAT, 24, sleep=2)
        a(f'{L}:')
    for i in range(8):
        a(f'buffer_store_dwordx4 {P4(ST+4*i)}, v5, {sWs}, {"s6" if i<4 else "s7"} offen offset:{1024*(i&3)} sc1')
    a('s_mov_b64 exec, 0xff')
    a(f'buffer_store_dwordx2 v[58:59], v7, {sWs}, s14 offen sc1')
    a('s_mov_b64 exec, -1')
    stamp(a,2)
    a(f'v_add_u32 v7, {UB}, v7\nv_mov_b32 v32, 0\nv_mov_b32 v33, 0')
    a.ds('ds_write_b64 v7, v[32:33]'); a.ds('ds_write_b64 v7, v[32:33] offset:4608')
    a('s_waitcnt vmcnt(0)')
    a(f's_lshl_b32 s6, s2, 2\ns_add_u32 s6, s6, {XF}\ns_mov_b64 exec, 1')
    a(f'buffer_store_dword v59, v32, {sWs}, s6 offen sc1')
    a('s_mov_b64 exec, -1')
    Lnc=lab('a')
    a(f's_cmp_eq_u32 {sTY}, 2\ns_cbranch_scc1 {Lnc}')
    a(f'v_and_b32 v30, 31, v1\nv_lshrrev_b32 v31, 5, v1\nv_mul_u32_u24 v7, 384, v31\nv_lshl_add_u32 v7, v30, 2, v7\nv_add_u32 v7, {CSA}, v7')
    poll_lds(a, 2, CSREADY, 2, 24, sleep=2)
    for e in range(3): a.ds(f'ds_read_b32 v{56+e}, v7 offset:{128*e}')
    a(f's_lshl_b32 s8, {sCG}, 14\ns_lshl_b32 s9, {sRB}, 10\ns_add_u32 s8, s8, s9\ns_add_u32 s8, s8, {CSUM}')
    a.wait_lg_all()
    a(f'buffer_store_dwordx4 v[56:59], v5, {sWs}, s8 offen sc1')
    a(f'{Lnc}:')
    stamp(a,3)
    if ABL&1: finish(a); return a
    CS=64; XG=96
    a('v_lshrrev_b32 v6, 1, v1\nv_lshlrev_b32 v34, 4, v6\nv_lshlrev_b32 v6, 13, v6\nv_and_b32 v3, 1, v1\nv_lshl_add_u32 v6, v3, 4, v6')
    a(f's_lshl_b32 s13, {sP}, 5\ns_add_u32 s13, s13, {XNT}')
    a(f'v_mul_u32_u24 v3, 4608, v3\nv_add_u32 v34, v34, v3\nv_add_u32 v34, {UB+512}, v34')
    a(f's_lshl_b32 s6, {sRB}, 10\ns_add_u32 s6, s6, {STATS}')
    a(f's_and_b32 s8, {sRB}, 8\ns_lshl_b32 s8, s8, 10\ns_lshl_b32 s7, {sCG}, 14\ns_add_u32 s7, s7, s8\ns_add_u32 s7, s7, {CSUM}\ns_add_u32 s15, s7, 4096')
    poll_lds(a, 2, WFULL, GAT, 28, sleep=2)
    L=lab('a'); E=lab('a')
    a('s_mov_b32 s12, 0x4000')
    a(f'{L}:')
    a(f's_mov_b32 s8, {XF}')
    a(f'buffer_load_dwordx4 v[52:55], v5, {sWs}, s8 offen sc1')
    a(f'buffer_load_dwordx4 v[24:27], v5, {sWs}, s6 offen sc1')
    for i in range(8): a(f'buffer_load_dwordx4 {P4(CS+4*i)}, v5, {sWs}, {"s7" if i<4 else "s15"} offen offset:{1024*(i&3)} sc1')
    a('s_waitcnt vmcnt(0)')
    a('v_min_u32 v30, v25, v27\nv_max_u32 v31, v25, v27')
    a('v_min3_u32 v30, v30, v52, v53\nv_max3_u32 v31, v31, v52, v53\nv_min3_u32 v30, v30, v54, v55\nv_max3_u32 v31, v31, v54, v55')
    for i in range(0,8,2):
        a(f'v_min3_u32 v30, v30, v{CS+4*i+3}, v{CS+4*i+7}\nv_max3_u32 v31, v31, v{CS+4*i+3}, v{CS+4*i+7}')
    a(f'v_cmp_ne_u32 vcc, {sTAG}, v30\nv_cmp_ne_u32 s[8:9], {sTAG}, v31\ns_or_b64 vcc, vcc, s[8:9]')
    a(f's_cbranch_vccz {E}')
    a(f's_sleep 4\ns_sub_u32 s12, s12, 1\ns_cmp_lg_u32 s12, 0\ns_cbranch_scc1 {L}')
    a(f'{E}:')
    for st in (4,2,1):
        for i in range(st):
            for e in range(3): a(f'v_add_f32 v{CS+4*i+e}, v{CS+4*i+e}, v{CS+4*(i+st)+e}')
    a(f'v_lshlrev_b32 v30, 3, v1\nv_add_u32 v30, {STL}, v30')
    a.ds('ds_write2_b32 v30, v24, v26 offset0:0 offset1:1')
    a(f'v_and_b32 v30, 31, v1\nv_lshlrev_b32 v30, 3, v30\nv_lshrrev_b32 v31, 5, v1\nv_mul_u32_u24 v31, 768, v31\nv_add_u32 v30, v30, v31\nv_add_u32 v30, {CSA}, v30')
    a('s_mov_b32 s8, 0x07060302')
    for e in range(3):
        v=CS+e; t=40+4*e
        a(f'v_and_b32 v{t}, 0xffff0000, v{v}\nv_sub_f32 v{t+1}, v{v}, v{t}\nv_and_b32 v{t+2}, 0xffff0000, v{t+1}\nv_sub_f32 v{t+3}, v{t+1}, v{t+2}')
        a(f'v_perm_b32 v{t+2}, v{t+2}, v{t}, s8\nv_lshrrev_b32 v{t+3}, 16, v{t+3}')
        a.ds(f'ds_write_b64 v30, {P2(t+2)} offset:{256*e}')
    signal(a, 2, STREADY, 1, 31)
    stamp(a,4)
    poll_lds(a, 2, ISSUED, 1, 28, sleep=1)
    for i in range(8):
        a(f's_add_u32 s8, s13, {i*32*8192}')
        a(f'buffer_load_dwordx4 {P4(XG+4*i)}, v6, {sWs}, s8 offen sc1')
    a(f'v_lshrrev_b32 v3, 3, v1\nv_mul_u32_u24 v3, 3072, v3\nv_add_u32 v12, v3, v{DA}')
    for i in range(1,4): a(f'v_add_u32 v{12+i}, {i*(32768-1024)}, v12')
    a(f's_lshl_b32 s6, {sXCD}, 2\ns_and_b32 s7, {sJ}, 3\ns_add_u32 s6, s6, s7\ns_lshr_b32 s7, {sJ}, 2')
    a(f's_lshr_b32 s12, s6, 4\ns_lshl_b32 s12, s12, 3\ns_add_u32 s12, s12, s7\ns_lshl_b32 s12, s12, 13\ns_add_u32 s12, s12, {SFL}')
    a(f's_lshl_b32 s11, s7, 18\ns_lshl_b32 s10, s6, 7\ns_add_u32 s11, s11, s10\ns_add_u32 s11, s11, {SB}')
    a('s_lshl_b32 s10, s6, 16\ns_lshl_b32 s9, s7, 7\ns_add_u32 s10, s10, s9')
    a('v_lshlrev_b32 v27, 7, v1')
    a('s_waitcnt vmcnt(0)')
    for i in range(8): a.ds(f'ds_write_b128 v34, {P4(XG+4*i)} offset:{512*i}')
    signal(a, 2, UREADY, 1, 31)
    stamp(a,5)
    poll_lds(a, 2, CFIN, 4, 28, sleep=2)
    for g in range(2):
        a(f's_mov_b32 m0, {HREG+8192+4096*g}\ns_add_u32 s8, s10, {g*32768}')
        for i in range(4): a(f'buffer_load_dwordx4 v{XD+i}, {sX}, s8 offen offset:{1024*i} lds')
    poll_lds(a, 2, PROG, SPOLL, 20, sleep=2, min4=True)
    poll_flags(a, 28, 27, 's12', sTAG, 4)
    stamp(a,6)
    for g in range(2):
        a(f's_mov_b32 m0, {HREG+4096*g}\ns_add_u32 s8, s11, {g*131072}')
        for i in range(4): a(f'buffer_load_dwordx4 v{12+i}, {sWs}, s8 offen offset:{1024*i} sc1 lds')
    poll_lds(a, 2, PROG, 11, 20, sleep=1, min4=True)
    a('s_waitcnt vmcnt(0)')
    signal(a,2,XSREADY,1,24)
    a.wait_lg_all()
    stamp(a,7)
    finish(a)
    return a

def wave_H():
    a = Asm()
    a('L_H:')
    if ABL&2: a('s_endpgm')
    a(f's_mul_i32 s13, s14, {KBS}\ns_add_u32 s13, s13, {KB0}')
    a('s_lshl_b32 s12, s15, 12\ns_add_u32 s12, s12, s13')
    WR=8; RA=4
    a('v_and_b32 v28, 15, v1\nv_lshrrev_b32 v29, 4, v1\nv_add_u32 v30, v28, v29\nv_lshlrev_b32 v30, 4, v30\nv_lshl_add_u32 v31, v28, 8, s12')
    for k in range(4): a(f'v_add_u32 v{RA+k}, {64*k}, v30\nv_and_b32 v{RA+k}, 0xff, v{RA+k}\nv_add_u32 v{RA+k}, v{RA+k}, v31')
    a('v_lshlrev_b32 v30, 2, v1')
    for r in range(16): a(f'v_add_u32 v{WR+r}, {16*r}, v30\nv_and_b32 v{WR+r}, 0xff, v{WR+r}\nv_add_u32 v{WR+r}, s12, v{WR+r}')
    a('s_waitcnt lgkmcnt(0)\ns_barrier')
    a('s_lshl_b32 s8, s76, 16\ns_and_b32 s9, s76, 0xffff0000\ns_lshl_b32 s10, s77, 16\ns_and_b32 s11, s77, 0xffff0000\ns_cmp_eq_u32 s14, 0\ns_cselect_b32 s8, s8, s9\ns_cselect_b32 s77, s10, s11')
    a(f'v_mov_b32 v28, s8\nv_mul_f32 v28, {LOG2E}, v28\nv_exp_f32 v28, v28\nv_cvt_pk_bf16_f32 v28, v28, v28\nv_and_b32 v28, 0xffff0000, v28\nv_add_f32 v29, v28, v28')
    W=lambda e: 32+2*e
    Pm=lambda m: (50+2*(m-1)) if m<8 else (64+2*(m&1))
    Bj=lambda j: 68+2*(j&1)
    TM=lambda k: 72+2*(k&3)
    PK=lambda t,r: 80+16*t+r
    a('s_waitcnt vmcnt(0)')
    stamp(a,1)
    for i in range(4): a(f'v_lshlrev_b32 v{24+i}, 16, v{24+i}')
    a(f'v_mul_f32 v24, {LOG2E}, v24\nv_mul_f32 v25, v25, v28\nv_exp_f32 v24, v24\nv_mul_f32 v{Bj(0)}, v26, v29\nv_mul_f32 v{Bj(0)+1}, v27, v29')
    a('v_mul_f32 v25, 0x3e22f983, v25\nv_cvt_pk_bf16_f32 v24, v24, v24\nv_mul_f32 v27, 0x43000000, v25\nv_and_b32 v24, 0xffff0000, v24\nv_fract_f32 v25, v25')
    a('v_mul_f32 v24, v24, v28\nv_fract_f32 v27, v27\nv_mul_f32 v24, 0xbfb8aa3b, v24')
    a(f'v_cos_f32 v{W(1)}, v25\nv_mul_f32 v26, 0x43000000, v24\nv_sin_f32 v{W(1)+1}, v25\nv_exp_f32 v24, v24\nv_cos_f32 v{Pm(1)}, v27\nv_exp_f32 v26, v26\nv_sin_f32 v{Pm(1)+1}, v27')
    a(f'v_pk_mul_f32 {P2(W(1))}, {P2(W(1))}, v[24:25] op_sel_hi:[1,0]\nv_pk_mul_f32 {P2(Pm(1))}, {P2(Pm(1))}, v[26:27] op_sel_hi:[1,0]')
    pend=[]
    nb=[0]
    def sinkA(src,t,r): return [('v',f'v_cvt_pk_bf16_f32 v{PK(t,r)}, v{src}, v{src+1}')]
    def sinkB(src,j):
        p=30+(nb[0]&1); nb[0]+=1
        return [('v',f'v_cvt_pk_bf16_f32 v{p}, v{src}, -v{src+1}'), ('d',f'ds_write_b32 v{WR+j}, v{p} offset:{256*j}')]
    def step(cm):
        nonlocal pend
        for d,x,y,_ in cm: a(f'v_pk_mul_f32 {P2(d)}, {P2(x)}, {P2(y)} op_sel_hi:[0,1]')
        late=[z for z in pend if z[0]=='d']
        for k,x in pend:
            if k=='v': a(x)
        for d,x,y,_ in cm: a(f'v_pk_fma_f32 {P2(d)}, {P2(x)}, {P2(y)}, {P2(d)} op_sel:[1,1,0] op_sel_hi:[1,0,1] neg_lo:[1,0,0]')
        for k,x in late: a.ds(x)
        pend=[]
        for d,x,y,s in cm: pend+=s
    def pos(m):
        if m==1: return (0,8)
        if m<4: return (1,4*(m-2))
        if m<8: return (1,8+2*(m-4))
        return (2,m-8)
    cP=lambda m: (Pm(m),Pm(m-1),Pm(1),sinkA(Pm(m),*pos(m)))
    cW=lambda e,x,y: (W(e),W(x),W(y),sinkA(W(e),0,e) if e<8 else [])
    a(f'v_mov_b32 v{PK(0,0)}, 0x3f80')
    pend=sinkA(W(1),0,1)+sinkA(Pm(1),0,8)+sinkB(Bj(0),0)
    step([cW(2,1,1), cP(2)])
    step([cW(4,2,2), cW(3,2,1), cP(3)])
    step([cW(8,4,4), cW(5,4,1), cW(6,4,2), cW(7,4,3), cP(4)])
    pool=[(1,e,0,8+e) for e in range(1,8)]+[(m,2*e,1,4*(m-2)+e) for m in (2,3) for e in (1,2,3)]+[(m,4,1,9+2*(m-4)) for m in range(4,8)]
    tk=0
    for j in range(1,16):
        cm=[(Bj(j),Bj(j-1),W(8),sinkB(Bj(j),j))]
        if j+4<=16: cm.append(cP(j+4))
        for _ in range(1 if j+4<=16 else 2):
            if pool:
                m,e,t,r=pool.pop(0); cm.append((TM(tk),Pm(m),W(e),sinkA(TM(tk),t,r))); tk+=1
        step(cm)
    assert not pool
    step([])
    BF=32; AF=lambda t: 48+16*t if t<2 else 128; DK=144
    for k in range(4): a.ds(f'ds_read_b128 {P4(BF+4*k)}, v{RA+k}')
    rd={}
    for t in range(3):
        for r in range(16 if t<2 else 9): a.ds(f'ds_write_b32 v{WR+r}, v{PK(t,r)} offset:{256*r}')
        for k in range(4): rd[t]=a.ds(f'ds_read_b128 {P4(AF(t)+4*k)}, v{RA+k}')
    for t in range(3):
        a.wait_lg(rd[t])
        for k in range(4): a(f'v_mfma_f32_16x16x32_bf16 {P4(DK+4*t)}, {P4(AF(t)+4*k)}, {P4(BF+4*k)}, {"0" if k==0 else P4(DK+4*t)}')
    a('s_add_u32 s8, s13, 4096\nv_lshl_add_u32 v28, v1, 4, s8')
    a('s_lshl_b32 s8, s14, 2\nv_add_u32 v29, s8, v2')
    a(f's_cmp_eq_u32 s15, 0\ns_cbranch_scc1 L_Kfin')
    for t in range(3): a(f'ds_write_b128 v28, {P4(DK+4*t)} offset:{1024*t}')
    a(f'v_mov_b32 v30, 1\nds_write_b32 v29, v30 offset:{KX}')
    a('s_branch L_conv')
    a('L_Kfin:')
    a('v_and_b32 v12, 15, v1\nv_lshrrev_b32 v13, 4, v1')
    a('s_add_u32 s12, s13, 64')
    a('v_lshrrev_b32 v14, 1, v13\nv_lshlrev_b32 v14, 7, v14\nv_and_b32 v15, 1, v13\nv_lshl_add_u32 v14, v15, 2, v14\nv_lshl_add_u32 v14, v12, 3, v14\nv_lshl_add_u32 v14, v14, 2, s12')
    a('v_cmp_gt_u32 vcc, 2, v13\nv_lshlrev_b32 v15, 1, v12\nv_lshlrev_b32 v16, 2, v12\nv_cndmask_b32 v15, v15, v16, vcc\nv_lshl_add_u32 v15, v13, 6, v15\nv_lshl_add_u32 v15, v15, 2, s12')
    a('v_mov_b32 v16, 128\nv_cndmask_b32 v16, v16, 8, vcc\nv_add_u32 v16, v16, v15')
    a('v_lshl_add_u32 v17, v13, 6, v12\nv_lshl_add_u32 v17, v17, 2, s12')
    a('v_lshl_add_u32 v18, v1, 3, s12')
    a('v_lshl_add_u32 v19, v1, 4, s13')
    a('v_cmp_eq_u32 vcc, 0, v1\nv_add_u32 v20, 4, v18\nv_cndmask_b32 v20, v20, v18, vcc')
    a('v_mov_b32 v21, 0\nv_mov_b32 v22, s13')
    a('v_sub_u32 v23, 63, v1')
    a('v_lshl_add_u32 v24, v23, 5, s13\nv_lshl_add_u32 v25, v23, 4, s13\nv_lshl_add_u32 v26, v23, 3, s13')
    a('v_and_b32 v27, 7, v1\nv_lshl_add_u32 v27, v27, 2, s13')
    poll_lds(a, 29, KX, 1, 30, sleep=0)
    for t in range(3): a.ds(f'ds_read_b128 {P4(32+4*t)}, v28 offset:{1024*t}')
    a.wait_lg_all()
    for r in range(12): a(f'v_add_f32 v{DK+r}, v{DK+r}, v{32+r}')
    a.ds(f'ds_write_b32 v22, v21 offset:60')
    a.ds(f'ds_write_b128 v14, {P4(DK)}')
    a.ds(f'ds_write_b64 v15, {P2(DK+4)} offset:1024')
    a.ds(f'ds_write_b64 v16, {P2(DK+6)} offset:1024')
    for r in range(4): a.ds(f'ds_write_b32 v17, v{DK+8+r} offset:{2048+64*r}')
    E=32
    a.ds(f'ds_read_b64 {P2(E)}, v18 offset:2048'); a.ds(f'ds_read_b32 v{E+2}, v18 offset:2056')
    a.ds(f'ds_read_b64 {P2(E+4)}, v18 offset:1536'); a.ds(f'ds_read_b32 v{E+6}, v18 offset:1544')
    a.ds(f'ds_read_b64 {P2(E+8)}, v18 offset:1024'); a.ds(f'ds_read_b32 v{E+10}, v18 offset:1032')
    a.ds(f'ds_read_b32 v{E+11}, v20 offset:1020')
    a.ds(f'ds_read_b128 {P4(E+12)}, v19 offset:64'); a.ds(f'ds_read_b32 v{E+16}, v19 offset:60')
    a.wait_lg_all()
    O=100
    def pk(d,lo,hi): a(f'v_cvt_pk_bf16_f32 v{d}, v{lo}, v{hi}')
    A_,B_,C_=E,E+1,E+2
    for k,(lo,hi) in enumerate([(C_,C_),(C_,C_),(B_,B_),(B_,B_),(B_,B_),(B_,A_),(A_,A_),(A_,A_)]): pk(O+k,lo,hi)
    for k,(lo,hi) in enumerate([(C_,C_),(C_,B_),(B_,B_),(B_,B_),(B_,B_),(A_,A_),(A_,A_),(A_,A_)]): pk(O+8+k,lo,hi)
    a.ds(f'ds_write_b128 v24, {P4(O)}'); a.ds(f'ds_write_b128 v24, {P4(O+4)} offset:16')
    a.ds(f'ds_write_b128 v24, {P4(O+8)} offset:4160'); a.ds(f'ds_write_b128 v24, {P4(O+12)} offset:4176')
    A_,B_,C_=E+4,E+5,E+6
    for k,(lo,hi) in enumerate([(C_,C_),(B_,B_),(B_,A_),(A_,A_),(C_,B_),(B_,B_),(A_,A_),(A_,A_)]): pk(O+16+k,lo,hi)
    a.ds(f'ds_write_b128 v25, {P4(O+16)} offset:2048'); a.ds(f'ds_write_b128 v25, {P4(O+20)} offset:{2048+4160}')
    A_,B_,C_=E+8,E+9,E+10
    for k,(lo,hi) in enumerate([(C_,B_),(A_,A_),(B_,A_),(A_,E+11)]): pk(O+24+k,lo,hi)
    a.ds(f'ds_write_b64 v26, {P2(O+24)} offset:3072'); a.ds(f'ds_write_b64 v26, {P2(O+26)} offset:{3072+4160}')
    k0=E+12
    for k,(lo,hi) in enumerate([(k0+3,k0+2),(k0+1,k0),(k0+2,k0+1),(k0,E+16)]): pk(O+28+k,lo,hi)
    a.ds(f'ds_write_b64 v26, {P2(O+28)} offset:3584'); a.ds(f'ds_write_b64 v26, {P2(O+30)} offset:{3584+4160}')
    a.ds('ds_write_b32 v27, v21 offset:4096'); a.ds(f'ds_write_b32 v27, v21 offset:{4096+4160}')
    signal(a, 29, KREADY, 1, 24)
    a('L_conv:')
    stamp(a,2)
    if ABL&1: finish(a); return a
    a(f's_mul_i32 s12, s14, 4608\ns_add_u32 s12, s12, {UB}')
    a('s_lshl_b32 s10, s15, 8')
    a('v_and_b32 v3, 15, v1\nv_lshrrev_b32 v4, 4, v1')
    a('v_lshrrev_b32 v5, 1, v3\nv_lshl_add_u32 v5, v4, 2, v5\nv_lshlrev_b32 v5, 2, v5\nv_and_b32 v6, 1, v3\nv_mul_u32_u24 v6, 4160, v6\nv_add_u32 v5, v5, v6')
    a(f's_add_u32 s8, s13, {4160+4108-512-192}\ns_sub_u32 s8, s8, s10')
    a('v_sub_u32 v8, s8, v5')
    for ap in range(1,4): a(f'v_subrev_u32 v{8+ap}, {1024*ap}, v8')
    a('v_lshlrev_b32 v5, 5, v3\nv_lshlrev_b32 v6, 4, v4\nv_sub_u32 v6, v5, v6')
    a(f's_add_u32 s8, s12, {528-192}\ns_sub_u32 s8, s8, s10')
    a('v_add_u32 v12, s8, v6')
    a(f's_lshl_b32 s8, {sWV}, 2\nv_add_u32 v14, s8, v2\ns_xor_b32 s8, s8, 8\nv_add_u32 v15, s8, v2')
    a('v_lshl_add_u32 v5, v4, 3, v5\nv_add_u32 v16, s12, v5')
    a('s_lshl_b32 s8, s15, 12\ns_add_u32 s8, s8, s13\nv_lshl_add_u32 v17, v1, 4, s8')
    a('s_xor_b32 s9, s15, 1\ns_lshl_b32 s9, s9, 12\ns_add_u32 s9, s9, s13\nv_lshl_add_u32 v18, v1, 4, s9\nv_add_u32 v19, s9, v5')
    a(f's_lshl_b32 s6, {sP}, 1\ns_add_u32 s6, s6, s14')
    a(f's_lshl_b32 s8, s15, 9\ns_add_u32 s7, s6, s8\ns_lshl_b32 s7, s7, 7\ns_add_u32 s7, s7, {SFL}')
    a(f's_lshl_b32 s6, s6, 12\ns_lshl_b32 s8, s15, 11\ns_add_u32 s6, s6, s8\ns_add_u32 s6, s6, {SB}')
    a(f'v_lshlrev_b32 v6, 4, v1\ns_add_u32 s8, {sTAG}, 1\nv_mov_b32 v24, s8\nv_mov_b32 v25, 0\nv_mov_b32 v26, 1')
    a('s_cmp_eq_u32 s15, 0\ns_cselect_b32 s10, s77, 0\ns_cselect_b32 s11, 0, s77')
    poll_lds(a, 29, KREADY, 1, 20, sleep=4)
    poll_lds(a, 2, UREADY, 1, 20, sleep=4)
    ACC=32; FA=lambda k: 64+4*k; FB=lambda k: 96+4*k
    for q in range(8): a.ds(f'ds_read_b64 {P2(128+2*q)}, v16 offset:{512+512*q}')
    a.wait_lg_all()
    ra={}; rb={}
    def rdA(it,k):
        ap=k>>1; o=(1-(k&1))*128+16*(3-it)
        a.ds(f'ds_read2_b32 {P2(FA(k))}, v{8+ap} offset0:{o} offset1:{o+1}')
        ra[it,k]=a.ds(f'ds_read2_b32 {P2(FA(k)+2)}, v{8+ap} offset0:{o+2} offset1:{o+3}')
    def rdB(it,k):
        rb[it,k]=a.ds(f'ds_read_b128 {P4(FB(k))}, v12 offset:{512*k+64*(3-it)}')
    for k in range(8): rdA(0,k); rdB(0,k)
    for r in range(32):
        src=128+(r>>1)
        a(f'v_lshlrev_b32 v{ACC+r}, 16, v{src}' if r%2==0 else f'v_and_b32 v{ACC+r}, 0xffff0000, v{src}')
    for r in range(32): a(f'v_mul_f32 v{ACC+r}, {"s10" if r<16 else "s11"}, v{ACC+r}')
    poll_lds(a, 2, PROG, 9, 20, sleep=1, min4=True)
    a(f's_setprio {CPRIO}')
    stamp(a,3)
    for it in range(4):
        for aa in range(8):
            for b in range(7-aa,-1,-1):
                d=P4(ACC+4*(aa+b))
                a.wait_lg(max(ra[it,aa], rb[it,b]))
                a(f'v_mfma_f32_16x16x32_bf16 {d}, {P4(FA(aa))}, {P4(FB(b))}, {d}')
                if it<3 and b==7-aa: rdB(it+1,b)
            if it<3: rdA(it+1,aa)
            if it==3 and aa==3: fl=a.ds(f'ds_read_b32 v20, v15 offset:{CDONE}')
        if it==2: a.ds(f'ds_write_b32 v14, v26 offset:{CDONE}')
    stamp(a,4)
    a.wait_lg(fl)
    L=lab('c')
    a(f'v_readfirstlane_b32 s4, v20\ns_cmp_ge_u32 s4, 1\ns_cbranch_scc1 {L}')
    poll_lds(a, 15, CDONE, 1, 20, sleep=0)
    a(f'{L}:')
    def tail(keep, send):
        for q in range(4): a(f'ds_write_b128 v17, {P4(send+4*q)} offset:{1024*q}')
        a(f'ds_write_b32 v14, v26 offset:{CXCH}')
        poll_lds(a, 15, CXCH, 1, 20, sleep=0)
        for q in range(4): a(f'ds_read_b128 {P4(64+4*q)}, v18 offset:{1024*q}')
        for q in range(4):
            a(f's_waitcnt lgkmcnt({3})')
            for e in range(4): a(f'v_add_f32 v{keep+4*q+e}, v{keep+4*q+e}, v{64+4*q+e}')
            a(f'v_cvt_pk_bf16_f32 v{80+2*q}, v{keep+4*q}, v{keep+4*q+1}\nv_cvt_pk_bf16_f32 v{81+2*q}, v{keep+4*q+2}, v{keep+4*q+3}')
            a(f'ds_write_b64 v19, {P2(80+2*q)} offset:{512*q}')
    L=lab('c'); L2=lab('c')
    a(f's_cmp_eq_u32 s15, 0\ns_cbranch_scc1 {L}')
    a('s_nop 3')
    tail(ACC+16, ACC)
    a(f's_branch {L2}')
    a(f'{L}:')
    a('s_nop 3')
    tail(ACC, ACC+16)
    a(f'{L2}:')
    a('ds_read_b128 v[88:91], v18\nds_read_b128 v[92:95], v18 offset:1024')
    a(f's_mov_b64 exec, 1\nds_add_u32 v2, v26 offset:{CFIN}\ns_mov_b64 exec, -1')
    a('s_waitcnt lgkmcnt(2)')
    a(f'buffer_store_dwordx4 v[88:91], v6, {sWs}, s6 offen sc1')
    a('s_waitcnt lgkmcnt(1)')
    a(f'buffer_store_dwordx4 v[92:95], v6, {sWs}, s6 offen offset:1024 sc1')
    stamp(a,5)
    a('s_mov_b64 exec, 1\ns_waitcnt vmcnt(0)')
    a(f'buffer_store_dword v24, v25, {sWs}, s7 offen sc1')
    stamp(a,6)
    finish(a)
    return a

def wave_G():
    a = Asm(); ool = Asm()
    a('L_G:')
    a('s_setprio 3')
    ACC=lambda tt,j: 72+16*(3*tt+j)
    FW=lambda par,j: 32+20*par+4*j
    FX=lambda par,tt: 32+20*par+12+4*tt
    CA=lambda j: 20+4*j
    SEL=16
    TR=3; XR=6; vP=10; vT=11; vL16=12; t0=13; t1=14; t2=15
    a(f's_sub_u32 s13, {sWV}, {WG_}\ns_and_b32 s14, s13, 1\ns_lshr_b32 s15, s13, 1')
    a(f'v_and_b32 v{t0}, 31, v1\nv_bfe_u32 v{t1}, v1, 1, 3\nv_lshrrev_b32 v{t2}, 5, v1\nv_xor_b32 v{t1}, v{t1}, v{t2}\nv_lshlrev_b32 v{t1}, 4, v{t1}\nv_lshl_add_u32 v{t0}, v{t0}, 7, v{t1}')
    a(f's_lshl_b32 s7, s14, 13\nv_add_u32 v{XR}, s7, v{t0}')
    for k in range(1,4): a(f'v_xor_b32 v{XR+k}, {32*k}, v{XR}')
    a(f'v_bfe_u32 v{t0}, v1, 4, 1\nv_bfe_u32 v{t1}, v1, 2, 2\nv_lshl_add_u32 v{t2}, v{t2}, 3, v{t1}\nv_lshlrev_b32 v{t2}, 6, v{t2}')
    a(f'v_and_b32 v{t1}, 3, v1\nv_lshl_add_u32 v{t2}, v{t1}, 3, v{t2}\nv_mul_u32_u24 v{t1}, {12288+32}, v{t0}\nv_add_u32 v{t2}, v{t2}, v{t1}')
    for j in range(3):
        a(f's_mul_i32 s8, s15, 3\ns_add_u32 s8, s8, {j}\ns_and_b32 s9, s8, 1\ns_lshl_b32 s9, s9, 5\ns_lshr_b32 s8, s8, 1\ns_lshl_b32 s8, s8, 10\ns_add_u32 s8, s8, 16384')
        a(f'v_xor_b32 v{TR+j}, s9, v{t2}\nv_add_u32 v{TR+j}, s8, v{TR+j}')
    a(f's_lshl_b32 s8, s13, 2\nv_add_u32 v{vP}, s8, v2')
    a(f'v_lshlrev_b32 v{vL16}, 4, v1')
    a(f's_lshl_b32 s8, {sRB}, 1\ns_add_u32 s8, s8, s14\ns_mul_i32 s76, s8, {2*HROW}\ns_add_u32 s76, s76, {HB}')
    a(f's_lshl_b32 s8, s8, 5\ns_lshl_b32 s9, {sCG}, 1\ns_add_u32 s9, s9, s15\ns_add_u32 s8, s8, s9\ns_lshl_b32 s8, s8, 7\ns_add_u32 s78, s8, {HFL}')
    a(f's_mul_i32 s9, s9, 3072\ns_add_u32 s76, s76, s9\ns_add_u32 s77, s76, {HROW}')
    a(f'v_and_b32 v{t1}, 1, v1\nv_cmp_eq_u32 vcc, v{t0}, v{t1}\nv_mov_b32 v{t1}, 0x3f803f80\nv_cndmask_b32 v{t0}, 0, v{t1}, vcc')
    a(f's_bfe_u32 s11, {sRB}, 0x10002\ns_cmp_eq_u32 s11, 0\ns_cselect_b32 s10, -1, 0\ns_cselect_b32 s11, 0, -1')
    for r in range(4): a(f'v_and_b32 v{SEL+r}, s10, v{t0}')
    a('s_waitcnt lgkmcnt(0)\ns_barrier')
    a(f's_add_u32 {sTAG}, {sTAG}, 1')
    a(f's_add_u32 s8, {sTY}, s15\ns_cmp_ge_u32 s8, 2\ns_cselect_b32 s8, {sTY}, 0\ns_cmp_lg_u32 s8, 0\ns_cbranch_scc1 L_Gskip')
    ool('L_Gskip:')
    ool(f's_xor_b32 s8, s14, 1\nv_mov_b32 v{t1}, s8\ns_mov_b64 exec, 1')
    ool(f'ds_add_u32 v2, v{t1} offset:{CSREADY}')
    ool('s_mov_b64 exec, -1')
    ool(f's_cmp_eq_u32 {sTY}, 2\ns_cbranch_scc1 L_Gepi')
    for r in range(72,76): ool(f'v_mov_b32 v{r}, 0')
    ool('s_sub_u32 s76, s76, 1024\ns_sub_u32 s77, s77, 1024')
    for sb_ in ('s76','s77'):
        for o in (0,1024): ool(f'buffer_store_dwordx4 v[72:75], v{vL16}, {sWs}, {sb_} offen offset:{o} sc1')
    ool('s_branch L_Gepi')
    def chk(val, off=WFULL):
        S=lab('gs'); R=lab('gr')
        a(f's_cmp_lt_u32 s4, {val}\ns_cbranch_scc1 {S}')
        a(f'{R}:')
        ool(f'{S}:')
        poll_lds(ool, 2, off, val, vT, sleep=0)
        ool(f's_branch {R}')
    def rd_flag(off=WFULL): return a.ds(f'ds_read_b32 v{vT}, v2 offset:{off}')
    def get_flag(rd):
        a.wait_lg(rd); a(f'v_readfirstlane_b32 s4, v{vT}')
    def prog(v):
        a(f'v_mov_b32 v{t1}, {v}')
        a.ds(f'ds_write_b32 v{vP}, v{t1} offset:{PROG}')
    fr={}
    def rdx(ks,tt):
        fr[ks,'x',tt]=a.ds(f'ds_read_b128 {P4(FX(ks&1,tt))}, v{XR+(ks&3)} offset:{4096*tt}')
    def rdw(ks,j):
        for n in range(2): fr[ks,'w',j]=a.ds(f'ds_read_b64_tr_b16 {P2(FW(ks&1,j)+2*n)}, v{TR+j} offset:{(ks&3)*3072+256*n}')
    def adv(regs_, r):
        if r>=7: return
        d=(((r+1)%3)-(r%3))*STG
        op='v_add_u32' if d>0 else 'v_subrev_u32'
        for x in regs_: a(f'{op} v{x}, {abs(d)}, v{x}')
    vC1=[16,17]; vQ=[18,19]; vM=[20,22]; CSF=24
    poll_lds(a, 2, WFULL, 2, vT, sleep=1)
    if not TAIL: stamp(a,1)
    for ks in range(2):
        rdx(ks,0); rdw(ks,0); rdw(ks,1); rdw(ks,2); rdx(ks,1); adv([XR+ks],0)
    fl=rd_flag()
    for ks in range(32):
        r=ks>>2; kk=ks&3; par=ks&1; k2=ks+2
        for n,(tt,j) in enumerate([(tt,j) for tt in range(2) for j in range(3)]):
            a.wait_lg(max(fr[ks,'x',tt], fr[ks,'w',j]))
            d=P16(ACC(tt,j))
            a(f'v_mfma_f32_32x32x16_bf16 {d}, {P4(FW(par,j))}, {P4(FX(par,tt))}, {"0" if ks==0 else d}')
            if r<2 and tt==1:
                c=P4(CA(j))
                a(f'v_mfma_f32_16x16x32_bf16 {c}, {P4(SEL)}, {P4(FW(par,j))}, {"0" if ks==0 else c}')
            if k2<32:
                if not (ks&1):
                    if n==0: get_flag(fl)
                    if n==1: chk(ks+4)
                elif n==0 and ks<29: fl=rd_flag()
                if n==2: rdx(k2,0)
                if n>=3: rdw(k2,n-3)
                if n==5: rdx(k2,1)
            if n==0 and ks>=1 and ks+1<32: adv([XR+((ks+1)&3)], (ks+1)>>2)
            if kk==2 and n==0: prog(r+1)
            if kk==2 and n==1: adv([TR,TR+1,TR+2], r)
            if not ABL&1:
                if ks==29 and n==0: fl=rd_flag(STREADY)
                if ks==29 and n==1: a(f'v_and_b32 v{t0}, 31, v1\ns_lshl_b32 s8, s14, 8\ns_add_u32 s8, s8, {STL}\nv_lshl_add_u32 v{t2}, v{t0}, 2, s8')
                if ks==30 and n==1: get_flag(fl)
                if ks==30 and n==2:
                    chk(1,STREADY)
                    a.ds(f'ds_read2_b32 v[30:31], v{t2} offset0:0 offset1:32')
                    a(f's_mul_i32 s8, s15, 768\ns_add_u32 s8, s8, {CSA}\nv_lshl_add_u32 v{t0}, v{t0}, 3, s8')
                if ks==30 and n==3:
                    for jj in range(3): cs=a.ds(f'ds_read_b64 {P2(CSF+2*jj)}, v{t0} offset:{256*jj}')
                    a('v_cmp_gt_u32 vcc, 32, v1')
                if ks==31 and n in (0,2):
                    z=n>>1; s_=30+z
                    if n==0: a.wait_lg(cs)
                    a(f'v_and_b32 v{vQ[z]}, 0xffff0000, v{s_}\nv_and_b32 v{s_}, 0xffff, v{s_}\nv_xor_b32 v{s_}, 0x8000, v{s_}\nv_rcp_f32 v{vC1[z]}, v{vQ[z]}')
                if ks==31 and n in (1,3):
                    z=n>>1; s_=30+z
                    a(f'v_lshl_or_b32 v{vM[z]}, v{s_}, 16, v{s_}\nv_cndmask_b32 v{vM[z]+1}, 0, v{s_}, vcc\nv_cndmask_b32 v{vM[z]}, 0, v{vM[z]}, vcc\nv_mul_f32 v{vQ[z]}, v{vQ[z]}, v{vQ[z]}\nv_mul_f32 v{vC1[z]}, 0xbfb8aa3b, v{vC1[z]}')
        if ks==3:
            for rr in range(4): a(f'v_and_b32 v{SEL+rr}, s11, v{t0}')
        if ks==8:
            L=lab('g')
            a(f's_cmp_eq_u32 s14, 1\ns_cbranch_scc1 {L}')
            a(f's_mul_i32 s8, s15, 384\ns_add_u32 s8, s8, {CSA}\nv_lshl_add_u32 v{t2}, v1, 2, s8\nv_mov_b32 v{t1}, 1')
            a('s_mov_b64 exec, 0xffff')
            for j in range(3): a(f'ds_write2_b32 v{t2}, v{CA(j)}, v{CA(j)+1} offset0:{32*j} offset1:{32*j+16}')
            a('s_mov_b64 exec, 1')
            a(f'ds_add_u32 v2, v{t1} offset:{CSREADY}')
            a('s_mov_b64 exec, -1')
            a(f'{L}:')
        if ks==7 and not TAIL: stamp(a,2)
    stamp(a,3)
    if ABL&1:
        a('L_Gepi:'); prog(9); finish(a); a.l += ool.l
        return a
    for j in range(3):
        for tt in range(2):
            d=P16(ACC(tt,j))
            a(f'v_mfma_f32_32x32x8_bf16 {d}, {P2(CSF+2*j)}, {P2(vM[tt])}, {d}')
    def epi(tt,j):
        A=ACC(tt,j); l=[]
        sel='op_sel_hi:[1,0]' if tt==0 else 'op_sel:[0,1]'
        sel3='op_sel_hi:[1,0,0]' if tt==0 else 'op_sel:[0,1,1]'
        for r in range(0,8,2): l.append(f'v_pk_mul_f32 {P2(A+8+r)}, {P2(A+r)}, {P2(A+8+r)}')
        for r in range(0,8,2): l.append(f'v_pk_mul_f32 {P2(A+r)}, {P2(A+r)}, {P2(vC1[0])} {sel}')
        for r in range(8): l.append(f'v_exp_f32 v{A+r}, v{A+r}')
        for r in range(0,8,2): l.append(f'v_pk_fma_f32 {P2(A+r)}, {P2(A+r)}, {P2(vQ[0])}, {P2(vQ[0])} {sel3}')
        for r in range(8): l.append(f'v_rcp_f32 v{A+r}, v{A+r}')
        for r in range(0,8,2): l.append(f'v_pk_mul_f32 {P2(A+8+r)}, {P2(A+8+r)}, {P2(A+r)}')
        for q in range(4): l.append(f'v_cvt_pk_bf16_f32 v{A+q}, v{A+8+2*q}, v{A+9+2*q}')
        l.append(f'buffer_store_dwordx4 {P4(A)}, v{vL16}, {sWs}, {["s76","s77"][tt]} offen offset:{1024*j} sc1')
        return l
    for j in range(3):
        if j==2: a(f's_cmp_eq_u32 {sTY}, 1\ns_cbranch_scc1 L_Gepi')
        for tt in range(2):
            for x in epi(tt,j): a(x)
    a('L_Gepi:')
    prog(9)
    stamp(a,4)
    a(f'v_lshrrev_b32 v{t2}, 5, v1\nv_bfe_u32 v{t1}, v1, 2, 2\nv_lshl_add_u32 v{t2}, v{t2}, 2, v{t1}\nv_lshlrev_b32 v{t2}, 7, v{t2}')
    a(f'v_bfe_u32 v{t1}, v1, 3, 1\nv_lshl_add_u32 v{t2}, v{t1}, 6, v{t2}\nv_bfe_u32 v{t1}, v1, 4, 1\nv_lshl_add_u32 v{t2}, v{t1}, 5, v{t2}\nv_and_b32 v{t1}, 3, v1\nv_lshl_add_u32 v{t2}, v{t1}, 3, v{t2}')
    a(f's_mul_i32 s8, s15, 22528\ns_add_u32 s8, s8, {2*STG}\nv_add_u32 v{TR}, s8, v{t2}\nv_xor_b32 v{TR+1}, 64, v{TR}')
    a(f'v_mov_b32 v{t0}, {sTAG}\nv_mov_b32 v{t1}, 0')
    L=lab('g')
    a(f's_cmp_eq_u32 {sTY}, 2\ns_cbranch_scc1 {L}')
    a('s_mov_b64 exec, 1\ns_waitcnt vmcnt(0)')
    a(f'buffer_store_dword v{t0}, v{t1}, {sWs}, s78 offen sc1')
    a('s_mov_b64 exec, -1')
    a(f'{L}:')
    if TAIL: stamp(a,2)
    a(f's_lshl_b32 s8, {sXCD}, 3\ns_and_b32 s9, {sJ}, 3\ns_lshl_b32 s9, s9, 1\ns_add_u32 s8, s8, s9\ns_add_u32 s76, s8, s14')
    a(f's_mul_i32 s77, s76, {HROW}\ns_mul_i32 s8, s15, {44*1024}\ns_add_u32 s77, s77, s8\ns_add_u32 s77, s77, {HB}')
    HR=8
    WF=lambda k: (112+4*(k-8)) if 8<=k<22 else 16+4*(k&7)
    HF=lambda n: 80+4*(n%HR)
    curs=[2]
    def trw(k):
        q=k//22; kk=k%22; st=(2+q)%3
        if st!=curs[0]:
            d=(st-curs[0])*STG; op='v_add_u32' if d>0 else 'v_subrev_u32'
            a(f'{op} v{TR}, {abs(d)}, v{TR}\n{op} v{TR+1}, {abs(d)}, v{TR+1}'); curs[0]=st
        for nn in range(2):
            r_=a.ds(f'ds_read_b64_tr_b16 {P2(WF(k)+2*nn)}, v{TR+(k&1)} offset:{2048*(kk>>1)+1024*nn}')
        return r_
    poll_lds(a, 2, WFULL, 33, vT, sleep=1)
    for k in range(22): trw(k)
    prog(10)
    a(f's_add_u32 s9, s15, 14\nv_min_u32 v{t0}, s9, v1\nv_lshlrev_b32 v{t0}, 7, v{t0}')
    a(f's_lshr_b32 s8, s76, 1\ns_lshl_b32 s8, s8, 5\ns_mul_i32 s9, s15, 14\ns_add_u32 s8, s8, s9\ns_lshl_b32 s8, s8, 7\ns_add_u32 s8, s8, {HFL}')
    a('s_mov_b64 exec, 0xffff')
    poll_flags(a, t1, t0, 's8', sTAG, PSLEEP)
    a('s_mov_b64 exec, -1')
    if TAIL: stamp(a,1)
    hl={}
    def hload(n):
        if n%4==0: a(f's_add_u32 s8, s77, {1024*n}')
        hl[n]=a.vm(f'buffer_load_dwordx4 {P4(HF(n))}, v{vL16}, {sWs}, s8 offen offset:{1024*(n&3)} sc1')
    if HPF:
        a(f'v_min_u32 v{t0}, 43, v1\nv_lshlrev_b32 v{t0}, 10, v{t0}\ns_lshr_b32 s8, {sJ}, 2\ns_lshl_b32 s8, s8, 7\ns_add_u32 s9, s8, s77')
    for n in range(HR):
        hload(n)
        if HPF and n==HPF-1: a.vm(f'buffer_load_dword v9, v{t0}, {sWs}, s9 offen sc1')
    if CPRIO: a('s_setprio 0')
    a.wait_lg_all()
    AC2=lambda dq: 48+16*dq
    wf={}
    for k in range(88):
        n=k>>1
        if k%2==0: a.wait_vm(hl[n])
        if k==0: stamp(a,5)
        if k in wf: a.wait_lg(wf[k])
        d=P16(AC2(k&1))
        a(f'v_mfma_f32_32x32x16_bf16 {d}, {P4(WF(k))}, {P4(HF(n))}, {"0" if k<2 else d}')
        if k in (8,30,52): fl=rd_flag()
        if k in (14,36,58): get_flag(fl)
        if k in (15,37,59): chk(34+(k-15)//22)
        if 22<=k+6<88: wf[k+6]=trw(k+6)
        if k%2==1 and n+HR<44: hload(n+HR)
        if k+6==43: prog(11)
        if k==82: fl=rd_flag(XSREADY)
        if k==83:
            a(f'v_and_b32 v3, 31, v1\nv_bfe_u32 v{t0}, v1, 1, 3\ns_lshl_b32 s8, s15, 2\nv_xor_b32 v{t0}, s8, v{t0}\nv_lshlrev_b32 v{t0}, 4, v{t0}')
        if k==84:
            a(f'v_lshl_add_u32 v{t0}, v3, 7, v{t0}\nv_lshrrev_b32 v4, 5, v1\nv_lshl_add_u32 v{t0}, v4, 3, v{t0}\ns_lshl_b32 s8, s14, 12\ns_add_u32 s8, s8, {HREG+8192}\nv_add_u32 v6, s8, v{t0}')
        if k==85:
            a('v_xor_b32 v7, 16, v6\nv_xor_b32 v8, 32, v6\nv_xor_b32 v9, 48, v6')
            a(f's_lshl_b32 s8, s14, 6\nv_xor_b32 v5, s8, v{t2}\ns_lshl_b32 s8, s15, 12\ns_add_u32 s8, s8, {HREG}\nv_add_u32 v5, s8, v5')
        if k==86:
            get_flag(fl)
            a(f's_lshl_b32 s12, s13, 12\nv_add_u32 v{t1}, s12, v{vL16}\nv_xor_b32 v10, 0x2000, v{t1}')
    stamp(a,6)
    chk(1,XSREADY)
    for q in range(4): a.ds(f'ds_read_b64 {P2(128+2*q)}, v{6+q}')
    for q in range(4): a.ds(f'ds_read_b64_tr_b16 {P2(136+2*q)}, v5 offset:{1024*q}')
    L=lab('g'); L2=lab('g')
    a(f's_cmp_eq_u32 s15, 0\ns_cbranch_scc1 {L}')
    for q in range(4): a(f'ds_write_b128 v{t1}, {P4(48+4*q)} offset:{1024*q}')
    for r in range(0,16,2): a(f'v_pk_mov_b32 {P2(48+r)}, {P2(64+r)}, {P2(64+r)} op_sel:[0,1]')
    a(f's_branch {L2}')
    a(f'{L}:')
    a('s_nop 3')
    for q in range(4): a(f'ds_write_b128 v{t1}, {P4(64+4*q)} offset:{1024*q}')
    a(f'{L2}:')
    a.wait_lg_all()
    a('s_barrier')
    for q in range(4): a.ds(f'ds_read_b128 {P4(64+4*q)}, v10 offset:{1024*q}')
    for r in range(16):
        sx=128+(r>>1); ss=136+(r>>1)
        if r%2==0: a(f'v_lshlrev_b32 v{112+r}, 16, v{sx}\nv_lshlrev_b32 v{96+r}, 16, v{ss}')
        else: a(f'v_and_b32 v{112+r}, 0xffff0000, v{sx}\nv_and_b32 v{96+r}, 0xffff0000, v{ss}')
    a(f's_lshl_b32 s12, s13, 11\ns_add_u32 s12, s12, 16384\nv_lshlrev_b32 v3, 6, v3\nv_lshl_add_u32 v3, v4, 3, v3\nv_add_u32 v3, s12, v3\nv_add_u32 v4, s12, v{vL16}')
    a(f'v_lshrrev_b32 v{t0}, 2, v1\nv_and_b32 v{t1}, 3, v1\nv_lshlrev_b32 v{t1}, 4, v{t1}\nv_lshl_add_u32 v6, v{t0}, 10, v{t1}')
    a(f's_lshr_b32 s9, {sJ}, 2\ns_lshl_b32 s9, s9, 1\ns_add_u32 s9, s9, s15\ns_lshl_b32 s10, s76, 15\ns_lshl_b32 s11, s9, 6\ns_add_u32 s10, s10, s11\ns_add_u32 s11, s10, 16384')
    a('v_mov_b32 v16, 0xbfb8aa3b\nv_mov_b32 v18, 1.0')
    a.wait_lg_all()
    for r in range(0,16,2): a(f'v_pk_add_f32 {P2(48+r)}, {P2(48+r)}, {P2(64+r)}')
    for r in range(0,16,2): a(f'v_pk_mul_f32 {P2(64+r)}, {P2(48+r)}, v[16:17] op_sel_hi:[1,0]')
    for r in range(16): a(f'v_exp_f32 v{64+r}, v{64+r}')
    for r in range(0,16,2): a(f'v_pk_add_f32 {P2(64+r)}, {P2(64+r)}, v[18:19] op_sel_hi:[1,0]')
    for r in range(0,16,2): a(f'v_pk_mul_f32 {P2(48+r)}, {P2(48+r)}, {P2(96+r)}')
    for r in range(16): a(f'v_rcp_f32 v{64+r}, v{64+r}')
    for r in range(0,16,2): a(f'v_pk_fma_f32 {P2(64+r)}, {P2(48+r)}, {P2(64+r)}, {P2(112+r)}')
    for q in range(8): a(f'v_cvt_pk_bf16_f32 v{48+q}, v{64+2*q}, v{65+2*q}')
    for q in range(4): a(f'ds_write_b64 v3, {P2(48+2*q)} offset:{16*q}')
    a('ds_read_b128 v[56:59], v4\nds_read_b128 v[60:63], v4 offset:1024')
    a('s_waitcnt lgkmcnt(1)')
    a(f'buffer_store_dwordx4 v[56:59], v6, {sOut}, s10 offen {OUTSC}')
    a('s_waitcnt lgkmcnt(0)')
    a(f'buffer_store_dwordx4 v[60:63], v6, {sOut}, s11 offen {OUTSC}')
    L=lab('g')
    a(f's_lshl_b32 s8, s2, 4\ns_add_u32 s8, s8, s13\ns_cmp_lg_u32 s8, 0\ns_cbranch_scc1 {L}')
    a(f'v_mov_b32 v{t0}, {sTAG}\nv_mov_b32 v{t1}, {EPOCH}\ns_mov_b64 exec, 1')
    a(f'buffer_store_dword v{t0}, v{t1}, {sWs}, 0 offen')
    a('s_mov_b64 exec, -1')
    a(f'{L}:')
    if SPIN:
        a('Lspin:')
        a(f's_memrealtime s[82:83]\ns_waitcnt lgkmcnt(0)\ns_sub_u32 s82, s82, s80\ns_cmp_lt_u32 s82, {SPIN*100}\ns_cbranch_scc1 Lspin')
    if STAMPS:
        a('s_waitcnt vmcnt(0)')
        stamp(a,7)
    finish(a)
    a.l += ool.l
    return a

main = Asm()
prologue(main)
parts = [main, wave_B(), wave_A(), wave_H(), wave_G()]
lines=[]; tot=0
for p in parts:
    l, added = hazard_pass(p.l, verbose='--vpad' in sys.argv)
    tot+=added
    lines += l
lines += ['L_exit:', 's_endpgm', 'L_end:']
body = Asm(); body.l = lines
k = kernel_text(KN, body.text(), vgpr=168, sgpr=100)
open(OUT,'w').write(file_text([(KN,256,640,163840)],[k], single=True))
print('nop states added', tot, 'lines', len(lines))
```
